```python
import torch

def _softmax(x, axis=-1):
    return torch.softmax(x, dim=axis)

def _gelu(x):
    return torch.nn.functional.gelu(x, approximate='tanh')

def _silu(x):
    return torch.nn.functional.silu(x)

def _sigmoid(x):
    return torch.sigmoid(x)

def _layernorm(x, axis=-1, eps=1e-05):
    m = x.mean(dim=axis, keepdim=True)
    v = x.var(dim=axis, keepdim=True, unbiased=False)
    return (x - m) / torch.sqrt(v + eps)

def _scatter_add(tgt, idx, src, axis=0):
    return tgt.clone().index_add_(axis, idx, src)

def _segment_sum(src, seg, n):
    out = torch.zeros((n,) + src.shape[1:], dtype=src.dtype)
    return out.index_add_(0, seg, src)

def _pad(x, pw):
    flat = tuple((v for pair in reversed(pw) for v in pair))
    return torch.nn.functional.pad(x, flat)
kernel_name = 'gated_mix__sliding_local_dilated__mixer_gmlp__prompt'

def setup_inputs():

    _w = lambda a: (lambda t: t.to(torch.bfloat16) if t.is_floating_point() else t)(torch.as_tensor(a))

    def _A_setup():
        B, S, D = (1, 2048, 640)
        return {'x': _w((lambda *s: torch.randn(*s, dtype=torch.bfloat16) * 0.05)(B, S, D)), 'wqkv': _w((lambda *s: torch.randn(*s, dtype=torch.bfloat16) * 0.8)(D, 3 * D)), 'wo': _w((lambda *s: torch.randn(*s, dtype=torch.bfloat16) * 0.05)(D, D))}
    _A_in = _A_setup()

    def _B_setup():
        B, S, D, F = (1, 2048, 640, 1536)
        Fh = F // 2
        return {'x': _w((lambda *s: torch.randn(*s, dtype=torch.bfloat16) * 0.05)(B, S, D)), 'w_in': _w((lambda *s: torch.randn(*s, dtype=torch.bfloat16) * 0.8)(D, 2 * Fh)), 'w_sp': _w(0.01 * (lambda *s: torch.randn(*s, dtype=torch.bfloat16) * 0.8)(S, S)), 'b_sp': _w(1.0 + 0.01 * (lambda *s: torch.randn(*s, dtype=torch.bfloat16) * 0.05)(S)), 'w_out': _w((lambda *s: torch.randn(*s, dtype=torch.bfloat16) * 0.05)(Fh, D))}
    _B_in = _B_setup()
    return {'A_x': _A_in['x'], 'A_wqkv': _A_in['wqkv'], 'A_wo': _A_in['wo'], 'B_x': _B_in['x'], 'B_w_in': _B_in['w_in'], 'B_w_sp': _B_in['w_sp'], 'B_b_sp': _B_in['b_sp'], 'B_w_out': _B_in['w_out'], 'gate_w': _w((lambda *s: torch.randn(*s, dtype=torch.bfloat16) * 0.05)(640) * 16.0)}

def reference(A_x, A_wqkv, A_wo, B_x, B_w_in, B_w_sp, B_b_sp, B_w_out, gate_w):

    def _A_ref(x, wqkv, wo):
        B, S, D = x.shape
        H = 32
        Dh = D // H
        W, dil = (8, 2)
        qkv = (lambda x, *d: x.permute(*d))((x @ wqkv).reshape(B, S, 3, H, Dh), 2, 0, 3, 1, 4)
        q, k, v = (qkv[0], qkv[1], qkv[2])
        scale = Dh ** (-0.5)
        pos = torch.arange(S)
        off = torch.arange(W) * dil
        idx = pos[:, None] - off[None, :]
        mask = idx >= 0
        idx_c = torch.where(mask, idx, 0).reshape(-1)
        kg = k[:, :, idx_c, :].reshape(B, H, S, W, Dh)
        vg = v[:, :, idx_c, :].reshape(B, H, S, W, Dh)
        logits = torch.einsum('bhsd,bhswd->bhsw', q, kg) * scale
        logits = torch.where(mask[None, None, :, :], logits, -1000000000.0)
        attn = _softmax(logits, axis=-1)
        o = torch.einsum('bhsw,bhswd->bhsd', attn, vg)
        return (lambda x, *d: x.permute(*d))(o, 0, 2, 1, 3).reshape(B, S, D) @ wo

    def _B_ref(x, w_in, w_sp, b_sp, w_out):
        B, S, D = x.shape
        F = w_in.shape[-1]
        Fh = F // 2
        z = _gelu(torch.einsum('bsd,df->bsf', x, w_in))
        z1 = z[..., :Fh].clone()
        z2 = _layernorm(z[..., Fh:], axis=-1)
        g = torch.einsum('ts,bsf->btf', w_sp, z2) + b_sp[None, :, None]
        return torch.einsum('bsf,fd->bsd', z1 * g, w_out)
    x = A_x
    g = _sigmoid((x * gate_w).sum(-1, keepdims=True))
    a = _A_ref(x, A_wqkv, A_wo)
    b = _B_ref(x, B_w_in, B_w_sp, B_b_sp, B_w_out)
    return g * a + (1 - g) * b
```

```python
import sys; sys.path.insert(0, "tools")
from asmlib import *

A3_OFF = 0x000000
A3_SIZE = 32 * 4 * 44 * 1024
G_OFF  = 0x580000
Z1_OFF = 0x600000
ZN_OFF = 0x900000
ST_OFF = 0xC00000
FL_OFF = 0xC80000
WP_OFF = 0xD00000
WP_CB = 44 * 5 * 1024
LDS_MAX = 163840

P_AX, P_WQKV, P_WO, P_BX, P_WIN, P_WSP, P_BSP, P_WOUT = 36, 38, 40, 42, 44, 46, 48, 50
P_GATE, P_OUT, P_DBG, P_WS = 52, 54, 56, 58
S_WAVE = 3

def prologue(A, ngrid=256):
    end = A.newlabel("Lexit")
    A(f"""
    s_cmp_ge_u32 s2, {ngrid}
    s_cbranch_scc1 {end}
    s_load_dwordx16 s[36:51], s[0:1], 0
    s_load_dwordx8 s[52:59], s[0:1], 64
    v_lshrrev_b32 v1, 6, v0
    v_and_b32 v0, 63, v0
    v_readfirstlane_b32 s{S_WAVE}, v1
    s_waitcnt lgkmcnt(0)
    """)
    return end

def make_srd(A, d, ptr, off, size, off_sgpr=None):
    A(f"s_add_u32 s{d}, s{ptr}, {off}" if off else f"s_mov_b32 s{d}, s{ptr}")
    A(f"s_addc_u32 s{d+1}, s{ptr+1}, 0" if off else f"s_mov_b32 s{d+1}, s{ptr+1}")
    if off_sgpr is not None:
        A(f"s_add_u32 s{d}, s{d}, s{off_sgpr}")
        A(f"s_addc_u32 s{d+1}, s{d+1}, 0")
    A(f"s_mov_b32 s{d+2}, {size}")
    A(f"s_mov_b32 s{d+3}, 0x00020000")

class VmQueue:
    def __init__(self): self.q = []
    def issue(self, tag, n=1): self.q += [tag] * n
    def wait_for(self, tags):
        last = -1
        for i, t in enumerate(self.q):
            if t in tags: last = i
        n = len(self.q) - 1 - last
        return n
    def retire(self, n):
        self.q = self.q[len(self.q) - n:] if n > 0 else []

PROF_OFF = 0x1000000
PROFILE = False
def set_profile(x):
    global PROFILE
    PROFILE = x
def stamp(A, i, cyc=False):
    if not PROFILE: return
    A(f"{'s_memtime' if cyc else 's_memrealtime'} s[{64+2*i}:{65+2*i}]\ns_waitcnt lgkmcnt(0)")
def dump_stamps(A, n):
    if not PROFILE: return
    A(f"s_lshl_b32 s60, s2, 3\ns_add_u32 s60, s60, s3\ns_lshl_b32 s60, s60, 6")
    A(f"s_add_u32 s96, s{P_WS}, {PROF_OFF}\ns_addc_u32 s97, s{P_WS+1}, 0\ns_mov_b32 s98, 0x100000\ns_mov_b32 s99, 0x00020000")
    A("v_mov_b32 v250, 0")
    for i in range(n):
        A(f"v_mov_b32 v251, s{64+2*i}\nbuffer_store_dword v251, v250, s[96:99], s60 offen offset:{4*i}")
    A("s_waitcnt vmcnt(0)")
```

```python
from common import *

FINE = 'fine' in sys.argv
NSUB = 20
def wg_map_p1(A):
    A("""
    s_and_b32 s6, s2, 7
    s_lshr_b32 s7, s2, 3
    s_and_b32 s4, s6, 2
    s_lshl_b32 s4, s4, 2
    s_lshr_b32 s5, s7, 2
    s_add_u32 s4, s4, s5
    s_and_b32 s5, s6, 1
    s_lshl_b32 s5, s5, 2
    s_and_b32 s7, s7, 3
    s_add_u32 s5, s5, s7
    s_lshr_b32 s6, s6, 2
    """)

def udiv_small(A, q, d, r, n, tmp_s, qmax):
    for sh in range(10, 24):
        m = -(-(1 << sh) // n)
        if all((x * m) >> sh == x // n for x in range(qmax)) and m * qmax < (1 << 32) and m < (1 << 24): break
    else: raise ValueError
    A(f"s_mov_b32 s{tmp_s}, {m}")
    A(f"v_mul_u32_u24 v{d}, s{tmp_s}, v{q}")
    A(f"v_lshrrev_b32 v{d}, {sh}, v{d}")
    A(f"v_mul_u32_u24 v{r}, {n}, v{d}")
    A(f"v_sub_u32 v{r}, v{q}, v{r}")

class Role:
    pass
QKV = Role(); QKV.name = "qkv"
QKV.W_SLOT = 18432; QKV.NW = 5; QKV.W_RING = 0
QKV.X_SLOT = 18432; QKV.NX = 3; QKV.X_RING = 92160; QKV.MT = 9
QKV.WI = 6
QKV.GATE = 147456
Z = Role(); Z.name = "z"
Z.W_SLOT = 12288; Z.NW = 6; Z.W_RING = 0
Z.X_SLOT = 16384; Z.NX = 3; Z.X_RING = 73728; Z.MT = 8
Z.WI = 4

def barrier_plan_loader(R, A, issue, Q, tags_needed, late=None):
    for u in range(NSUB):
        n = Q.wait_for(tags_needed(u))
        if FINE and u in (9, 10): stamp(A, 8 + 3 * (u - 9), cyc=True)
        A(f"s_waitcnt vmcnt({min(n, 63)})"); Q.retire(min(n, 63))
        if FINE and u in (9, 10): stamp(A, 9 + 3 * (u - 9), cyc=True)
        A("s_barrier")
        if FINE and u in (9, 10): stamp(A, 10 + 3 * (u - 9), cyc=True)
        if u == 0: stamp(A, 2)
        issue(u)
        if late and u == NSUB - 1: late(A)

def w_loader(A, R, late=None):
    SRD = 8
    A("s_sub_u32 s16, s3, 4")
    if R is QKV:
        make_srd(A, SRD, P_WQKV, 0, 640 * 3840)
        A("s_mul_i32 s17, s5, 160\ns_and_b32 s18, s5, 1\ns_lshl_b32 s18, s18, 5\ns_sub_u32 s17, s17, s18")
        rowc, rs_src = 36, 3840
    else:
        make_srd(A, SRD, P_WIN, 0, 640 * 3072)
        A("s_mul_i32 s17, s5, 192")
        rowc, rs_src = 24, 3072
    VO = 2
    for e in range(R.WI):
        A(f"s_mul_i32 s18, s16, {64 * R.WI}\ns_add_u32 s18, s18, {64 * e}\nv_add_u32 v12, s18, v0")
        udiv_small(A, 12, 13, 14, rowc, 19, 64 * R.WI * 3)
        if R is QKV:
            A("v_lshrrev_b32 v15, 2, v13\nv_and_b32 v15, 2, v15\nv_xor_b32 v14, v14, v15")
            udiv_small(A, 14, 15, 16, 12, 19, 36)
            A(f"s_movk_i32 s19, 1280\nv_mul_u32_u24 v15, s19, v15\nv_lshl_add_u32 v15, v16, 4, v15")
        else:
            A("""
            v_and_b32 v15, 2, v13
            v_lshrrev_b32 v16, 1, v13
            v_and_b32 v16, 4, v16
            v_or_b32 v15, v15, v16
            v_xor_b32 v14, v14, v15
            """)
            udiv_small(A, 14, 15, 16, 12, 19, 24)
            A(f"s_movk_i32 s19, 1536\nv_mul_u32_u24 v15, s19, v15\nv_lshl_add_u32 v15, v16, 4, v15")
        A(f"s_movk_i32 s19, {rs_src}\nv_mul_u32_u24 v13, s19, v13\nv_add3_u32 v{VO+e}, v13, v15, s17")
    A(f"s_mul_i32 s18, s16, {R.WI * 1024}")
    Q = VmQueue()
    def issue_w(u):
        A(f"s_mov_b32 s20, {u * 32 * rs_src}")
        for e in range(R.WI):
            A(f"s_add_u32 m0, s18, {R.W_RING + (u % R.NW) * R.W_SLOT + e * 1024}")
            A(f"buffer_load_dwordx4 v{VO+e}, s[{SRD}:{SRD+3}], s20 offen lds")
        Q.issue(("w", u), R.WI)
    for u in range(2): issue_w(u)
    stamp(A, 1)
    st = {"n": 2}
    def issue(u):
        lim = min(NSUB, max(R.NW, u - 1 + R.NW)); c = 0
        while st["n"] < lim and c < 2:
            issue_w(st["n"]); st["n"] += 1; c += 1
    barrier_plan_loader(R, A, issue, Q, lambda u: {("w", u)}, late)

PACK_LDS = 149504
def pack_issue(A):
    skip = A.newlabel("Lpk")
    A("s_sub_u32 s27, s3, 4\ns_lshl_b32 s27, s27, 8\ns_add_u32 s27, s27, s2")
    A(f"s_cmp_ge_u32 s27, 352\ns_cbranch_scc1 {skip}")
    A("s_and_b32 s32, s27, 7\ns_lshr_b32 s33, s27, 3")
    A(f"s_cmp_lt_u32 s33, 20\ns_cselect_b32 s28, s{P_WO}, s{P_WOUT}\ns_cselect_b32 s29, s{P_WO+1}, s{P_WOUT+1}\ns_cselect_b32 s34, 0, 20")
    A(f"s_mov_b32 s30, {768*1280}\ns_cselect_b32 s30, {640*1280}, s30\ns_mov_b32 s31, 0x00020000")
    A("s_sub_u32 s34, s33, s34\ns_mul_i32 s34, s34, 40960")
    A("s_mul_i32 s35, s32, 160\ns_and_b32 s32, s32, 1\ns_lshl_b32 s32, s32, 5\ns_sub_u32 s35, s35, s32\ns_add_u32 s34, s34, s35")
    A(f"s_sub_u32 s35, s3, 4\ns_mul_i32 s35, s35, 6144\ns_add_u32 s35, s35, {PACK_LDS}")
    for e in range(6):
        A(f"v_add_u32 v17, {64*e}, v0")
        udiv_small(A, 17, 18, 19, 12, 32, 384)
        A(f"s_movk_i32 s32, 1280\nv_mul_u32_u24 v18, s32, v18\nv_lshl_add_u32 v18, v19, 4, v18")
        A(f"s_add_u32 m0, s35, {e*1024}\nbuffer_load_dwordx4 v18, s[28:31], s34 offen lds")
    A.label(skip)

def pack_finish(A, sc_st="", flag=None):
    skip = A.newlabel("Lpf")
    A(f"s_cmp_ge_u32 s27, 352\ns_cbranch_scc1 {skip}")
    A("s_waitcnt vmcnt(0)")
    A("s_and_b32 s32, s27, 7\ns_lshr_b32 s33, s27, 3")
    A("""
    v_and_b32 v17, 15, v0
    v_lshrrev_b32 v18, 4, v0
    v_lshrrev_b32 v19, 2, v17
    v_and_b32 v20, 3, v17
    s_cmp_lt_u32 s33, 20
    s_cselect_b32 s34, 3, 2
    s_cselect_b32 s35, 4, 16
    v_lshlrev_b32 v18, s34, v18
    v_add_u32 v18, v18, v19
    v_mul_u32_u24 v18, 192, v18
    v_lshl_add_u32 v18, v20, 3, v18
    s_and_b32 s32, s27, 1
    s_lshl_b32 s32, s32, 5
    """)
    A(f"s_sub_u32 s34, s3, 4\ns_mul_i32 s34, s34, 6144\ns_add_u32 s34, s34, {PACK_LDS}\ns_add_u32 s34, s34, s32")
    A("v_add_u32 v18, s34, v18\ns_mul_i32 s35, s35, 192\nv_add_u32 v19, s35, v18")
    for nu in range(5):
        A(f"ds_read_b64_tr_b16 v[{24+4*nu}:{25+4*nu}], v18 offset:{nu*32}\nds_read_b64_tr_b16 v[{26+4*nu}:{27+4*nu}], v19 offset:{nu*32}")
    A("s_and_b32 s32, s27, 7\ns_mul_i32 s32, s32, 44\ns_add_u32 s32, s32, s33\ns_mul_i32 s32, s32, 5120")
    make_srd(A, 28, P_WS, WP_OFF, 8 * WP_CB)
    A("v_lshlrev_b32 v20, 4, v0\ns_waitcnt lgkmcnt(0)")
    for nu in range(5):
        A(f"s_add_u32 s33, s32, {nu*1024}\nbuffer_store_dwordx4 v[{24+4*nu}:{27+4*nu}], v20, s[28:31], s33 offen {sc_st}")
    A("s_waitcnt vmcnt(0)")
    if flag: flag()
    A.label(skip)

def x_loader(A, R, late=None):
    SRD = 8
    make_srd(A, SRD, P_AX, 0, 2048 * 1280)
    NI = 2 * R.MT
    A("""
    v_lshrrev_b32 v4, 3, v0
    v_and_b32 v5, 7, v0
    v_lshrrev_b32 v6, 1, v4
    v_xor_b32 v7, v5, v6
    s_movk_i32 s19, 1280
    v_mul_u32_u24 v8, s19, v4
    v_lshl_add_u32 v2, v7, 4, v8
    v_xor_b32 v7, 4, v7
    v_lshl_add_u32 v3, v7, 4, v8
    v_add_u32 v3, 10240, v3
    """)
    if R is QKV:
        A("s_lshl_b32 s17, s4, 7\ns_sub_u32 s17, s17, 16")
        A("""
        v_add_u32 v11, s17, v4
        v_max_i32 v11, 0, v11
        v_mul_u32_u24 v11, s19, v11
        v_xor_b32 v7, v5, v6
        v_lshl_add_u32 v9, v7, 4, v11
        v_add_u32 v11, s17, v4
        v_add_u32 v11, 8, v11
        v_max_i32 v11, 0, v11
        v_mul_u32_u24 v11, s19, v11
        v_xor_b32 v7, 4, v7
        v_lshl_add_u32 v10, v7, 4, v11
        """)
        A("s_mul_i32 s17, s17, 1280")
        make_srd(A, 12, P_GATE, 0, 1280)
        A(f"v_lshlrev_b32 v12, 4, v0\ns_mov_b32 m0, {R.GATE}\ns_nop 0\nbuffer_load_dwordx4 v12, s[12:15], 0 offen lds\nbuffer_load_dwordx4 v12, s[12:15], 0 offen offset:1024 lds")
    else:
        A("s_lshl_b32 s17, s4, 7\ns_mul_i32 s17, s17, 1280")
    Q = VmQueue()
    if R is QKV: Q.issue(("g", 0), 2)
    def issue_x(vs, e0, e1):
        for e in range(e0, e1):
            A(f"s_add_u32 m0, s21, {e * 1024}" if False else f"s_mov_b32 m0, {R.X_RING + (vs % R.NX) * R.X_SLOT + e * 1024}")
            if R is QKV and e < 2:
                A(f"s_mov_b32 s20, {vs * 128}")
                A(f"buffer_load_dwordx4 v{9+e}, s[{SRD}:{SRD+3}], s20 offen lds")
            else:
                A(f"s_add_u32 s20, s17, {(e >> 1) * 16 * 1280 + vs * 128}")
                A(f"buffer_load_dwordx4 v{2 + (e & 1)}, s[{SRD}:{SRD+3}], s20 offen lds")
        Q.issue(("x", vs), e1 - e0)
    issue_x(0, 0, NI)
    stamp(A, 1)
    half = NI // 2
    plan = {}
    plan[0] = [(1, 0, NI)]
    plan[1] = [(2, 0, NI)]
    for vs in range(3, 10):
        u = 2 * (vs - 3) + 3
        plan.setdefault(u, []).append((vs, 0, half))
        plan.setdefault(u + 1, []).append((vs, half, NI))
    def issue(u):
        for (vs, e0, e1) in plan.get(u, []): issue_x(vs, e0, e1)
    need = lambda u: ({("x", u >> 1), ("g", 0)})
    barrier_plan_loader(R, A, issue, Q, need, late)

class DsQ:
    def __init__(self): self.q = []
    def issue(self, tag): self.q.append(tag)
    def wait(self, tags):
        last = -1
        for i, t in enumerate(self.q):
            if t in tags: last = i
        n = len(self.q) - 1 - last
        if last < 0: return None
        self.q = self.q[last + 1:]
        return n

Q_ACC = 16; Q_WF = [160, 176]; Q_XF = [192, 196, 200]
Q_VXA = [204, 205]; Q_VWE = 206; Q_VWO = 207; Q_VXC = [208, 209]; Q_VWEC = 210; Q_VWOC = 211; Q_VG = 212

def qkv_consumer(A, w3):
    R = QKV
    A("v_and_b32 v1, 15, v0\nv_lshrrev_b32 v2, 4, v0")
    A(f"""
    v_lshrrev_b32 v3, 1, v1
    v_xor_b32 v3, v3, v2
    v_lshlrev_b32 v3, 4, v3
    v_lshl_add_u32 v{Q_VXC[0]}, v1, 7, v3
    v_xor_b32 v{Q_VXC[1]}, 64, v{Q_VXC[0]}
    """)
    A(f"""
    v_lshrrev_b32 v3, 2, v1
    v_lshl_add_u32 v3, v2, 3, v3
    s_movk_i32 s19, 576
    v_mul_u32_u24 v3, s19, v3
    v_and_b32 v4, 3, v1
    v_lshl_add_u32 v3, v4, 3, v3
    s_and_b32 s20, s5, 1
    s_lshl_b32 s21, s20, 5
    v_add_u32 v3, s21, v3
    v_and_b32 v4, 1, v2
    v_lshlrev_b32 v4, 5, v4
    v_add_u32 v5, v3, v4
    v_sub_u32 v3, v3, v4
    s_cmp_eq_u32 s20, 0
    s_cselect_b64 vcc, -1, 0
    v_cndmask_b32 v{Q_VWEC}, v3, v5, vcc
    v_cndmask_b32 v{Q_VWOC}, v5, v3, vcc
    """)
    return

def tile_info(T):
    seg, t = T // 5, T % 5
    return (6 * seg + t) * 32, t & 1

def qkv_main(A, w, mid=None):
    R = QKV
    tiles = [4 * w + k for k in range(4)]
    gate = (w == 3)
    for i in range(144): A(f"v_mov_b32 v{Q_ACC+i}, 0")
    if gate: A(f"v_lshlrev_b32 v{Q_VG}, 4, v2\nv_add_u32 v{Q_VG}, {R.GATE}, v{Q_VG}")
    D = DsQ()
    def set_w():
        A(f"v_add_u32 v{Q_VWE}, s22, v{Q_VWEC}\nv_add_u32 v{Q_VWO}, s22, v{Q_VWOC}")
    def set_x():
        A(f"v_add_u32 v{Q_VXA[0]}, s23, v{Q_VXC[0]}\nv_add_u32 v{Q_VXA[1]}, s23, v{Q_VXC[1]}")
    def rd_w(buf, k, tag):
        d = Q_WF[buf] + 4 * k
        if gate and k == 3:
            A(f"ds_read_b128 v[{d}:{d+3}], v{Q_VG}"); D.issue(tag)
            A(f"v_add_u32 v{Q_VG}, 64, v{Q_VG}")
            return
        off, par = tile_info(tiles[k])
        a = Q_VWO if par else Q_VWE
        A(f"ds_read_b64_tr_b16 v[{d}:{d+1}], v{a} offset:{off}"); D.issue(tag)
        A(f"ds_read_b64_tr_b16 v[{d+2}:{d+3}], v{a} offset:{off + 4*576}"); D.issue(tag)
    def rd_x(m, kk, tag):
        d = Q_XF[m % 3]
        A(f"ds_read_b128 v[{d}:{d+3}], v{Q_VXA[kk]} offset:{m * 2048}"); D.issue(tag)
    def adv_w(): A(f"s_add_u32 s22, s22, {R.W_SLOT}\ns_cmp_eq_u32 s22, {R.W_RING + R.NW*R.W_SLOT}\ns_cselect_b32 s22, {R.W_RING}, s22")
    def adv_x(): A(f"s_add_u32 s23, s23, {R.X_SLOT}\ns_cmp_eq_u32 s23, {R.X_RING + R.NX*R.X_SLOT}\ns_cselect_b32 s23, {R.X_RING}, s23")
    A(f"s_mov_b32 s22, {R.W_RING}\ns_mov_b32 s23, {R.X_RING}\ns_mov_b32 s24, 0")
    set_w(); set_x()
    stamp(A, 1)
    A("s_barrier")
    stamp(A, 2)
    for k in range(4): rd_w(0, k, ("w", 0, k))
    rd_x(0, 0, ("x", 0, 0)); rd_x(1, 0, ("x", 0, 1))
    def substage(u, kk, has_next, sim):
        for m in range(9):
            for k in range(4):
                need = {("x", sim, m), ("w", sim, k)}
                n = D.wait(need)
                if n is not None: A(f"s_waitcnt lgkmcnt({min(n, 15)})")
                d = Q_ACC + (k * 9 + m) * 4; wf = Q_WF[kk] + 4 * k; xf = Q_XF[m % 3]
                A(f"v_mfma_f32_16x16x32_bf16 v[{d}:{d+3}], v[{wf}:{wf+3}], v[{xf}:{xf+3}], v[{d}:{d+3}]")
                if k == 0:
                    if m + 2 < 9: rd_x(m + 2, kk, ("x", sim, m + 2))
                    elif has_next:
                        rd_x(m + 2 - 9, kk ^ 1, ("x", sim + 1, m + 2 - 9))
                if k == 1 and has_next and 3 <= m <= 6:
                    rd_w(kk ^ 1, m - 3, ("w", sim + 1, m - 3))
            if m == 2 and has_next:
                adv_w(); set_w()
                if FINE and sim < 2:
                    l1 = A.newlabel("Lf"); A(f"s_cmp_lg_u32 s24, 4\ns_cbranch_scc1 {l1}"); stamp(A, 8 + 3 * sim, cyc=True); A.label(l1)
                A("s_barrier")
                if FINE and sim < 2:
                    l1 = A.newlabel("Lf"); A(f"s_cmp_lg_u32 s24, 4\ns_cbranch_scc1 {l1}"); stamp(A, 9 + 3 * sim, cyc=True); A.label(l1)
            if m == 6 and has_next and kk == 1:
                adv_x(); set_x()
    loop = A.newlabel("Lqkv"); done = A.newlabel("Lqkvd")
    A.label(loop)
    if mid:
        lm = A.newlabel("Lmid"); A(f"s_cmp_lg_u32 s24, 3\ns_cbranch_scc1 {lm}"); mid(A); A.label(lm)
    substage(0, 0, True, 0)
    q_mid = list(D.q)
    substage(1, 1, True, 1)
    ren = lambda q, d: [(t[0], t[1] - d, t[2]) for t in q]
    A("s_add_u32 s24, s24, 1\ns_cmp_lt_u32 s24, 9")
    A(f"s_cbranch_scc1 {loop}")
    D2 = list(D.q)
    substage(18, 0, True, 2)
    substage(19, 1, False, 3)
    return

def qkv_epilogue_store(A, w):
    A(f"s_movk_i32 s19, 488\nv_mul_u32_u24 v3, s19, v1\nv_lshl_add_u32 v3, v2, 3, v3")
    ntile = 3 if w == 3 else 4
    T = 160
    for k in range(ntile):
        Tg = 4 * w + k
        for m in range(9):
            if Tg < 5 and m == 0: continue
            d = Q_ACC + (k * 9 + m) * 4
            o = T + 2 * ((k * 9 + m) % 8)
            A(f"v_cvt_pk_bf16_f32 v{o}, v{d}, v{d+1}\nv_cvt_pk_bf16_f32 v{o+1}, v{d+2}, v{d+3}")
            A(f"ds_write_b64 v3, v[{o}:{o+1}] offset:{16*m*488 + 32*Tg}")
    if w == 3:
        skip = A.newlabel("Lg")
        A(f"s_cmp_lg_u32 s5, 0\ns_cbranch_scc1 {skip}")
        A("s_lshl_b32 s18, s4, 9")
        make_srd(A, 8, P_WS, G_OFF, 512, off_sgpr=18)
        A("v_lshlrev_b32 v4, 2, v1\ns_mov_b64 s[12:13], exec\ns_mov_b64 exec, 0xffff")
        for m in range(1, 9):
            d = Q_ACC + (3 * 9 + m) * 4
            A(f"v_mul_f32 v{d}, 0xbfb8aa3b, v{d}\nv_exp_f32 v{d}, v{d}\nv_add_f32 v{d}, 1.0, v{d}\nv_rcp_f32 v{d}, v{d}")
            A(f"buffer_store_dword v{d}, v4, s[8:11], 0 offen offset:{(m-1)*64} SC_ST")
        A("s_mov_b64 exec, s[12:13]")
        A.label(skip)

def attention(A, sc_st=""):
    OST = 73728
    RS = 488
    A(f"""
    v_and_b32 v10, 3, v0
    v_lshrrev_b32 v11, 2, v0
    v_and_b32 v12, 3, v11
    v_lshrrev_b32 v13, 4, v0
    v_and_b32 v14, 1, v13
    v_lshrrev_b32 v15, 1, v13
    s_lshl_b32 s16, s3, 4
    """)
    A(f"""
    v_lshlrev_b32 v16, 3, v15
    v_add_u32 v16, v16, v14
    v_lshl_add_u32 v17, v10, 1, v16
    v_add_u32 v17, s16, v17
    s_movk_i32 s19, {RS}
    v_mul_u32_u24 v17, s19, v17
    v_mul_u32_u24 v18, 40, v12
    v_add_u32 v20, v17, v18
    """)
    A(f"""
    v_lshl_add_u32 v17, v12, 1, v16
    v_add_u32 v17, s16, v17
    v_mul_u32_u24 v17, s19, v17
    v_mul_u32_u24 v18, 40, v10
    v_add3_u32 v21, v17, v18, 0
    """)
    QF = 24
    KF = 34
    VF = 64
    S = 96
    P = 108
    PK = 120
    O = 128
    for dl in range(5): A(f"ds_read_b64 v[{QF+2*dl}:{QF+2*dl+1}], v20 offset:{16*RS + 8*dl}")
    for b in range(3):
        for dl in range(5): A(f"ds_read_b64 v[{KF+2*(b*5+dl)}:{KF+2*(b*5+dl)+1}], v20 offset:{b*8*RS + 160 + 8*dl}")
    A("s_waitcnt lgkmcnt(0)")
    for b in range(3):
        for dl in range(5): A(f"ds_read_b64_tr_b16 v[{VF+2*(b*5+dl)}:{VF+2*(b*5+dl)+1}], v21 offset:{b*8*RS + 320 + 8*dl}")
    for dl in range(5):
        for b in range(3):
            c = f"v[{S+4*b}:{S+4*b+3}]" if dl else "0"
            A(f"v_mfma_f32_4x4x4_16b_bf16 v[{S+4*b}:{S+4*b+3}], v[{KF+2*(b*5+dl)}:{KF+2*(b*5+dl)+1}], v[{QF+2*dl}:{QF+2*dl+1}], {c}")
    A(f"v_cmp_eq_u32 s[20:21], 0, v10\nv_cmp_ge_u32 s[22:23], 1, v10\nv_cmp_ge_u32 s[24:25], 2, v10")
    L = [S+4, S+5, S+6, S+7, S+8, 94, 95, 19]
    A(f"v_cndmask_b32 v94, v{S+9}, v{S+1}, s[20:21]\nv_cndmask_b32 v95, v{S+10}, v{S+2}, s[22:23]\nv_cndmask_b32 v19, v{S+11}, v{S+3}, s[24:25]")
    nomask = A.newlabel("Lnm")
    A(f"s_cmp_lg_u32 s4, 0\ns_cbranch_scc1 {nomask}\ns_cmp_gt_u32 s3, 0\ns_cbranch_scc1 {nomask}")
    A("v_lshlrev_b32 v22, 2, v15\nv_sub_u32 v22, 8, v22\nv_mov_b32 v23, 0xff800000")
    for idx, kap in enumerate([4, 5, 6, 7, 8]):
        A(f"v_cmp_gt_u32 vcc, v22, {kap}\nv_cndmask_b32 v{L[idx]}, v{L[idx]}, v23, vcc")
    for (reg, lo, hi, sm) in ((94, 1, 9, 20), (95, 2, 10, 22), (19, 3, 11, 24)):
        A(f"v_cndmask_b32 v9, {hi}, {lo}, s[{sm}:{sm+1}]\nv_cmp_gt_u32 vcc, v22, v9\nv_cndmask_b32 v{reg}, v{reg}, v23, vcc")
    A.label(nomask)
    import math
    cst = math.log2(math.e) / math.sqrt(20.0)
    import struct
    cbits = struct.unpack("<I", struct.pack("<f", cst))[0]
    A(f"v_max3_f32 v8, v{L[0]}, v{L[1]}, v{L[2]}\nv_max3_f32 v8, v8, v{L[3]}, v{L[4]}\nv_max3_f32 v8, v8, v{L[5]}, v{L[6]}\nv_max_f32 v8, v8, v{L[7]}")
    A(f"s_mov_b32 s26, {cbits:#x}\nv_mul_f32 v8, s26, v8")
    for i in range(8): A(f"v_fma_f32 v{L[i]}, v{L[i]}, s26, -v8")
    for i in range(8): A(f"v_exp_f32 v{L[i]}, v{L[i]}")
    A(f"v_add_f32 v8, v{L[0]}, v{L[1]}\nv_add_f32 v9, v{L[2]}, v{L[3]}\nv_add_f32 v8, v8, v{L[4]}\nv_add_f32 v9, v9, v{L[5]}\nv_add_f32 v8, v8, v{L[6]}\nv_add_f32 v9, v9, v{L[7]}\nv_add_f32 v8, v8, v9\nv_rcp_f32 v8, v8")
    for i in range(8): A(f"v_mul_f32 v{L[i]}, v{L[i]}, v8")
    A(f"v_mov_b32 v{P}, 0")
    A(f"v_cndmask_b32 v{P+1}, 0, v94, s[20:21]\nv_cndmask_b32 v{P+9}, v94, 0, s[20:21]")
    A(f"v_cndmask_b32 v{P+2}, 0, v95, s[22:23]\nv_cndmask_b32 v{P+10}, v95, 0, s[22:23]")
    A(f"v_cndmask_b32 v{P+3}, 0, v19, s[24:25]\nv_cndmask_b32 v{P+11}, v19, 0, s[24:25]")
    src = {0: P, 1: P+1, 2: P+2, 3: P+3, 4: L[0], 5: L[1], 6: L[2], 7: L[3], 8: L[4], 9: P+9, 10: P+10, 11: P+11}
    for b in range(3):
        A(f"v_cvt_pk_bf16_f32 v{PK+2*b}, v{src[4*b]}, v{src[4*b+1]}\nv_cvt_pk_bf16_f32 v{PK+2*b+1}, v{src[4*b+2]}, v{src[4*b+3]}")
    A("s_waitcnt lgkmcnt(0)")
    for b in range(3):
        for dl in range(5):
            c = f"v[{O+4*dl}:{O+4*dl+3}]" if b else "0"
            A(f"v_mfma_f32_4x4x4_16b_bf16 v[{O+4*dl}:{O+4*dl+3}], v[{VF+2*(b*5+dl)}:{VF+2*(b*5+dl)+1}], v[{PK+2*b}:{PK+2*b+1}], {c}")
    A(f"""
    v_lshl_add_u32 v17, v10, 1, v16
    v_mul_u32_u24 v17, 176, v17
    v_mul_u32_u24 v18, 40, v12
    s_mul_i32 s18, s3, 2816
    s_add_u32 s18, s18, {OST}
    v_add3_u32 v17, v17, v18, s18
    """)
    for dl in range(5):
        A(f"v_cvt_pk_bf16_f32 v{PK+6}, v{O+4*dl}, v{O+4*dl+1}\nv_cvt_pk_bf16_f32 v{PK+7}, v{O+4*dl+2}, v{O+4*dl+3}")
        A(f"ds_write_b64 v17, v[{PK+6}:{PK+7}] offset:{8*dl}")
    A(f"""
    v_and_b32 v1, 15, v0
    v_lshrrev_b32 v2, 4, v0
    v_mul_u32_u24 v17, 176, v1
    v_add_u32 v17, s18, v17
    s_and_b32 s20, s5, 1
    s_lshl_b32 s21, s20, 1
    v_subrev_u32 v18, s21, v2
    """)
    A(f"s_lshl_b32 s22, s4, 3\ns_add_u32 s22, s22, s3\ns_mul_i32 s22, s22, {44*1024}\ns_mul_i32 s23, s5, 10\ns_lshr_b32 s23, s23, 2\ns_lshl_b32 s23, s23, 10\ns_add_u32 s22, s22, s23")
    make_srd(A, 8, P_WS, A3_OFF, A3_SIZE)
    A("v_lshlrev_b32 v19, 4, v0\ns_waitcnt lgkmcnt(0)")
    A("s_mov_b64 s[12:13], exec")
    for n in range(3):
        A(f"v_add_u32 v22, {4*n}, v18\nv_cmp_gt_u32 vcc, 10, v22\nv_lshl_add_u32 v23, v22, 4, v17")
        A(f"s_and_b64 exec, s[12:13], vcc")
        A(f"ds_read_b128 v[{O+4*n}:{O+4*n+3}], v23")
        A(f"s_waitcnt lgkmcnt(0)")
        A(f"buffer_store_dwordx4 v[{O+4*n}:{O+4*n+3}], v19, s[8:11], s22 offen offset:{n*1024} {sc_st}")
        A("s_mov_b64 exec, s[12:13]")

Z_ACC1 = 16; Z_ACC2 = 64
Z_WF = [112, 136]; Z_XF = [160, 176]
Z_VXA = [192, 193]; Z_VXC = [194, 195]; Z_VW = [196, 197, 198, 199, 200, 201]; Z_VWC = [202, 203, 204, 205, 206, 207]

def z_consumer(A, mid=None):
    R = Z
    A("v_and_b32 v1, 15, v0\nv_lshrrev_b32 v2, 4, v0\ns_lshr_b32 s16, s3, 1\ns_and_b32 s17, s3, 1")
    A(f"""
    v_lshrrev_b32 v3, 1, v1
    v_xor_b32 v3, v3, v2
    v_lshlrev_b32 v3, 4, v3
    v_lshl_add_u32 v{Z_VXC[0]}, v1, 7, v3
    s_lshl_b32 s18, s16, 13
    v_add_u32 v{Z_VXC[0]}, s18, v{Z_VXC[0]}
    v_xor_b32 v{Z_VXC[1]}, 64, v{Z_VXC[0]}
    """)
    A(f"""
    v_lshrrev_b32 v3, 2, v1
    v_lshl_add_u32 v4, v2, 3, v3
    s_movk_i32 s19, 384
    v_mul_u32_u24 v4, s19, v4
    v_and_b32 v5, 3, v1
    v_lshl_add_u32 v4, v5, 3, v4
    v_lshrrev_b32 v3, 1, v3
    v_and_b32 v5, 1, v2
    v_lshl_or_b32 v3, v5, 1, v3
    s_mul_i32 s18, s17, 3
    """)
    for k in range(6):
        base = k if k < 3 else 6 + (k - 3)
        A(f"s_add_u32 s19, s18, {base}\nv_xor_b32 v5, s19, v3\nv_lshl_add_u32 v{Z_VWC[k]}, v5, 5, v4")
    for i in range(96): A(f"v_mov_b32 v{Z_ACC1+i}, 0")
    D = DsQ()
    def set_w():
        for k in range(6): A(f"v_add_u32 v{Z_VW[k]}, s22, v{Z_VWC[k]}")
    def set_x():
        A(f"v_add_u32 v{Z_VXA[0]}, s23, v{Z_VXC[0]}\nv_add_u32 v{Z_VXA[1]}, s23, v{Z_VXC[1]}")
    def rd_w(buf, k, tag):
        d = Z_WF[buf] + 4 * k
        A(f"ds_read_b64_tr_b16 v[{d}:{d+1}], v{Z_VW[k]}"); D.issue(tag)
        A(f"ds_read_b64_tr_b16 v[{d+2}:{d+3}], v{Z_VW[k]} offset:{4*384}"); D.issue(tag)
    def rd_x(buf, m, kk, tag):
        d = Z_XF[buf] + 4 * m
        A(f"ds_read_b128 v[{d}:{d+3}], v{Z_VXA[kk]} offset:{m * 2048}"); D.issue(tag)
    def adv_w(): A(f"s_add_u32 s22, s22, {R.W_SLOT}\ns_cmp_eq_u32 s22, {R.W_RING + R.NW*R.W_SLOT}\ns_cselect_b32 s22, {R.W_RING}, s22")
    def adv_x(): A(f"s_add_u32 s23, s23, {R.X_SLOT}\ns_cmp_eq_u32 s23, {R.X_RING + R.NX*R.X_SLOT}\ns_cselect_b32 s23, {R.X_RING}, s23")
    A(f"s_mov_b32 s22, {R.W_RING}\ns_mov_b32 s23, {R.X_RING}\ns_mov_b32 s24, 0")
    set_w(); set_x()
    stamp(A, 1)
    A("s_barrier")
    stamp(A, 2)
    ORDER = [("x", 0), ("w", 3), ("w", 4), ("w", 5), ("w", 0), ("w", 1), ("w", 2), ("x", 1), ("x", 2), ("x", 3)]
    for (t, idx) in ORDER:
        if t == "x": rd_x(0, idx, 0, ("x", 0, idx))
        else: rd_w(0, idx, ("w", 0, idx))
    def substage(kk, has_next, sim):
        pend = list(ORDER) if has_next else []
        cnt = 0
        for m in range(4):
            for k in (3, 4, 5, 0, 1, 2):
                n = D.wait({("x", sim, m), ("w", sim, k)})
                if n is not None: A(f"s_waitcnt lgkmcnt({min(n, 15)})")
                wf = Z_WF[kk] + 4 * k; xf = Z_XF[kk] + 4 * m
                if k < 3:
                    d = Z_ACC1 + (k * 4 + m) * 4
                    A(f"v_mfma_f32_16x16x32_bf16 v[{d}:{d+3}], v[{wf}:{wf+3}], v[{xf}:{xf+3}], v[{d}:{d+3}]")
                else:
                    d = Z_ACC2 + (m * 3 + (k - 3)) * 4
                    A(f"v_mfma_f32_16x16x32_bf16 v[{d}:{d+3}], v[{xf}:{xf+3}], v[{wf}:{wf+3}], v[{d}:{d+3}]")
                cnt += 1
                if cnt == 6 and has_next:
                    adv_w(); set_w()
                    if kk == 1: adv_x(); set_x()
                    if FINE and sim < 2:
                        l1 = A.newlabel("Lf"); A(f"s_cmp_lg_u32 s24, 4\ns_cbranch_scc1 {l1}"); stamp(A, 8 + 3 * sim, cyc=True); A.label(l1)
                    A("s_barrier")
                    if FINE and sim < 2:
                        l1 = A.newlabel("Lf"); A(f"s_cmp_lg_u32 s24, 4\ns_cbranch_scc1 {l1}"); stamp(A, 9 + 3 * sim, cyc=True); A.label(l1)
                if cnt >= 6 and pend:
                    t, idx = pend.pop(0)
                    if t == "x": rd_x(kk ^ 1, idx, kk ^ 1, ("x", sim + 1, idx))
                    else: rd_w(kk ^ 1, idx, ("w", sim + 1, idx))
    loop = A.newlabel("Lz")
    A.label(loop)
    if mid:
        lm = A.newlabel("Lmid"); A(f"s_cmp_lg_u32 s24, 3\ns_cbranch_scc1 {lm}"); mid(A); A.label(lm)
    substage(0, True, 0)
    substage(1, True, 1)
    A("s_add_u32 s24, s24, 1\ns_cmp_lt_u32 s24, 9")
    A(f"s_cbranch_scc1 {loop}")
    substage(0, True, 2)
    substage(1, False, 3)

GELU_C1 = -2.0 * 1.4426950408889634 * 0.7978845608028654
GELU_C2 = GELU_C1 * 0.044715
import struct
def fbits(x): return struct.unpack("<I", struct.pack("<f", x))[0]

def gelu_regs(A, regs0, n, C1, C2, T):
    for i in range(0, n, 4):
        for h in (0, 2):
            x = regs0 + i + h; t = T + 2 * h
            A(f"v_pk_mul_f32 v[{t}:{t+1}], v[{x}:{x+1}], v[{x}:{x+1}]")
        for h in (0, 2):
            t = T + 2 * h
            A(f"v_pk_fma_f32 v[{t}:{t+1}], v[{t}:{t+1}], v[{C2}:{C2+1}], v[{C1}:{C1+1}]")
        for h in (0, 2):
            x = regs0 + i + h; t = T + 2 * h
            A(f"v_pk_mul_f32 v[{t}:{t+1}], v[{t}:{t+1}], v[{x}:{x+1}]")
        for h in (0, 2):
            t = T + 2 * h
            A(f"v_exp_f32 v{t}, v{t}\nv_exp_f32 v{t+1}, v{t+1}")
        for h in (0, 2):
            t = T + 2 * h
            A(f"v_pk_add_f32 v[{t}:{t+1}], v[{t}:{t+1}], 1.0 op_sel_hi:[1,0]")
        for h in (0, 2):
            t = T + 2 * h
            A(f"v_rcp_f32 v{t}, v{t}\nv_rcp_f32 v{t+1}, v{t+1}")
        for h in (0, 2):
            x = regs0 + i + h; t = T + 2 * h
            A(f"v_pk_mul_f32 v[{x}:{x+1}], v[{x}:{x+1}], v[{t}:{t+1}]")

Z_PART = 0
Z_STAT = 2048

def z_epilogue_a(A):
    C1, C2, T = 112, 114, 116
    A(f"v_mov_b32 v{C1}, {fbits(GELU_C1):#x}\nv_mov_b32 v{C1+1}, {fbits(GELU_C1):#x}\nv_mov_b32 v{C2}, {fbits(GELU_C2):#x}\nv_mov_b32 v{C2+1}, {fbits(GELU_C2):#x}")
    gelu_regs(A, Z_ACC2, 48, C1, C2, T)
    SU = 128; SQ = 144
    for m in range(4):
        for r in range(4):
            a, b, c = [Z_ACC2 + (m * 3 + t) * 4 + r for t in range(3)]
            s_, q_ = SU + m * 4 + r, SQ + m * 4 + r
            A(f"v_add_f32 v{s_}, v{a}, v{b}\nv_mul_f32 v{q_}, v{a}, v{a}\nv_add_f32 v{s_}, v{s_}, v{c}\nv_fmac_f32 v{q_}, v{b}, v{b}\nv_fmac_f32 v{q_}, v{c}, v{c}")
    for sh in (8, 4, 2, 1):
        for i in range(32):
            A(f"v_add_f32_dpp v{SU+i}, v{SU+i}, v{SU+i} row_ror:{sh} row_mask:0xf bank_mask:0xf")
    A(f"""
    s_lshl_b32 s18, s17, 10
    s_lshl_b32 s19, s16, 9
    s_add_u32 s18, s18, s19
    s_add_u32 s18, s18, {Z_PART}
    v_lshlrev_b32 v3, 5, v2
    v_add_u32 v3, s18, v3
    s_mov_b64 s[12:13], exec
    s_mov_b32 s20, 0x00010001
    s_mov_b32 s21, 0x00010001
    s_mov_b64 exec, s[20:21]
    """)
    for m in range(4):
        for r in range(0, 4, 2):
            t = T
            A(f"v_mov_b32 v{t}, v{SU+m*4+r}\nv_mov_b32 v{t+1}, v{SQ+m*4+r}\nv_mov_b32 v{t+2}, v{SU+m*4+r+1}\nv_mov_b32 v{t+3}, v{SQ+m*4+r+1}")
            A(f"ds_write_b128 v3, v[{t}:{t+3}] offset:{m*128 + r*8}")
            T2 = T; T = 120 if T == 116 else 116
    A("s_mov_b64 exec, s[12:13]\ns_waitcnt lgkmcnt(0)")

def z_epilogue_b(A, sc_st=""):
    C1, C2, T = 112, 114, 116
    gelu_regs(A, Z_ACC1, 48, C1, C2, T)
    A(f"s_lshl_b32 s18, s4, 1\ns_add_u32 s18, s18, s16\ns_lshl_b32 s18, s18, 3\ns_add_u32 s18, s18, s5\ns_lshl_b32 s18, s18, 2\ns_lshl_b32 s19, s17, 1\ns_add_u32 s18, s18, s19\ns_mul_i32 s18, s18, 3072")
    make_srd(A, 8, P_WS, Z1_OFF, 6144, off_sgpr=18)
    A("v_lshlrev_b32 v4, 4, v0")
    for wt in range(2):
        for t in range(3):
            o = 120 + 4 * ((wt * 3 + t) % 2)
            for j in range(2):
                d = Z_ACC1 + (t * 4 + 2 * wt + j) * 4
                A(f"v_cvt_pk_bf16_f32 v{o+2*j}, v{d}, v{d+1}\nv_cvt_pk_bf16_f32 v{o+2*j+1}, v{d+2}, v{d+3}")
            A(f"s_mov_b32 s19, {wt*3072 + t*1024}\nbuffer_store_dwordx4 v[{o}:{o+3}], v4, s[8:11], s19 offen {sc_st}")

def z_epilogue_c(A, sc_st=""):
    ST = 128
    A(f"s_lshl_b32 s19, s16, 9\ns_add_u32 s19, s19, {Z_STAT}\nv_lshlrev_b32 v3, 5, v2\nv_add_u32 v3, s19, v3")
    for m in range(4):
        A(f"ds_read_b128 v[{ST+8*m}:{ST+8*m+3}], v3 offset:{m*128}\nds_read_b128 v[{ST+8*m+4}:{ST+8*m+7}], v3 offset:{m*128+16}")
    A("s_waitcnt lgkmcnt(0)")
    A(f"s_mul_i32 s18, s5, 393216\ns_lshl_b32 s19, s4, 2\ns_lshl_b32 s20, s16, 1\ns_add_u32 s19, s19, s20\ns_mul_i32 s19, s19, 6144\ns_add_u32 s18, s18, s19\ns_mul_i32 s19, s17, 3072\ns_add_u32 s18, s18, s19")
    make_srd(A, 8, P_WS, ZN_OFF, 6144 + 3072, off_sgpr=18)
    A("v_lshlrev_b32 v4, 4, v0")
    for P in range(2):
        for t in range(3):
            o = 160 + 4 * ((P * 3 + t) % 3)
            for j in range(2):
                m = 2 * P + j
                d = Z_ACC2 + (m * 3 + t) * 4
                for r in range(4):
                    A(f"v_fma_f32 v{d+r}, v{d+r}, v{ST+8*m+2*r}, v{ST+8*m+2*r+1}")
                A(f"v_cvt_pk_bf16_f32 v{o+2*j}, v{d}, v{d+1}\nv_cvt_pk_bf16_f32 v{o+2*j+1}, v{d+2}, v{d+3}")
            A(f"v_permlane32_swap_b32 v{o}, v{o+2}\nv_permlane32_swap_b32 v{o+1}, v{o+3}")
            A(f"v_permlane16_swap_b32 v{o}, v{o+2}\nv_permlane16_swap_b32 v{o+1}, v{o+3}")
            A(f"s_mov_b32 s19, {P*6144 + t*1024}\nbuffer_store_dwordx4 v[{o}:{o+3}], v4, s[8:11], s19 offen {sc_st}")

def get_nonce(A, sreg):
    make_srd(A, 28, P_DBG, 0, 256)
    lp = A.newlabel("Lnonce")
    A("v_mov_b32 v6, 0\ns_mov_b32 s32, 0")
    A.label(lp)
    A(f"buffer_load_dword v7, v6, s[28:31], 0 offen sc1\ns_waitcnt vmcnt(0)\nv_readfirstlane_b32 s{sreg}, v7")
    A(f"s_add_u32 s32, s32, 1\ns_cmp_gt_u32 s32, {1<<20}")
    out = A.newlabel("Lnonce_o")
    A(f"s_cbranch_scc1 {out}")
    A(f"s_cmp_eq_u32 s{sreg}, 0\ns_cbranch_scc1 {lp}")
    A.label(out)

def publish_nonce(A):
    make_srd(A, 28, P_DBG, 0, 256)
    A("s_memrealtime s[32:33]\ns_waitcnt lgkmcnt(0)\ns_or_b32 s32, s32, 1\nv_mov_b32 v6, 0\nv_mov_b32 v7, s32\nbuffer_store_dword v7, v6, s[28:31], 0 offen sc1")

def z_stats_exchange(A, NONCE):
    A(f"s_sub_u32 s16, s3, 4\ns_lshl_b32 s17, s16, 9\nv_lshlrev_b32 v2, 3, v0\nv_add_u32 v2, s17, v2")
    A(f"v_add_u32 v14, {Z_PART}, v2")
    A(f"ds_read_b64 v[4:5], v14\nds_read_b64 v[6:7], v14 offset:1024\ns_waitcnt lgkmcnt(0)")
    A(f"v_add_f32 v8, v4, v6\nv_add_f32 v10, v5, v7\nv_mov_b32 v9, s{NONCE}\nv_mov_b32 v11, s{NONCE}")
    A("s_lshl_b32 s18, s4, 14")
    make_srd(A, 8, P_WS, ST_OFF, 16384, off_sgpr=18)
    A("v_lshlrev_b32 v3, 1, v2\ns_lshl_b32 s19, s5, 11")
    A("buffer_store_dwordx4 v[8:11], v3, s[8:11], s19 offen sc1")
    lp = A.newlabel("Lst"); ok = A.newlabel("Lstok")
    A("s_mov_b32 s20, 0")
    A.label(lp)
    for c in range(8):
        A(f"s_mov_b32 s19, {c*2048}\nbuffer_load_dwordx4 v[{16+4*c}:{19+4*c}], v3, s[8:11], s19 offen sc1")
    A("s_waitcnt vmcnt(0)")
    A(f"v_mov_b32 v12, 0")
    for c in range(8):
        A(f"v_xor_b32 v13, s{NONCE}, v{17+4*c}\nv_or_b32 v12, v12, v13\nv_xor_b32 v13, s{NONCE}, v{19+4*c}\nv_or_b32 v12, v12, v13")
    A(f"v_cmp_ne_u32 vcc, 0, v12\ns_cmp_eq_u64 vcc, 0\ns_cbranch_scc1 {ok}")
    A(f"s_add_u32 s20, s20, 1\ns_cmp_gt_u32 s20, {1<<16}\ns_cbranch_scc1 {ok}\ns_sleep 2\ns_branch {lp}")
    A.label(ok)
    A("v_add_f32 v4, v16, v20\nv_add_f32 v5, v18, v22")
    for c in range(2, 8): A(f"v_add_f32 v4, v4, v{16+4*c}\nv_add_f32 v5, v5, v{18+4*c}")
    inv = fbits(1.0 / 768.0)
    A(f"""
    v_mul_f32 v4, {inv:#x}, v4
    v_mul_f32 v5, {inv:#x}, v5
    v_fma_f32 v5, -v4, v4, v5
    v_max_f32 v5, 0, v5
    v_add_f32 v5, {fbits(1e-5):#x}, v5
    v_rsq_f32 v6, v5
    s_nop 0
    v_mul_f32 v7, -v4, v6
    """)
    A(f"ds_write_b64 v14, v[6:7] offset:{Z_STAT - Z_PART}\ns_waitcnt lgkmcnt(0)")

def gen_p1_kernel():
    A = Asm()
    end = prologue(A)
    stamp(A, 0); stamp(A, 5, cyc=True)
    wg_map_p1(A)
    fin = A.newlabel("Lfin")
    zrole = A.newlabel("Lz_role")
    A(f"s_cmp_eq_u32 s6, 1\ns_cbranch_scc1 {zrole}")
    lw = A.newlabel("Lq_w"); lx = A.newlabel("Lq_x"); att = A.newlabel("Lq_att")
    A(f"s_cmp_eq_u32 s3, 7\ns_cbranch_scc1 {lx}\ns_cmp_ge_u32 s3, 4\ns_cbranch_scc1 {lw}")
    qkv_consumer(A, False)
    wl = [A.newlabel(f"Lq_c{w}") for w in range(4)]
    for w in range(1, 4): A(f"s_cmp_eq_u32 s3, {w}\ns_cbranch_scc1 {wl[w]}")
    for w in range(4):
        A.label(wl[w])
        qkv_main(A, w)
        stamp(A, 3)
        qkv_epilogue_store(A, w)
        A(f"s_waitcnt lgkmcnt(0)\ns_branch {att}")
    A.label(lw)
    pack_issue(A)
    w_loader(A, QKV)
    pack_finish(A)
    A(f"s_branch {att}")
    A.label(lx)
    pub = A.newlabel("Lpub")
    A(f"s_cmp_lg_u32 s2, 0\ns_cbranch_scc1 {pub}")
    publish_nonce(A)
    A.label(pub)
    x_loader(A, QKV)
    A.label(att)
    A("s_barrier")
    stamp(A, 7)
    attention(A)
    A("s_waitcnt vmcnt(0)")
    A(f"s_branch {fin}")
    A.label(zrole)
    lw = A.newlabel("Lz_w"); lx = A.newlabel("Lz_x"); ztail = A.newlabel("Lz_tail")
    A(f"s_cmp_eq_u32 s3, 7\ns_cbranch_scc1 {lx}\ns_cmp_ge_u32 s3, 4\ns_cbranch_scc1 {lw}")
    z_consumer(A)
    stamp(A, 3)
    z_epilogue_a(A)
    A("s_barrier")
    z_epilogue_b(A)
    stamp(A, 7)
    A("s_barrier")
    z_epilogue_c(A)
    A("s_waitcnt vmcnt(0)")
    A(f"s_branch {fin}")
    A.label(lw)
    pack_issue(A)
    w_loader(A, Z)
    pack_finish(A)
    noex = A.newlabel("Lnoex")
    A(f"s_cmp_ge_u32 s3, 6\ns_cbranch_scc1 {noex}")
    get_nonce(A, 26)
    A("s_barrier")
    z_stats_exchange(A, 26)
    A("s_barrier")
    A(f"s_branch {fin}")
    A.label(noex)
    A(f"s_barrier\ns_barrier\ns_branch {fin}")
    A.label(lx)
    x_loader(A, Z)
    A("s_barrier\ns_barrier")
    A.label(fin)
    stamp(A, 4); stamp(A, 6, cyc=True)
    dump_stamps(A, 14 if FINE else 8)
    A.label(end)
    A("s_endpgm")
    txt = A.text(verbose=True)
    return txt.replace("SC_ST", "")

if __name__ == "__main__":
    import common
    common.set_profile("prof" in sys.argv)
    txt = build_file([("p1_kernel", gen_p1_kernel(), 256, 102, 256)], [("p1_kernel", 256, 512, LDS_MAX)])
    open("p1.s", "w").write(txt)
```

```python
from common import *

W_SLOT = 32768; NWS = 5

def wg_map_p23(A):
    A("""
    s_and_b32 s6, s2, 7
    s_lshr_b32 s7, s2, 3
    s_lshr_b32 s4, s6, 1
    s_lshl_b32 s4, s4, 3
    s_lshr_b32 s5, s7, 2
    s_add_u32 s4, s4, s5
    s_and_b32 s5, s6, 1
    s_lshl_b32 s5, s5, 2
    s_and_b32 s7, s7, 3
    s_add_u32 s5, s5, s7
    """)

W_ORDER = [0, 4, 1, 5, 2, 6, 3, 7]
W_SLOT_OF = {0: 3, 4: 4, 1: 0, 5: 1, 2: 2, 6: 3, 3: 4, 7: 0}

def p2l_setup(A, rb):
    A(f"s_sub_u32 s16, s{S_WAVE}, 4")
    A(f"s_lshl_b32 s17, s{rb}, 18")
    make_srd(A, 8, P_WSP, 0, 262144, off_sgpr=17)
    A(f"""
    v_lshrrev_b32 v4, 5, v0
    s_lshl_b32 s17, s16, 2
    v_add_u32 v4, s17, v4
    v_and_b32 v5, 31, v0
    v_xor_b32 v6, v5, v4
    v_lshlrev_b32 v6, 4, v6
    v_lshl_add_u32 v2, v4, 12, v6
    v_add_u32 v4, 2, v4
    v_xor_b32 v6, v5, v4
    v_lshlrev_b32 v6, 4, v6
    v_lshl_add_u32 v3, v4, 12, v6
    s_lshl_b32 s18, s16, 11
    """)

def p2l_issue(A, blk, Q=None):
    slot = W_SLOT_OF[blk]
    for part in range(4):
        for e in range(2):
            A(f"s_add_u32 m0, s18, {slot * W_SLOT + (16 * part + 2 * e) * 512}")
            A(f"s_mov_b32 s20, {blk * 512 + part * 16 * 4096}")
            A(f"buffer_load_dwordx4 v{2+e}, s[8:11], s20 offen lds")
    if Q is not None: Q.issue(("w", blk), 8)

def p2_loader(A):
    p2l_setup(A, 4)
    p2l_issue(A, 0); p2l_issue(A, 4)
    Q = VmQueue(); Q.issue(("w", 0), 8); Q.issue(("w", 4), 8)
    p2l_main(A, Q)
    A("s_barrier")
    A("s_barrier")

def p2l_main(A, Q, after_b3=None):
    def wait_blocks(bl):
        if not any(t in Q.q for t in {("w", b) for b in bl}): return
        n = Q.wait_for({("w", b) for b in bl})
        A(f"s_waitcnt vmcnt({n})"); Q.retire(n)
    p2l_issue(A, 1, Q)
    wait_blocks([0, 4]); A("s_barrier")
    p2l_issue(A, 5, Q); p2l_issue(A, 2, Q)
    wait_blocks([1, 5]); A("s_barrier")
    p2l_issue(A, 6, Q); p2l_issue(A, 3, Q)
    wait_blocks([2, 6]); A("s_barrier")
    p2l_issue(A, 7, Q)
    wait_blocks([3, 7]); A("s_barrier")

def p2_loader_rest(A, rb, pf_wait, sc):
    import p3
    p2l_setup(A, rb)
    Q = VmQueue(); Q.issue(("w", 0), 8); Q.issue(("w", 4), 8)
    p2l_main(A, Q)
    pf_wait()
    p3.p3l_setup(A)
    Q3 = VmQueue()
    for st in range(4): p3.p3l_issue(A, st, Q3, sc)
    A("s_barrier")
    for st in range(4, 6): p3.p3l_issue(A, st, Q3, sc)
    A("s_barrier")
    A("s_barrier")
    fl = A.newlabel("Lhf")
    import merged
    A(f"s_cmp_lg_u32 s3, 4\ns_cbranch_scc1 {fl}")
    A(f"s_lshl_b32 s16, s4, 7\ns_lshl_b32 s17, s5, 2\ns_add_u32 s16, s16, s17\ns_add_u32 s16, s16, {merged.HF_OFF}")
    merged.set_flag(A, 16)
    A.label(fl)
    p3.p3l_setup(A)
    if True:
        Q3.issue(("flag", 0), 1)
    p3.p3l_main(A, Q3, 6, sc)
    A("s_barrier\ns_barrier")

def p2_consumer(A, sc_st="", sc_ld=""):
    ACC = 8
    ZR = 56
    WF = [152, 168]
    VWL = 184
    VWB = 185
    VWA = [186, 187]
    VZ = 188
    Z1 = 192
    VB = 204
    T = 208
    A("s_lshr_b32 s16, s3, 1\ns_and_b32 s17, s3, 1")
    A(f"s_mul_i32 s18, s5, 393216")
    make_srd(A, 8, P_WS, ZN_OFF, 393216, off_sgpr=18)
    A(f"s_mul_i32 s19, s16, {32*6144}\ns_mul_i32 s18, s17, 3072\ns_add_u32 s19, s19, s18")
    A(f"v_lshlrev_b32 v{VZ}, 4, v0")
    def zload(q):
        for t in range(3):
            d = ZR + 12 * q + 4 * t
            A(f"buffer_load_dwordx4 v[{d}:{d+3}], v{VZ}, s[8:11], s19 offen offset:{t*1024} {sc_ld}")
        A("s_add_u32 s19, s19, 6144")
    A(f"s_lshl_b32 s18, s4, 3\ns_add_u32 s18, s18, s5\ns_lshl_b32 s18, s18, 2\ns_lshl_b32 s25, s17, 1\ns_add_u32 s18, s18, s25\ns_add_u32 s18, s18, s16\ns_mul_i32 s18, s18, 3072")
    make_srd(A, 12, P_WS, Z1_OFF, 3072, off_sgpr=18)
    for u in range(3):
        A(f"buffer_load_dwordx4 v[{Z1+4*u}:{Z1+4*u+3}], v{VZ}, s[12:15], 0 offen offset:{u*1024} {sc_ld}")
    A(f"s_lshl_b32 s18, s4, 7\ns_lshl_b32 s25, s16, 6\ns_add_u32 s18, s18, s25")
    make_srd(A, 28, P_BSP, 0, 64, off_sgpr=18)
    A(f"v_and_b32 v1, 15, v0\nv_lshlrev_b32 v2, 1, v1")
    A(f"buffer_load_ushort v{VB}, v2, s[28:31], 0 offen")
    A(f"buffer_load_ushort v{VB+1}, v2, s[28:31], 0 offen offset:32")
    for q in range(8): zload(q)
    A(f"""
    v_and_b32 v1, 15, v0
    v_lshrrev_b32 v3, 4, v0
    v_xor_b32 v3, v3, v1
    v_lshlrev_b32 v3, 4, v3
    v_lshl_add_u32 v{VWL}, v1, 9, v3
    """)
    for i in range(48): A(f"v_mov_b32 v{ACC+i}, 0")
    def wreads(buf, q):
        a = VWA[buf]
        A(f"v_xor_b32 v{a}, {q*64}, v{VWB}")
        for tt in range(4):
            d = WF[buf] + 4 * tt
            A(f"ds_read_b128 v[{d}:{d+3}], v{a} offset:{tt*8192}")
    def mfmas(buf, q):
        if "nomfma" in sys.argv: return
        for t in range(3):
            z = ZR + 12 * q + 4 * t
            for tt in range(4):
                d = ACC + (t * 4 + tt) * 4
                w = WF[buf] + 4 * tt
                A(f"v_mfma_f32_16x16x32_bf16 v[{d}:{d+3}], v[{z}:{z+3}], v[{w}:{w+3}], v[{d}:{d+3}]")
    A(f"s_cmp_eq_u32 s16, 0")
    sl0 = [W_SLOT_OF[n] for n in range(4)]; sl1 = [W_SLOT_OF[4 + n] for n in range(4)]
    for n in range(4): A(f"s_cselect_b32 s{20+n}, {sl0[n]}, {sl1[n]}")
    for n in range(4): A(f"s_lshl_b32 s{20+n}, s{20+n}, 15")
    A("s_mov_b32 s24, 0")
    loop = A.newlabel("Lp2")
    A.label(loop)
    A(f"v_add_u32 v{VWB}, s20, v{VWL}")
    A("s_barrier")
    wreads(0, 0)
    for q in range(8):
        if q < 7: wreads((q + 1) & 1, q + 1)
        A(f"s_waitcnt vmcnt(21) lgkmcnt({4 if q < 7 else 0})")
        mfmas(q & 1, q)
        zload(q)
    A("s_mov_b32 s20, s21\ns_mov_b32 s21, s22\ns_mov_b32 s22, s23")
    A("s_add_u32 s24, s24, 1\ns_cmp_lt_u32 s24, 4")
    A(f"s_cbranch_scc1 {loop}")
    stamp(A, 13)
    A("s_barrier")
    A(f"s_mul_i32 s18, s3, 6144")
    A(f"v_add_u32 v3, s18, v{VZ}")
    A("s_xor_b32 s25, s3, 2\ns_mul_i32 s25, s25, 6144")
    A(f"v_add_u32 v4, s25, v{VZ}")
    snd = A.newlabel("Lsnd1"); snd_e = A.newlabel("Lsnde")
    A(f"s_cmp_eq_u32 s16, 0\ns_cbranch_scc0 {snd}")
    for t in range(3):
        for j in range(2):
            d = ACC + (t * 4 + 2 + j) * 4
            A(f"ds_write_b128 v3, v[{d}:{d+3}] offset:{(t*2+j)*1024}")
    A(f"s_branch {snd_e}")
    A.label(snd)
    for t in range(3):
        for j in range(2):
            d = ACC + (t * 4 + j) * 4
            A(f"ds_write_b128 v3, v[{d}:{d+3}] offset:{(t*2+j)*1024}")
            d2 = ACC + (t * 4 + 2 + j) * 4
    for t in range(3):
        for j in range(2):
            d = ACC + (t * 4 + j) * 4; d2 = ACC + (t * 4 + 2 + j) * 4
            for r in range(4): A(f"v_mov_b32 v{d+r}, v{d2+r}")
    A.label(snd_e)
    A("s_waitcnt lgkmcnt(0)\ns_barrier")
    RB = ZR
    for t in range(3):
        for j in range(2):
            d = RB + (t * 2 + j) * 4
            A(f"ds_read_b128 v[{d}:{d+3}], v4 offset:{(t*2+j)*1024}")
    A("s_waitcnt vmcnt(0) lgkmcnt(0)")
    A(f"v_lshlrev_b32 v{VB}, 16, v{VB}\nv_lshlrev_b32 v{VB+1}, 16, v{VB+1}")
    A(f"s_mul_i32 s18, s4, {4*44*1024}")
    make_srd(A, 8, P_WS, A3_OFF, 4*44*1024, off_sgpr=18)
    A(f"s_mul_i32 s18, s16, {2*44*1024}\ns_mul_i32 s19, s5, 3072\ns_add_u32 s18, s18, s19\ns_add_u32 s18, s18, {20*1024}")
    for t in range(3):
        A(f"s_mul_i32 s19, s17, 3\ns_add_u32 s19, s19, {t}\ns_lshr_b32 s23, s19, 1\ns_lshl_b32 s23, s23, 10\ns_and_b32 s19, s19, 1\ns_lshl_b32 s19, s19, 3\ns_add_u32 s23, s23, s19\ns_add_u32 s23, s23, s18")
        for j in range(2):
            d = ACC + (t * 4 + j) * 4
            p = RB + (t * 2 + j) * 4
            z = Z1 + 4 * t + 2 * j
            for r in range(4): A(f"v_add_f32 v{d+r}, v{d+r}, v{p+r}")
            for r in range(4): A(f"v_add_f32 v{d+r}, v{d+r}, v{VB+j}")
            A(f"v_lshlrev_b32 v{T}, 16, v{z}\nv_and_b32 v{T+1}, 0xffff0000, v{z}\nv_lshlrev_b32 v{T+2}, 16, v{z+1}\nv_and_b32 v{T+3}, 0xffff0000, v{z+1}")
            for r in range(4): A(f"v_mul_f32 v{d+r}, v{d+r}, v{T+r}")
            o = T + 4 + (t * 2 + j) * 2
            A(f"v_cvt_pk_bf16_f32 v{o}, v{d}, v{d+1}\nv_cvt_pk_bf16_f32 v{o+1}, v{d+2}, v{d+3}")
            if j == 0: A(f"buffer_store_dwordx2 v[{o}:{o+1}], v{VZ}, s[8:11], s23 offen {sc_st}")
            else: A(f"s_add_u32 s26, s23, {44*1024}\nbuffer_store_dwordx2 v[{o}:{o+1}], v{VZ}, s[8:11], s26 offen {sc_st}")

def gen_p2_kernel():
    A = Asm()
    end = prologue(A)
    stamp(A, 0)
    stamp(A, 5, cyc=True)
    wg_map_p23(A)
    if "small" in sys.argv: A("s_and_b32 s4, s4, 1\ns_and_b32 s5, s5, 1")
    ld = A.newlabel("Lp2ld")
    A(f"s_cmp_ge_u32 s3, 4\ns_cbranch_scc1 {ld}")
    p2_consumer(A)
    A("s_waitcnt vmcnt(0)")
    stamp(A, 2); stamp(A, 4); stamp(A, 6, cyc=True)
    dump_stamps(A, 7)
    A("s_endpgm")
    A.label(ld)
    p2_loader(A)
    stamp(A, 4); stamp(A, 6, cyc=True)
    dump_stamps(A, 7)
    A("s_endpgm")
    A.label(end)
    A("s_endpgm")
    return A.text(verbose=True)

if __name__ == "__main__":
    import common
    common.set_profile("prof" in sys.argv)
    txt = build_file([("p2_kernel", gen_p2_kernel(), 256, 102, 256)], [("p2_kernel", 256, 512, LDS_MAX)])
    open("p2%s.s" % ("small" if "small" in sys.argv else "nomfma" if "nomfma" in sys.argv else ""), "w").write(txt)
```

```python
from common import *
from p2 import wg_map_p23

FINE = 'fine' in sys.argv
S3_SLOT = 20480; S3_N = 6; S3_NST = 11; S3_BASE = 32768

def div12(A, q, d, r, tmp_s):
    A(f"s_mov_b32 s{tmp_s}, 43691")
    A(f"v_mul_u32_u24 v{d}, s{tmp_s}, v{q}")
    A(f"v_lshrrev_b32 v{d}, 19, v{d}")
    A(f"v_mul_u32_u24 v{r}, 12, v{d}")
    A(f"v_sub_u32 v{r}, v{q}, v{r}")

def p3l_setup(A):
    A(f"s_sub_u32 s16, s{S_WAVE}, 4")
    A(f"s_mul_i32 s17, s5, {WP_CB}")
    make_srd(A, 8, P_WS, WP_OFF, WP_CB, off_sgpr=17)
    A("s_mul_i32 s18, s16, 5120\nv_lshlrev_b32 v2, 4, v0\nv_add_u32 v2, s18, v2")

def p3l_issue(A, st, Q, sc=""):
    slot = st % S3_N
    A(f"s_mov_b32 s20, {st * S3_SLOT}")
    A(f"s_add_u32 m0, s18, {S3_BASE + slot * S3_SLOT}")
    for e in range(4):
        A(f"buffer_load_dwordx4 v2, s[8:11], s20 offen offset:{e*1024} {sc} lds")
    A(f"s_add_u32 m0, s18, {S3_BASE + slot * S3_SLOT + 4096}\ns_add_u32 s20, s20, 4096")
    A(f"buffer_load_dwordx4 v2, s[8:11], s20 offen {sc} lds")
    Q.issue(("w", st), 5)

def p3l_main(A, Q, nxt, sc=""):
    for st in range(S3_NST):
        if ("w", st) in Q.q:
            n = Q.wait_for({("w", st)})
            A(f"s_waitcnt vmcnt({n})"); Q.retire(n)
        A("s_barrier")
        lim = min(S3_NST, max(S3_N, st - 1 + S3_N))
        cnt = 0
        while nxt < lim and cnt < 2:
            p3l_issue(A, nxt, Q, sc); nxt += 1; cnt += 1

def p3_loader(A):
    p3l_setup(A)
    Q = VmQueue()
    for st in range(2): p3l_issue(A, st, Q)
    p3l_main(A, Q, 2)

def p3_consumer(A, sc_ld="", hwait=None):
    ACA = 8; ACB = 48
    XR = 88; NX = 3
    WF = [152, 172]
    VE, VOD = 192, 193
    VEC, VOC = 194, 195
    VX = 196; VG = 197
    T = 200
    A("s_lshr_b32 s16, s3, 1\ns_and_b32 s17, s3, 1")
    A(f"s_lshl_b32 s18, s4, 2\ns_lshl_b32 s19, s17, 1\ns_add_u32 s18, s18, s19\ns_mul_i32 s18, s18, {44*1024}")
    make_srd(A, 8, P_WS, A3_OFF, 88 * 1024, off_sgpr=18)
    A(f"v_lshlrev_b32 v{VX}, 4, v0")
    A(f"s_lshl_b32 s18, s4, 8\ns_lshl_b32 s19, s17, 7\ns_add_u32 s18, s18, s19")
    make_srd(A, 12, P_WS, G_OFF, 128, off_sgpr=18)
    A(f"v_and_b32 v1, 15, v0\nv_lshlrev_b32 v2, 2, v1\nbuffer_load_dword v{VG}, v2, s[12:15], 0 offen {sc_ld}\nbuffer_load_dword v{VG+1}, v2, s[12:15], 0 offen offset:64 {sc_ld}")
    A("s_lshl_b32 s19, s16, 11")
    A(f"s_add_u32 s23, s19, {44*1024}")
    def xload(st):
        d = XR + 16 * (st % NX)
        A(f"buffer_load_dwordx4 v[{d}:{d+3}], v{VX}, s[8:11], s19 offen {sc_ld}")
        A(f"buffer_load_dwordx4 v[{d+4}:{d+7}], v{VX}, s[8:11], s23 offen {sc_ld}")
        A(f"buffer_load_dwordx4 v[{d+8}:{d+11}], v{VX}, s[8:11], s19 offen offset:1024 {sc_ld}")
        A(f"buffer_load_dwordx4 v[{d+12}:{d+15}], v{VX}, s[8:11], s23 offen offset:1024 {sc_ld}")
        A("s_add_u32 s19, s19, 4096\ns_add_u32 s23, s23, 4096")
    for st in range(2): xload(st)
    A(f"s_mul_i32 s21, s16, {2*5120}\nv_add_u32 v{VEC}, s21, v{VX}")
    for i in range(80): A(f"v_mov_b32 v{ACA+i}, 0")
    def setaddr():
        A(f"v_add_u32 v{VE}, s22, v{VEC}")
    def wpair(buf, j2, nu):
        dn = WF[buf] + 4 * nu
        A(f"ds_read_b128 v[{dn}:{dn+3}], v{VE} offset:{(j2 * 5 + nu) * 1024}")
    def adv_slot():
        A(f"s_add_u32 s22, s22, {S3_SLOT}\ns_cmp_eq_u32 s22, {S3_BASE + S3_N*S3_SLOT}\ns_cselect_b32 s22, {S3_BASE}, s22")
    A(f"s_mov_b32 s22, {S3_BASE}")
    setaddr()
    A("s_barrier")
    stamp(A, 11)
    for nu in range(5): wpair(0, 0, nu)
    nstep = 2 * S3_NST
    for step in range(nstep):
        st, j2 = step // 2, step % 2
        buf = step & 1
        acc = ACA if st < 5 else ACB
        last = step == nstep - 1
        if not last and j2 == 1:
            if st + 2 < S3_NST:
                if st + 2 == 5 and hwait: hwait()
                xload(st + 2)
            adv_slot(); setaddr()
            A("s_barrier")
        for nu in range(5):
            lg = 4 if not last else 4 - nu
            vm = f"vmcnt({4 * min(1, S3_NST - 1 - st)}) " if (nu == 0 and j2 == 0) else ""
            A(f"s_waitcnt {vm}lgkmcnt({lg})")
            w = WF[buf] + 4 * nu
            for tt in range(2):
                d = acc + (tt * 5 + nu) * 4
                x = XR + 16 * (st % NX) + 8 * j2 + 4 * tt
                A(f"v_mfma_f32_16x16x32_bf16 v[{d}:{d+3}], v[{w}:{w+3}], v[{x}:{x+3}], v[{d}:{d+3}]")
                if tt == 0 and not last: wpair(buf ^ 1, (j2 + 1) % 2, nu)
    stamp(A, 12)
    for tt in range(2):
        for nu in range(5):
            a = ACA + (tt * 5 + nu) * 4; b = ACB + (tt * 5 + nu) * 4
            for r in range(4): A(f"v_sub_f32 v{a+r}, v{a+r}, v{b+r}")
            for r in range(4): A(f"v_fma_f32 v{a+r}, v{VG+tt}, v{a+r}, v{b+r}")
    A("s_barrier")
    A(f"s_mul_i32 s18, s3, 5120\nv_add_u32 v3, s18, v{VX}")
    A(f"s_xor_b32 s18, s3, 2\ns_mul_i32 s18, s18, 5120\nv_add_u32 v4, s18, v{VX}")
    k1 = A.newlabel("Lp3k1"); ke = A.newlabel("Lp3ke")
    A(f"s_cmp_eq_u32 s16, 0\ns_cbranch_scc0 {k1}")
    for nu in range(5):
        a = ACA + (5 + nu) * 4
        A(f"ds_write_b128 v3, v[{a}:{a+3}] offset:{nu*1024}")
    A(f"s_branch {ke}")
    A.label(k1)
    for nu in range(5):
        a = ACA + nu * 4
        A(f"ds_write_b128 v3, v[{a}:{a+3}] offset:{nu*1024}")
    for nu in range(5):
        for r in range(4): A(f"v_mov_b32 v{ACA+nu*4+r}, v{ACA+(5+nu)*4+r}")
    A.label(ke)
    A("s_waitcnt lgkmcnt(0)\ns_barrier")
    for nu in range(5):
        d = ACB + 4 * nu
        A(f"ds_read_b128 v[{d}:{d+3}], v4 offset:{nu*1024}")
    A(f"s_lshl_b32 s18, s4, 2\ns_lshl_b32 s19, s17, 1\ns_add_u32 s18, s18, s19\ns_add_u32 s18, s18, s16\ns_mul_i32 s18, s18, {16*1280}\ns_mul_i32 s19, s5, 160\ns_add_u32 s18, s18, s19")
    make_srd(A, 12, P_OUT, 0, 2048 * 1280)
    A(f"s_movk_i32 s19, 1280\nv_mul_u32_u24 v2, s19, v1\nv_lshrrev_b32 v4, 4, v0\nv_lshl_add_u32 v2, v4, 3, v2")
    A("s_waitcnt lgkmcnt(0)")
    for nu in range(5):
        a = ACA + 4 * nu; b = ACB + 4 * nu
        for r in range(4): A(f"v_add_f32 v{a+r}, v{a+r}, v{b+r}")
        o = T + 2 * nu
        A(f"v_cvt_pk_bf16_f32 v{o}, v{a}, v{a+1}\nv_cvt_pk_bf16_f32 v{o+1}, v{a+2}, v{a+3}")
        A(f"buffer_store_dwordx2 v[{o}:{o+1}], v2, s[12:15], s18 offen offset:{nu*32}")

def gen_p3_kernel():
    A = Asm()
    end = prologue(A)
    stamp(A, 0)
    stamp(A, 5, cyc=True)
    wg_map_p23(A)
    ld = A.newlabel("Lp3ld")
    A(f"s_cmp_ge_u32 s3, 4\ns_cbranch_scc1 {ld}")
    p3_consumer(A)
    A("s_waitcnt vmcnt(0)")
    stamp(A, 4); stamp(A, 6, cyc=True)
    dump_stamps(A, 15 if FINE else 7)
    A("s_endpgm")
    A.label(ld)
    stamp(A, 1)
    p3_loader(A)
    A("s_barrier\ns_barrier")
    stamp(A, 3); stamp(A, 4); stamp(A, 6, cyc=True)
    dump_stamps(A, 15 if FINE else 7)
    A("s_endpgm")
    A.label(end)
    A("s_endpgm")
    return A.text(verbose=True)

if __name__ == "__main__":
    import common
    common.set_profile("prof" in sys.argv)
    for q in range(1024): assert (q * 43691) >> 19 == q // 12
    txt = build_file([("p3_kernel", gen_p3_kernel(), 256, 102, 256)], [("p3_kernel", 256, 512, LDS_MAX)])
    open("p3.s", "w").write(txt)
```

```python
import re
NAME = "gated_mix__sliding_local_dilated__mixer_gmlp__prompt"

def v(i, n=1):
    assert 0 <= i and i + n <= 256, (i, n)
    return f"v{i}" if n == 1 else f"v[{i}:{i+n-1}]"
def s(i, n=1):
    assert 0 <= i and i + n <= 102, (i, n)
    return f"s{i}" if n == 1 else f"s[{i}:{i+n-1}]"

TRANS = ("v_exp_f32", "v_log_f32", "v_rcp_f32", "v_rsq_f32", "v_sqrt_f32", "v_sin_f32", "v_cos_f32", "v_rcp_iflag_f32")
_REG = re.compile(r"^(-|abs\()?\|?([vs])(\d+)\)?\|?$")
_RNG = re.compile(r"^(-)?([vs])\[(\d+):(\d+)\]$")

def regs_of(op):
    op = op.strip()
    m = _RNG.match(op)
    if m: return {(m.group(2), i) for i in range(int(m.group(3)), int(m.group(4)) + 1)}
    m = _REG.match(op)
    if m: return {(m.group(2), int(m.group(3)))}
    if op in ("vcc", "vcc_lo", "vcc_hi"): return {("vcc", 0)}
    if op in ("exec", "exec_lo", "exec_hi"): return {("exec", 0)}
    if op == "m0": return {("m0", 0)}
    return set()

class Ins:
    __slots__ = ("text", "mn", "ops", "kind", "wr", "rd", "a", "b", "c", "passes", "dpp", "nops", "is_label", "label", "target", "wide_store_data", "lds_dma", "addr_s")
    def __init__(self, text):
        self.text = text
        self.is_label = False; self.target = None; self.label = None
        self.wr = set(); self.rd = set(); self.a = set(); self.b = set(); self.c = set()
        self.passes = 0; self.dpp = False; self.wide_store_data = set(); self.lds_dma = False
        t = text.split(";")[0].strip()
        if not t:
            self.kind = "none"; self.mn = ""; return
        if t.endswith(":"):
            self.is_label = True; self.label = t[:-1]; self.kind = "label"; self.mn = ""; return
        if t.startswith("."):
            self.kind = "none"; self.mn = ""; return
        parts = t.split(None, 1)
        mn = parts[0]; self.mn = mn
        rest = parts[1] if len(parts) > 1 else ""
        ops = [o.strip() for o in re.split(r",(?![^\[]*\])", rest)] if rest else []
        mods = ""
        if ops:
            sp = ops[-1].split(None, 1)
            if len(sp) > 1 and not ops[-1].startswith("abs("):
                ops[-1] = sp[0]; mods = sp[1]
        self.ops = ops
        R = [regs_of(o) for o in ops]
        if mn.startswith("v_mfma"):
            self.kind = "mfma"
            self.passes = 2 if "4x4x4" in mn else 4 if ("16x16x32" in mn or "16x16x16" in mn) else 8
            self.wr = R[0]; self.a = R[1]; self.b = R[2]; self.c = R[3]; self.rd = R[1] | R[2] | R[3]
        elif mn.startswith("v_"):
            self.kind = "trans" if mn.replace("_e32", "").replace("_e64", "") in TRANS else "valu"
            self.dpp = ("_dpp" in mn) or ("row_" in mods) or ("quad_perm" in mods)
            if mn.startswith("v_cmpx"):
                self.wr = R[0] | {("exec", 0)}; self.rd = set().union(*R[1:])
            elif mn.startswith("v_permlane") and "swap" in mn:
                self.wr = R[0] | R[1]; self.rd = R[0] | R[1]
            elif mn.startswith(("v_add_co", "v_sub_co", "v_addc_co", "v_subb_co", "v_mad_u64")):
                self.wr = R[0] | R[1]; self.rd = set().union(*R[2:])
            else:
                self.wr = R[0]; self.rd = set().union(*R[1:]) if len(R) > 1 else set()
                if mn.startswith(("v_fmac", "v_dot2c", "v_mac", "v_pk_fmac")) or self.dpp:
                    self.rd |= R[0]
                if mn.startswith("v_cndmask") and len(ops) == 3:
                    self.rd |= {("vcc", 0)}
                if mn.startswith("v_writelane"):
                    self.rd |= R[0]
        elif mn.startswith("ds_"):
            self.kind = "ds"
            if mn.startswith(("ds_read", "ds_bpermute", "ds_permute", "ds_swizzle")):
                self.wr = R[0]; self.rd = set().union(*R[1:])
            else:
                self.rd = set().union(*R)
        elif mn.startswith(("buffer_", "global_")):
            self.kind = "vmem"
            lds = (" lds" in (" " + mods)) or mn.startswith("global_load_lds")
            self.lds_dma = lds
            if mn in ("buffer_inv", "buffer_wbl2"):
                pass
            elif lds:
                self.rd = set().union(*R) | {("m0", 0)}
            elif "load" in mn:
                self.wr = R[0]; self.rd = set().union(*R[1:])
            elif "atomic" in mn:
                self.rd = set().union(*R)
                if "sc0" in mods: self.wr = R[0] if mn.startswith("buffer_") else R[0]
            else:
                self.rd = set().union(*R)
                data = R[0] if mn.startswith("buffer_") else R[1]
                if "x4" in mn or "x3" in mn: self.wide_store_data = data
        elif mn.startswith("s_"):
            self.kind = "salu"
            if mn in ("s_branch",) or mn.startswith("s_cbranch"):
                self.target = ops[0]
            elif mn.startswith(("s_cmp", "s_bitcmp", "s_waitcnt", "s_barrier", "s_nop", "s_endpgm", "s_sleep", "s_setprio")):
                self.rd = set().union(*R) if R else set()
            else:
                self.wr = R[0] if R else set(); self.rd = set().union(*R[1:]) if len(R) > 1 else set()
                if "saveexec" in mn: self.wr |= {("exec", 0)}; self.rd |= {("exec", 0)}
        else:
            raise ValueError("unknown instr: " + text)
    def states(self):
        if self.kind in ("none", "label"): return 0
        if self.mn == "s_nop": return int(self.ops[0], 0) + 1
        return 1

def _isv(x): return x[0] == "v"
def _iss(x): return x[0] in ("s", "vcc")

def need(prod, cons):
    n = 0
    pk, ck = prod.kind, cons.kind
    pv = pk in ("valu", "trans")
    cv = ck in ("valu", "trans")
    if pv:
        pw_v = {x for x in prod.wr if _isv(x)}
        pw_s = {x for x in prod.wr if _iss(x)}
        if ck == "mfma" and (pw_v & cons.rd): n = max(n, 2)
        if ck == "mfma" and ("exec", 0) in prod.wr: n = max(n, 4)
        if cv and (pw_s & cons.rd): n = max(n, 2)
        if ck in ("vmem",) and (pw_s & cons.rd): n = max(n, 5)
        if ck == "salu" and (pw_s & cons.rd): n = max(n, 2)
        if cv and cons.mn.startswith(("v_readfirstlane", "v_readlane")) and (pw_v & cons.rd): n = max(n, 1)
        if cv and cons.mn.startswith(("v_readlane", "v_writelane")) and (pw_s & cons.rd): n = max(n, 4)
        if pk == "trans" and ck == "valu" and (pw_v & cons.rd): n = max(n, 1)
        if cv and cons.dpp and (pw_v & cons.rd): n = max(n, 2)
        if cv and cons.mn.startswith("v_permlane") and (pw_v & cons.rd): n = max(n, 2)
        if cv and cons.dpp and ("exec", 0) in prod.wr: n = max(n, 5)
    if pk == "mfma":
        p = prod.passes
        if ck == "mfma":
            if prod.wr & cons.c:
                if prod.wr == cons.c and p == cons.passes: n = max(n, 2 if p == 2 else 0)
                else: n = max(n, {2: 4, 4: 6, 8: 10}[p])
            if prod.wr & (cons.a | cons.b): n = max(n, {2: 5, 4: 8, 8: 12}[p])
        elif cv:
            if prod.wr & (cons.rd | cons.wr): n = max(n, {2: 5, 4: 8, 8: 12}[p])
            if prod.c & cons.wr: n = max(n, {2: 1, 4: 3, 8: 7}[p])
        elif ck in ("vmem", "ds"):
            if prod.wr & (cons.rd | cons.wr): n = max(n, {2: 5, 4: 8, 8: 12}[p])
    if prod.wide_store_data:
        if cv and (prod.wide_store_data & cons.wr): n = max(n, 2)
        elif prod.wide_store_data & cons.wr: n = max(n, 1)
    if pk == "salu" and ("m0", 0) in prod.wr and cons.lds_dma: n = max(n, 1)
    return n

MAXD = 13
def pad_hazards(lines, verbose=False):
    ins = [Ins(l) for l in lines]
    labels = {i.label: k for k, i in enumerate(ins) if i.is_label}
    N = len(ins)
    branch_src = {}
    for k, i in enumerate(ins):
        if i.target is not None and i.target in labels:
            branch_src.setdefault(labels[i.target], []).append(k)
    extra = [0] * N
    def preds(k):
        out = []
        if k > 0:
            p = ins[k - 1]
            if not (p.mn in ("s_branch", "s_endpgm", "s_setpc_b64")):
                out.append(k - 1)
        if ins[k].is_label:
            out += branch_src.get(k, [])
        return out
    total = 0
    for k, c in enumerate(ins):
        if c.kind in ("none", "label"): continue
        req = 0
        stack = [(p, 0) for p in preds(k)]
        seen = {}
        while stack:
            j, d = stack.pop()
            if d >= MAXD: continue
            if seen.get(j, 99) <= d: continue
            seen[j] = d
            pj = ins[j]
            if pj.kind not in ("none", "label"):
                r = need(pj, c)
                if r > d: req = max(req, r - d)
            d2 = d + pj.states() + extra[j]
            for q in preds(j): stack.append((q, d2))
        if req > 0:
            extra[k] = req; total += 1
    out = []
    for k, l in enumerate(lines):
        if extra[k]:
            out.append(f"    s_nop {extra[k]-1}")
        out.append(l)
    if verbose: print("hazard pads inserted:", total)
    return out

class Asm:
    def __init__(self):
        self.lines = []
        self.uid = 0
    def __call__(self, s_=""):
        for l in s_.split("\n"):
            t = l.strip()
            if not t: continue
            self.lines.append(t if t.endswith(":") else "    " + t)
    def label(self, name):
        self.lines.append(name + ":")
    def newlabel(self, p="L"):
        Asm._g = getattr(Asm, "_g", 0) + 1
        return f"{p}_{Asm._g}"
    def comment(self, s_):
        self.lines.append("    ; " + s_)
    def text(self, pad=True, verbose=False):
        L = pad_hazards(self.lines, verbose) if pad else self.lines
        return "\n".join(L) + "\n"

HEADER_COMMENT = """; Kernarg layout for this problem (96 bytes, ptrs only, base s[0:1]):
"""

def kernel_desc(name, vgpr=256, sgpr=102, accum=256):
    return f""".p2align 6
.amdhsa_kernel {name}
  .amdhsa_next_free_vgpr {vgpr}
  .amdhsa_next_free_sgpr {sgpr}
  .amdhsa_accum_offset {accum}
  .amdhsa_group_segment_fixed_size 0
  .amdhsa_kernarg_size 96
  .amdhsa_user_sgpr_count 2
  .amdhsa_user_sgpr_kernarg_segment_ptr 1
  .amdhsa_system_sgpr_workgroup_id_x 1
  .amdhsa_float_denorm_mode_32 3
.end_amdhsa_kernel
"""

def build_file(kernels, launches):
    out = HEADER_COMMENT
    if len(launches) == 1 and launches[0][0] == NAME + "_kernel":
        l = launches[0]
        out += f"; @launch grid=({l[1]},1,1) block=({l[2]},1,1) lds={l[3]}\n"
    else:
        for l in launches:
            out += f"; @launch kernel={l[0]} grid=({l[1]},1,1) block=({l[2]},1,1) lds={l[3]}\n"
    out += '.amdgcn_target "amdgcn-amd-amdhsa--gfx950"\n.text\n'
    for (label, body, *_r) in kernels:
        out += f".globl {label}\n.p2align 8\n.type {label},@function\n{label}:\n{body}\n"
    out += '.section .rodata,"a"\n'
    for (label, body, vg, sg, ac) in kernels:
        out += kernel_desc(label, vg, sg, ac)
    return out
```

```python
import sys
import common
from common import *
import p1, p2, p3
from p1 import *

NONCE = 62
RB64, CB = 60, 61
ZF_OFF, OF_OFF, PF_OFF, HF_OFF = 0x0000, 0x1000, 0x2000, 0x3000
NONCE_LDS = 163824 - 2048
NONCE_LDS = 161792
SPIN_MAX = 1 << 17

def flag_srd(A):
    make_srd(A, 28, P_WS, FL_OFF, 0x4000)

def set_flag(A, soff_sgpr):
    flag_srd(A)
    A(f"s_mov_b64 s[32:33], exec\ns_mov_b64 exec, 1\nv_mov_b32 v250, 0\nv_mov_b32 v251, s{NONCE}")
    A(f"buffer_store_dword v251, v250, s[28:31], s{soff_sgpr} offen sc1")
    A("s_mov_b64 exec, s[32:33]")

def wait_flags(A, soff_sgpr, n):
    flag_srd(A)
    lo = (1 << min(n, 32)) - 1; hi = (1 << max(n - 32, 0)) - 1
    lp = A.newlabel("Lw"); ok = A.newlabel("Lwok")
    A(f"s_mov_b64 s[32:33], exec\ns_mov_b32 exec_lo, {lo:#x}\ns_mov_b32 exec_hi, {hi:#x}\nv_lshlrev_b32 v250, 2, v0\ns_mov_b32 s34, 0")
    A.label(lp)
    A(f"buffer_load_dword v251, v250, s[28:31], s{soff_sgpr} offen sc1\ns_waitcnt vmcnt(0)")
    A(f"v_cmp_ne_u32 vcc, s{NONCE}, v251\ns_cmp_eq_u64 vcc, 0\ns_cbranch_scc1 {ok}")
    A(f"s_add_u32 s34, s34, 1\ns_cmp_gt_u32 s34, {SPIN_MAX}\ns_cbranch_scc1 {ok}\ns_sleep 1\ns_branch {lp}")
    A.label(ok)
    A("s_mov_b64 exec, s[32:33]")

def read_nonce_lds(A):
    A(f"v_mov_b32 v250, {NONCE_LDS}\nds_read_b32 v251, v250\ns_waitcnt lgkmcnt(0)\nv_readfirstlane_b32 s{NONCE}, v251")

def touch_prefetch(A):
    A("s_lshl_b32 s16, s2, 2\ns_add_u32 s16, s16, s3\nv_lshlrev_b32 v240, 7, v0")
    l1 = A.newlabel("Lt1"); l2 = A.newlabel("Lt2"); le = A.newlabel("Lte")
    A(f"s_cmp_ge_u32 s16, 320\ns_cbranch_scc1 {l1}")
    make_srd(A, 8, P_AX, 0, 2048 * 1280)
    A(f"s_branch {l2}")
    A.label(l1)
    l3 = A.newlabel("Lt3")
    A(f"s_sub_u32 s16, s16, 320\ns_cmp_ge_u32 s16, 300\ns_cbranch_scc1 {l3}")
    make_srd(A, 8, P_WQKV, 0, 640 * 3840)
    A(f"s_branch {l2}")
    A.label(l3)
    A(f"s_sub_u32 s16, s16, 300")
    make_srd(A, 8, P_WIN, 0, 640 * 3072)
    A.label(l2)
    A("s_lshl_b32 s17, s16, 13\nbuffer_load_dword v241, v240, s[8:11], s17 offen")

def touch_wsp(A):
    A(f"s_lshl_b32 s26, s{RB64}, 18\ns_lshl_b32 s27, s{CB}, 15\ns_add_u32 s26, s26, s27\ns_lshl_b32 s27, s3, 13\ns_add_u32 s26, s26, s27")
    make_srd(A, 28, P_WSP, 0, 2048 * 4096)
    A("v_lshlrev_b32 v240, 7, v0\nbuffer_load_dword v242, v240, s[28:31], s26 offen")

def nonce_issue(A):
    make_srd(A, 28, P_DBG, 0, 256)
    A("v_mov_b32 v243, 0\nbuffer_load_dword v244, v243, s[28:31], 0 offen sc1")

def nonce_take(A):
    ok = A.newlabel("Lnok")
    A(f"s_waitcnt vmcnt(0)\nv_readfirstlane_b32 s{NONCE}, v244\ns_cmp_lg_u32 s{NONCE}, 0\ns_cbranch_scc1 {ok}")
    get_nonce(A, NONCE)
    A.label(ok)

def code_prefetch(A, nbytes):
    lines = -(-nbytes // 128)
    per = -(-lines // 32)
    assert per <= 64
    pc = A.newlabel("Lpc")
    A("s_getpc_b64 s[16:17]")
    A.label(pc)
    A(f"s_sub_u32 s16, s16, {pc}-{NAME}_kernel\ns_subb_u32 s17, s17, 0")
    A(f"s_lshr_b32 s18, s2, 3\ns_mul_i32 s18, s18, {per*128}\nv_lshlrev_b32 v240, 7, v0\nv_add_u32 v240, s18, v240")
    A(f"v_cmp_gt_u32 vcc, {per}, v0\ns_and_saveexec_b64 s[18:19], vcc")
    A(f"v_min_u32 v240, {nbytes - 4}, v240\nglobal_load_dword v241, v240, s[16:17]\ns_mov_b64 exec, s[18:19]")

def gen(opts):
    A = Asm()
    kstart = A.newlabel("Lkstart")
    end = prologue(A)
    stamp(A, 0); stamp(A, 5, cyc=True)
    p2.wg_map_p23(A)
    A(f"s_mov_b32 s{RB64}, s4\ns_mov_b32 s{CB}, s5")
    wg_map_p1(A)
    def mid_hook(A):
        if opts.get("touch", True): touch_wsp(A)
        nonce_issue(A)
    P2 = A.newlabel("LP2")
    zrole = A.newlabel("Lz_role")
    SC = "sc1"
    notc = A.newlabel("Lnotc")
    A(f"s_cmp_ge_u32 s3, 4\ns_cbranch_scc1 {notc}")
    pub = A.newlabel("Lpub")
    A(f"s_lshl_b32 s16, s2, 3\ns_add_u32 s16, s16, s3\ns_cmp_lg_u32 s16, 3\ns_cbranch_scc1 {pub}")
    publish_nonce(A)
    A.label(pub)
    if opts.get("touch", True): touch_prefetch(A)
    w3 = A.newlabel("Lw3")
    A(f"s_cmp_lg_u32 s3, 3\ns_cbranch_scc1 {w3}")
    if opts.get("codepf", 0): code_prefetch(A, opts["codepf"])
    A.label(w3)
    A.label(notc)
    A(f"s_cmp_eq_u32 s6, 1\ns_cbranch_scc1 {zrole}")
    lw = A.newlabel("Lq_w"); lx = A.newlabel("Lq_x"); att = A.newlabel("Lq_att"); ldj = A.newlabel("Lq_ldj")
    A(f"s_cmp_eq_u32 s3, 7\ns_cbranch_scc1 {lx}\ns_cmp_ge_u32 s3, 4\ns_cbranch_scc1 {lw}")
    qkv_consumer(A, False)
    wl = [A.newlabel(f"Lq_c{w}") for w in range(4)]
    for w in range(1, 4): A(f"s_cmp_eq_u32 s3, {w}\ns_cbranch_scc1 {wl[w]}")
    for w in range(4):
        A.label(wl[w])
        qkv_main(A, w, mid=mid_hook)
        stamp(A, 3)
        nonce_take(A)
        qkv_epilogue_store(A, w)
        A(f"s_waitcnt lgkmcnt(0)\ns_barrier\ns_branch {att}")
    A.label(lw)
    pack_issue(A)
    w_loader(A, QKV, late=nonce_issue)
    nonce_take(A)
    pack_finish(A, SC, flag=lambda: pack_flag(A))
    A(f"s_branch {ldj}")
    A.label(lx)
    x_loader(A, QKV, late=nonce_issue)
    nonce_take(A)
    A.label(ldj)
    A("s_barrier")
    p2.p2l_setup(A, RB64)
    p2.p2l_issue(A, 0); p2.p2l_issue(A, 4)
    A.label(att)
    stamp(A, 7)
    attention(A, SC)
    A("s_waitcnt vmcnt(0)\ns_barrier")
    fl = A.newlabel("Lof")
    A(f"s_cmp_lg_u32 s3, 4\ns_cbranch_scc1 {fl}")
    A(f"s_lshl_b32 s16, s4, 7\ns_lshl_b32 s17, s5, 2\ns_add_u32 s16, s16, s17\ns_add_u32 s16, s16, {OF_OFF}")
    set_flag(A, 16)
    A.label(fl)
    A(f"s_branch {P2}")
    A.label(zrole)
    lw = A.newlabel("Lz_w"); lx = A.newlabel("Lz_x"); zl = A.newlabel("Lz_l")
    A(f"s_cmp_eq_u32 s3, 7\ns_cbranch_scc1 {lx}\ns_cmp_ge_u32 s3, 4\ns_cbranch_scc1 {lw}")
    z_consumer(A, mid=mid_hook)
    stamp(A, 3)
    nonce_take(A)
    z_epilogue_a(A)
    A("s_barrier")
    z_epilogue_b(A, SC)
    stamp(A, 7)
    A("s_barrier")
    z_epilogue_c(A, SC)
    A("s_waitcnt vmcnt(0)\ns_barrier")
    A(f"s_branch {P2}")
    A.label(lw)
    pack_issue(A)
    w_loader(A, Z, late=nonce_issue)
    nonce_take(A)
    pack_finish(A, SC, flag=lambda: pack_flag(A))
    A(f"s_branch {zl}")
    A.label(lx)
    x_loader(A, Z, late=nonce_issue)
    nonce_take(A)
    A.label(zl)
    A("s_barrier")
    noex = A.newlabel("Lnoex")
    A(f"s_cmp_ge_u32 s3, 6\ns_cbranch_scc1 {noex}")
    z_stats_exchange(A, NONCE)
    A.label(noex)
    p2.p2l_setup(A, RB64)
    p2.p2l_issue(A, 0); p2.p2l_issue(A, 4)
    A("s_barrier")
    A("s_barrier")
    fl = A.newlabel("Lzf")
    A(f"s_cmp_lg_u32 s3, 4\ns_cbranch_scc1 {fl}")
    A(f"s_lshl_b32 s16, s5, 7\ns_lshl_b32 s17, s4, 2\ns_add_u32 s16, s16, s17\ns_add_u32 s16, s16, {ZF_OFF}")
    set_flag(A, 16)
    A.label(fl)
    A.label(P2)
    stamp(A, 8)
    A(f"s_mov_b32 s4, s{RB64}\ns_mov_b32 s5, s{CB}")
    ld2 = A.newlabel("Lp2ld"); fin = A.newlabel("Lfin")
    A(f"s_cmp_ge_u32 s3, 4\ns_cbranch_scc1 {ld2}")
    A(f"s_lshl_b32 s16, s5, 7\ns_add_u32 s16, s16, {ZF_OFF}")
    wait_flags(A, 16, 16)
    stamp(A, 9)
    p2.p2_consumer(A, sc_st=SC, sc_ld=SC)
    A("s_waitcnt vmcnt(0)\ns_barrier")
    stamp(A, 10)
    A(f"s_lshr_b32 s16, s4, 1\ns_lshl_b32 s16, s16, 7\ns_add_u32 s16, s16, {OF_OFF}")
    wait_flags(A, 16, 8)
    def hwait():
        A(f"s_lshl_b32 s26, s4, 7\ns_add_u32 s26, s26, {HF_OFF}")
        wait_flags(A, 26, 8)
    p3.p3_consumer(A, sc_ld=SC, hwait=hwait)
    A("s_waitcnt vmcnt(0)")
    A(f"s_branch {fin}")
    A.label(ld2)
    def pf_wait():
        A(f"s_lshl_b32 s16, s5, 8\ns_add_u32 s16, s16, {PF_OFF}")
        wait_flags(A, 16, 44)
    p2.p2_loader_rest(A, RB64, pf_wait, SC)
    A.label(fin)
    stamp(A, 4); stamp(A, 6, cyc=True)
    dump_stamps(A, 14)
    A.label(end)
    A("s_endpgm")
    txt = A.text(verbose=True)
    return txt.replace("SC_ST", SC)

def pack_flag_factory(A):
    pass

def pack_flag(A):
    A(f"s_and_b32 s16, s27, 7\ns_lshl_b32 s16, s16, 8\ns_lshr_b32 s17, s27, 3\ns_lshl_b32 s17, s17, 2\ns_add_u32 s16, s16, s17\ns_add_u32 s16, s16, {PF_OFF}")
    set_flag(A, 16)

if __name__ == "__main__":
    common.set_profile("prof" in sys.argv)
    opts = {"touch": "notouch" not in sys.argv}
    body = gen(opts)
    if "nocodepf" not in sys.argv:
        import subprocess
        tmp = build_file([(NAME + "_kernel", body, 256, 102, 256)], [(NAME + "_kernel", 256, 512, LDS_MAX)])
        open("_tmp.s", "w").write(tmp)
        subprocess.run(["clang", "-x", "assembler", "-target", "amdgcn-amd-amdhsa", "-mcpu=gfx950", "-c", "_tmp.s", "-o", "_tmp.o"], check=True)
        out = subprocess.run(["llvm-readelf", "-S", "_tmp.o"], capture_output=True, text=True).stdout
        size = [int(l.split("PROGBITS")[1].split()[2], 16) for l in out.splitlines() if ".text" in l][0]
        opts["codepf"] = size - 256
        body = gen(opts)
        print("code bytes", size)
    txt = build_file([(NAME + "_kernel", body, 256, 102, 256)], [(NAME + "_kernel", 256, 512, LDS_MAX)])
    open(sys.argv[1], "w").write(txt)
```

```python
import sys; sys.path.insert(0, "tools")
from asmlib import *

A3_OFF = 0x000000
A3_SIZE = 32 * 4 * 44 * 1024
G_OFF  = 0x580000
Z1_OFF = 0x600000
ZN_OFF = 0x900000
ST_OFF = 0xC00000
FL_OFF = 0xC80000
WP_OFF = 0xD00000
WP_CB = 44 * 5 * 1024
LDS_MAX = 163840

P_AX, P_WQKV, P_WO, P_BX, P_WIN, P_WSP, P_BSP, P_WOUT = 36, 38, 40, 42, 44, 46, 48, 50
P_GATE, P_OUT, P_DBG, P_WS = 52, 54, 56, 58
S_WAVE = 3

def prologue(A, ngrid=256):
    end = A.newlabel("Lexit")
    A(f"""
    s_cmp_ge_u32 s2, {ngrid}
    s_cbranch_scc1 {end}
    s_load_dwordx16 s[36:51], s[0:1], 0
    s_load_dwordx8 s[52:59], s[0:1], 64
    v_lshrrev_b32 v1, 6, v0
    v_and_b32 v0, 63, v0
    v_readfirstlane_b32 s{S_WAVE}, v1
    s_waitcnt lgkmcnt(0)
    """)
    return end

def make_srd(A, d, ptr, off, size, off_sgpr=None):
    A(f"s_add_u32 s{d}, s{ptr}, {off}" if off else f"s_mov_b32 s{d}, s{ptr}")
    A(f"s_addc_u32 s{d+1}, s{ptr+1}, 0" if off else f"s_mov_b32 s{d+1}, s{ptr+1}")
    if off_sgpr is not None:
        A(f"s_add_u32 s{d}, s{d}, s{off_sgpr}")
        A(f"s_addc_u32 s{d+1}, s{d+1}, 0")
    A(f"s_mov_b32 s{d+2}, {size}")
    A(f"s_mov_b32 s{d+3}, 0x00020000")

class VmQueue:
    def __init__(self): self.q = []
    def issue(self, tag, n=1): self.q += [tag] * n
    def wait_for(self, tags):
        last = -1
        for i, t in enumerate(self.q):
            if t in tags: last = i
        n = len(self.q) - 1 - last
        return n
    def retire(self, n):
        self.q = self.q[len(self.q) - n:] if n > 0 else []

PROF_OFF = 0x1000000
PROFILE = False
def set_profile(x):
    global PROFILE
    PROFILE = x
FINE2 = 'fine2' in sys.argv
def stamp(A, i, cyc=False, f2=False):
    if not PROFILE: return
    if FINE2 and not f2 and i != 0: return
    if f2 and not FINE2: return
    A(f"{'s_memtime' if cyc else 's_memrealtime'} s[{64+2*i}:{65+2*i}]\ns_waitcnt lgkmcnt(0)")
def dump_stamps(A, n):
    if not PROFILE: return
    A(f"s_lshl_b32 s60, s2, 3\ns_add_u32 s60, s60, s3\ns_lshl_b32 s60, s60, 6")
    A(f"s_add_u32 s96, s{P_WS}, {PROF_OFF}\ns_addc_u32 s97, s{P_WS+1}, 0\ns_mov_b32 s98, 0x100000\ns_mov_b32 s99, 0x00020000")
    A("v_mov_b32 v250, 0")
    for i in range(n):
        A(f"v_mov_b32 v251, s{64+2*i}\nbuffer_store_dword v251, v250, s[96:99], s60 offen offset:{4*i}")
    A("s_waitcnt vmcnt(0)")
```

```python
from common import *

FINE = 'fine' in sys.argv
NOLOAD = 'noload' in sys.argv
NOBAR = 'nobar' in sys.argv
NSUB = 20
MIXED = 'mixed' in sys.argv
def wg_map_p1(A):
    if MIXED:
        A("""
        s_and_b32 s6, s2, 7
        s_lshr_b32 s7, s2, 3
        s_lshr_b32 s4, s6, 1
        s_lshl_b32 s4, s4, 2
        s_lshr_b32 s5, s7, 2
        s_and_b32 s5, s5, 3
        s_add_u32 s4, s4, s5
        s_and_b32 s5, s6, 1
        s_lshl_b32 s5, s5, 2
        s_and_b32 s6, s7, 3
        s_add_u32 s5, s5, s6
        s_lshr_b32 s6, s7, 4
        """)
        return
    A("""
    s_and_b32 s6, s2, 7
    s_lshr_b32 s7, s2, 3
    s_and_b32 s4, s6, 2
    s_lshl_b32 s4, s4, 2
    s_lshr_b32 s5, s7, 2
    s_add_u32 s4, s4, s5
    s_and_b32 s5, s6, 1
    s_lshl_b32 s5, s5, 2
    s_and_b32 s7, s7, 3
    s_add_u32 s5, s5, s7
    s_lshr_b32 s6, s6, 2
    """)

def udiv_small(A, q, d, r, n, tmp_s, qmax):
    for sh in range(10, 24):
        m = -(-(1 << sh) // n)
        if all((x * m) >> sh == x // n for x in range(qmax)) and m * qmax < (1 << 32) and m < (1 << 24): break
    else: raise ValueError
    A(f"s_mov_b32 s{tmp_s}, {m}")
    A(f"v_mul_u32_u24 v{d}, s{tmp_s}, v{q}")
    A(f"v_lshrrev_b32 v{d}, {sh}, v{d}")
    A(f"v_mul_u32_u24 v{r}, {n}, v{d}")
    A(f"v_sub_u32 v{r}, v{q}, v{r}")

class Role:
    pass
QKV = Role(); QKV.name = "qkv"
QKV.W_SLOT = 18432; QKV.NW = 5; QKV.W_RING = 0
QKV.X_SLOT = 18432; QKV.NX = 3; QKV.X_RING = 92160; QKV.MT = 9
QKV.WI = 6
QKV.GATE = 147456
Z = Role(); Z.name = "z"
Z.W_SLOT = 12288; Z.NW = 6; Z.W_RING = 0
Z.X_SLOT = 16384; Z.NX = 3; Z.X_RING = 73728; Z.MT = 8
Z.WI = 4

def barrier_plan_loader(R, A, issue, Q, tags_needed, late=None):
    for u in range(NSUB):
        n = Q.wait_for(tags_needed(u))
        if FINE and u in (9, 10): stamp(A, 8 + 3 * (u - 9), cyc=True)
        A(f"s_waitcnt vmcnt({min(n, 63)})"); Q.retire(min(n, 63))
        if FINE and u in (9, 10): stamp(A, 9 + 3 * (u - 9), cyc=True)
        if not (NOBAR and R is QKV and u > 0): A("s_barrier")
        if FINE and u in (9, 10): stamp(A, 10 + 3 * (u - 9), cyc=True)
        if u == 0: stamp(A, 2)
        issue(u)
        if late and u == NSUB - 1: late(A)

def w_loader(A, R, late=None):
    SRD = 8
    A("s_sub_u32 s16, s3, 4")
    if R is QKV:
        make_srd(A, SRD, P_WQKV, 0, 640 * 3840)
        A("s_mul_i32 s17, s5, 160\ns_and_b32 s18, s5, 1\ns_lshl_b32 s18, s18, 5\ns_sub_u32 s17, s17, s18")
        rowc, rs_src = 36, 3840
    else:
        make_srd(A, SRD, P_WIN, 0, 640 * 3072)
        A("s_mul_i32 s17, s5, 192")
        rowc, rs_src = 24, 3072
    VO = 2
    for e in range(R.WI):
        A(f"s_mul_i32 s18, s16, {64 * R.WI}\ns_add_u32 s18, s18, {64 * e}\nv_add_u32 v12, s18, v0")
        udiv_small(A, 12, 13, 14, rowc, 19, 64 * R.WI * 3)
        if R is QKV:
            A("v_lshrrev_b32 v15, 2, v13\nv_and_b32 v15, 2, v15\nv_xor_b32 v14, v14, v15")
            udiv_small(A, 14, 15, 16, 12, 19, 36)
            A(f"s_movk_i32 s19, 1280\nv_mul_u32_u24 v15, s19, v15\nv_lshl_add_u32 v15, v16, 4, v15")
        else:
            A("""
            v_and_b32 v15, 2, v13
            v_lshrrev_b32 v16, 1, v13
            v_and_b32 v16, 4, v16
            v_or_b32 v15, v15, v16
            v_xor_b32 v14, v14, v15
            """)
            udiv_small(A, 14, 15, 16, 12, 19, 24)
            A(f"s_movk_i32 s19, 1536\nv_mul_u32_u24 v15, s19, v15\nv_lshl_add_u32 v15, v16, 4, v15")
        A(f"s_movk_i32 s19, {rs_src}\nv_mul_u32_u24 v13, s19, v13\nv_add3_u32 v{VO+e}, v13, v15, s17")
    A(f"s_mul_i32 s18, s16, {R.WI * 1024}")
    Q = VmQueue()
    def issue_w(u):
        A(f"s_mov_b32 s20, {u * 32 * rs_src}")
        for e in range(R.WI):
            A(f"s_add_u32 m0, s18, {R.W_RING + (u % R.NW) * R.W_SLOT + e * 1024}")
            if not NOLOAD or u < 5: A(f"buffer_load_dwordx4 v{VO+e}, s[{SRD}:{SRD+3}], s20 offen lds")
        Q.issue(("w", u), R.WI)
    for u in range(2): issue_w(u)
    stamp(A, 1)
    st = {"n": 2}
    def issue(u):
        lim = min(NSUB, max(R.NW, u - 1 + R.NW)); c = 0
        while st["n"] < lim and c < 2:
            issue_w(st["n"]); st["n"] += 1; c += 1
    barrier_plan_loader(R, A, issue, Q, lambda u: {("w", u)}, late)

PACK_LDS = 149504
def pack_issue(A):
    skip = A.newlabel("Lpk")
    A("s_sub_u32 s27, s3, 4\ns_lshl_b32 s27, s27, 8\ns_add_u32 s27, s27, s2")
    A(f"s_cmp_ge_u32 s27, 352\ns_cbranch_scc1 {skip}")
    A("s_and_b32 s32, s27, 7\ns_lshr_b32 s33, s27, 3")
    A(f"s_cmp_lt_u32 s33, 20\ns_cselect_b32 s28, s{P_WO}, s{P_WOUT}\ns_cselect_b32 s29, s{P_WO+1}, s{P_WOUT+1}\ns_cselect_b32 s34, 0, 20")
    A(f"s_mov_b32 s30, {768*1280}\ns_cselect_b32 s30, {640*1280}, s30\ns_mov_b32 s31, 0x00020000")
    A("s_sub_u32 s34, s33, s34\ns_mul_i32 s34, s34, 40960")
    A("s_mul_i32 s35, s32, 160\ns_and_b32 s32, s32, 1\ns_lshl_b32 s32, s32, 5\ns_sub_u32 s35, s35, s32\ns_add_u32 s34, s34, s35")
    A(f"s_sub_u32 s35, s3, 4\ns_mul_i32 s35, s35, 6144\ns_add_u32 s35, s35, {PACK_LDS}")
    for e in range(6):
        A(f"v_add_u32 v17, {64*e}, v0")
        udiv_small(A, 17, 18, 19, 12, 32, 384)
        A(f"s_movk_i32 s32, 1280\nv_mul_u32_u24 v18, s32, v18\nv_lshl_add_u32 v18, v19, 4, v18")
        A(f"s_add_u32 m0, s35, {e*1024}\nbuffer_load_dwordx4 v18, s[28:31], s34 offen lds")
    A.label(skip)

def pack_finish(A, sc_st="", flag=None, lazy=False):
    skip = A.newlabel("Lpf")
    A(f"s_cmp_ge_u32 s27, 352\ns_cbranch_scc1 {skip}")
    if not lazy: A("s_waitcnt vmcnt(0)")
    A("s_and_b32 s32, s27, 7\ns_lshr_b32 s33, s27, 3")
    A("""
    v_and_b32 v17, 15, v0
    v_lshrrev_b32 v18, 4, v0
    v_lshrrev_b32 v19, 2, v17
    v_and_b32 v20, 3, v17
    s_cmp_lt_u32 s33, 20
    s_cselect_b32 s34, 3, 2
    s_cselect_b32 s35, 4, 16
    v_lshlrev_b32 v18, s34, v18
    v_add_u32 v18, v18, v19
    v_mul_u32_u24 v18, 192, v18
    v_lshl_add_u32 v18, v20, 3, v18
    s_and_b32 s32, s27, 1
    s_lshl_b32 s32, s32, 5
    """)
    A(f"s_sub_u32 s34, s3, 4\ns_mul_i32 s34, s34, 6144\ns_add_u32 s34, s34, {PACK_LDS}\ns_add_u32 s34, s34, s32")
    A("v_add_u32 v18, s34, v18\ns_mul_i32 s35, s35, 192\nv_add_u32 v19, s35, v18")
    for nu in range(5):
        A(f"ds_read_b64_tr_b16 v[{24+4*nu}:{25+4*nu}], v18 offset:{nu*32}\nds_read_b64_tr_b16 v[{26+4*nu}:{27+4*nu}], v19 offset:{nu*32}")
    A("s_and_b32 s32, s27, 7\ns_mul_i32 s32, s32, 44\ns_add_u32 s32, s32, s33\ns_mul_i32 s32, s32, 5120")
    make_srd(A, 28, P_WS, WP_OFF, 8 * WP_CB)
    A("v_lshlrev_b32 v20, 4, v0\ns_waitcnt lgkmcnt(0)")
    for nu in range(5):
        A(f"s_add_u32 s33, s32, {nu*1024}\nbuffer_store_dwordx4 v[{24+4*nu}:{27+4*nu}], v20, s[28:31], s33 offen {sc_st}")
    if not lazy: A("s_waitcnt vmcnt(0)")
    if flag: flag()
    A.label(skip)

def x_loader(A, R, late=None):
    SRD = 8
    make_srd(A, SRD, P_AX, 0, 2048 * 1280)
    NI = 2 * R.MT
    A("""
    v_lshrrev_b32 v4, 3, v0
    v_and_b32 v5, 7, v0
    v_lshrrev_b32 v6, 1, v4
    v_xor_b32 v7, v5, v6
    s_movk_i32 s19, 1280
    v_mul_u32_u24 v8, s19, v4
    v_lshl_add_u32 v2, v7, 4, v8
    v_xor_b32 v7, 4, v7
    v_lshl_add_u32 v3, v7, 4, v8
    v_add_u32 v3, 10240, v3
    """)
    if R is QKV:
        A("s_lshl_b32 s17, s4, 7\ns_sub_u32 s17, s17, 16")
        A("""
        v_add_u32 v11, s17, v4
        v_max_i32 v11, 0, v11
        v_mul_u32_u24 v11, s19, v11
        v_xor_b32 v7, v5, v6
        v_lshl_add_u32 v9, v7, 4, v11
        v_add_u32 v11, s17, v4
        v_add_u32 v11, 8, v11
        v_max_i32 v11, 0, v11
        v_mul_u32_u24 v11, s19, v11
        v_xor_b32 v7, 4, v7
        v_lshl_add_u32 v10, v7, 4, v11
        """)
        A("s_mul_i32 s17, s17, 1280")
        make_srd(A, 12, P_GATE, 0, 1280)
        A(f"v_lshlrev_b32 v12, 4, v0\ns_mov_b32 m0, {R.GATE}\ns_nop 0\nbuffer_load_dwordx4 v12, s[12:15], 0 offen lds\nbuffer_load_dwordx4 v12, s[12:15], 0 offen offset:1024 lds")
    else:
        A("s_lshl_b32 s17, s4, 7\ns_mul_i32 s17, s17, 1280")
    Q = VmQueue()
    if R is QKV: Q.issue(("g", 0), 2)
    def issue_x(vs, e0, e1):
        for e in range(e0, e1):
            A(f"s_add_u32 m0, s21, {e * 1024}" if False else f"s_mov_b32 m0, {R.X_RING + (vs % R.NX) * R.X_SLOT + e * 1024}")
            if R is QKV and e < 2:
                A(f"s_mov_b32 s20, {vs * 128}")
                A(f"buffer_load_dwordx4 v{9+e}, s[{SRD}:{SRD+3}], s20 offen lds")
            else:
                A(f"s_add_u32 s20, s17, {(e >> 1) * 16 * 1280 + vs * 128}")
                if not NOLOAD or vs < 3: A(f"buffer_load_dwordx4 v{2 + (e & 1)}, s[{SRD}:{SRD+3}], s20 offen lds")
        Q.issue(("x", vs), e1 - e0)
    issue_x(0, 0, NI)
    stamp(A, 1)
    half = NI // 2
    plan = {}
    plan[0] = [(1, 0, NI)]
    plan[1] = [(2, 0, NI)]
    for vs in range(3, 10):
        u = 2 * (vs - 3) + 3
        plan.setdefault(u, []).append((vs, 0, half))
        plan.setdefault(u + 1, []).append((vs, half, NI))
    def issue(u):
        for (vs, e0, e1) in plan.get(u, []): issue_x(vs, e0, e1)
    need = lambda u: ({("x", u >> 1), ("g", 0)})
    barrier_plan_loader(R, A, issue, Q, need, late)

class DsQ:
    def __init__(self): self.q = []
    def issue(self, tag): self.q.append(tag)
    def wait(self, tags):
        last = -1
        for i, t in enumerate(self.q):
            if t in tags: last = i
        n = len(self.q) - 1 - last
        if last < 0: return None
        self.q = self.q[last + 1:]
        return n

Q_ACC = 16; Q_WF = [160, 176]; Q_XF = [192 + 4 * i for i in range(6)]
Q_VW = [216, 217, 218, 219]; Q_VWC = [220, 221, 222, 223]; Q_VXA = [224, 225]; Q_VXC = [226, 227]; Q_VG = 228

def tile_info(T):
    seg, t = T // 5, T % 5
    return (6 * seg + t) * 32, t & 1

def qkv_consumer(A):
    A("v_and_b32 v1, 15, v0\nv_lshrrev_b32 v2, 4, v0")
    A(f"""
    v_lshrrev_b32 v3, 1, v1
    v_xor_b32 v3, v3, v2
    v_lshlrev_b32 v3, 4, v3
    v_lshl_add_u32 v{Q_VXC[0]}, v1, 7, v3
    v_xor_b32 v{Q_VXC[1]}, 64, v{Q_VXC[0]}
    """)
    A(f"""
    v_lshrrev_b32 v3, 2, v1
    v_lshl_add_u32 v3, v2, 3, v3
    s_movk_i32 s19, 576
    v_mul_u32_u24 v3, s19, v3
    v_and_b32 v4, 3, v1
    v_lshl_add_u32 v3, v4, 3, v3
    s_and_b32 s20, s5, 1
    s_lshl_b32 s21, s20, 5
    v_add_u32 v3, s21, v3
    v_and_b32 v4, 1, v2
    v_lshlrev_b32 v4, 5, v4
    """)
    for k in range(4):
        A(f"""
        s_lshl_b32 s21, s3, 2
        s_add_u32 s21, s21, {k}
        s_mul_i32 s22, s21, 52
        s_lshr_b32 s22, s22, 8
        s_mul_i32 s23, s22, 5
        s_sub_u32 s23, s21, s23
        s_mul_i32 s22, s22, 6
        s_add_u32 s22, s22, s23
        s_lshl_b32 s22, s22, 5
        s_add_u32 s23, s23, s20
        s_and_b32 s23, s23, 1
        v_add_u32 v5, v3, v4
        v_sub_u32 v6, v3, v4
        s_cmp_eq_u32 s23, 0
        s_cselect_b64 vcc, -1, 0
        v_cndmask_b32 v5, v6, v5, vcc
        v_add_u32 v{Q_VWC[k]}, s22, v5
        """)
    for T in range(16): assert (T * 52) >> 8 == T // 5

def qkv_main(A, gate, mid=None):
    R = QKV
    for i in range(144): A(f"v_mov_b32 v{Q_ACC+i}, 0")
    if gate: A(f"v_lshlrev_b32 v{Q_VG}, 4, v2\nv_add_u32 v{Q_VG}, {R.GATE}, v{Q_VG}")
    D = DsQ()
    def rd_w(buf, k, half, tag):
        d = Q_WF[buf] + 4 * k
        if gate and k == 3:
            if half == 0:
                A(f"ds_read_b128 v[{d}:{d+3}], v{Q_VG}"); D.issue(tag)
            else:
                A(f"v_add_u32 v{Q_VG}, 64, v{Q_VG}")
            return
        A(f"ds_read_b64_tr_b16 v[{d+2*half}:{d+2*half+1}], v{Q_VW[k]} offset:{half*4*576}"); D.issue(tag)
    def rd_x(slot, m, kk, tag):
        d = Q_XF[slot]
        A(f"ds_read_b128 v[{d}:{d+3}], v{Q_VXA[kk]} offset:{m * 2048}"); D.issue(tag)
    A(f"s_mov_b32 s22, {R.W_RING}\ns_mov_b32 s23, {R.X_RING}\ns_mov_b32 s24, 0")
    for k in range(4): A(f"v_add_u32 v{Q_VW[k]}, s22, v{Q_VWC[k]}")
    for j in range(2): A(f"v_add_u32 v{Q_VXA[j]}, s23, v{Q_VXC[j]}")
    stamp(A, 1)
    A("s_barrier")
    stamp(A, 2)
    for k in range(4):
        rd_w(0, k, 0, ("w", 0, k)); rd_w(0, k, 1, ("w", 0, k))
    for m in range(4): rd_x(m % 6, m, 0, ("x", 0, m))
    def substage(kk, has_next, sim):
        base = 9 * kk
        fill = {}
        def add(m, k, fn): fill.setdefault((m, k), []).append(fn)
        for m in range(9):
            if m + 4 < 9: add(m, 0, lambda m=m: rd_x((base + m + 4) % 6, m + 4, kk, ("x", sim, m + 4)))
            elif has_next: add(m, 0, lambda m=m: rd_x((base + m + 4) % 6, m + 4 - 9, kk ^ 1, ("x", sim + 1, m + 4 - 9)))
        if has_next:
            add(0, 1, lambda: A(f"s_add_u32 s22, s22, {R.W_SLOT}"))
            add(0, 2, lambda: A(f"s_cmp_eq_u32 s22, {R.W_RING + R.NW*R.W_SLOT}\ns_cselect_b32 s22, {R.W_RING}, s22"))
            for k in range(4): add(1, k, lambda k=k: A(f"v_add_u32 v{Q_VW[k]}, s22, v{Q_VWC[k]}"))
            def bar():
                if FINE and sim < 2:
                    l1 = A.newlabel("Lf"); A(f"s_cmp_lg_u32 s24, 4\ns_cbranch_scc1 {l1}"); stamp(A, 8 + 3 * sim, cyc=True); A.label(l1)
                if not NOBAR: A("s_barrier")
                if FINE and sim < 2:
                    l1 = A.newlabel("Lf"); A(f"s_cmp_lg_u32 s24, 4\ns_cbranch_scc1 {l1}"); stamp(A, 9 + 3 * sim, cyc=True); A.label(l1)
            add(2, 3, bar)
            for k in range(4):
                add(3 + k, 1, lambda k=k: rd_w(kk ^ 1, k, 0, ("w", sim + 1, k)))
                add(3 + k, 2, lambda k=k: rd_w(kk ^ 1, k, 1, ("w", sim + 1, k)))
            if kk == 1:
                add(2, 1, lambda: A(f"s_add_u32 s23, s23, {R.X_SLOT}"))
                add(2, 2, lambda: A(f"s_cmp_eq_u32 s23, {R.X_RING + R.NX*R.X_SLOT}\ns_cselect_b32 s23, {R.X_RING}, s23"))
                add(4, 1, lambda: A(f"v_add_u32 v{Q_VXA[0]}, s23, v{Q_VXC[0]}"))
                add(4, 3, lambda: A(f"v_add_u32 v{Q_VXA[1]}, s23, v{Q_VXC[1]}"))
        for m in range(9):
            for k in range(4):
                n = D.wait({("x", sim, m), ("w", sim, k)})
                if n is not None: A(f"s_waitcnt lgkmcnt({min(n, 15)})")
                d = Q_ACC + (k * 9 + m) * 4; wf = Q_WF[kk] + 4 * k; xf = Q_XF[(base + m) % 6]
                A(f"v_mfma_f32_16x16x32_bf16 v[{d}:{d+3}], v[{wf}:{wf+3}], v[{xf}:{xf+3}], v[{d}:{d+3}]")
                for fn in fill.get((m, k), []): fn()
    loop = A.newlabel("Lqkv")
    A.label(loop)
    if mid:
        lm = A.newlabel("Lmid"); A(f"s_cmp_lg_u32 s24, 3\ns_cbranch_scc1 {lm}"); mid(A); A.label(lm)
    substage(0, True, 0)
    substage(1, True, 1)
    A("s_add_u32 s24, s24, 1\ns_cmp_lt_u32 s24, 9")
    A(f"s_cbranch_scc1 {loop}")
    substage(0, True, 2)
    substage(1, False, 3)

def qkv_epilogue_store(A, gate):
    A(f"s_movk_i32 s19, 488\nv_mul_u32_u24 v3, s19, v1\nv_lshl_add_u32 v3, v2, 3, v3\ns_lshl_b32 s19, s3, 7\nv_add_u32 v3, s19, v3")
    ntile = 3 if gate else 4
    T = 160
    c = 0
    for k in range(ntile):
        for m in range(9):
            d = Q_ACC + (k * 9 + m) * 4
            o = T + 2 * (c % 12); c += 1
            A(f"v_cvt_pk_bf16_f32 v{o}, v{d}, v{d+1}\nv_cvt_pk_bf16_f32 v{o+1}, v{d+2}, v{d+3}")
            A(f"ds_write_b64 v3, v[{o}:{o+1}] offset:{16*m*488 + 32*k}")
    if gate:
        skip = A.newlabel("Lg")
        A(f"s_cmp_lg_u32 s5, 0\ns_cbranch_scc1 {skip}")
        A("s_lshl_b32 s18, s4, 9")
        make_srd(A, 8, P_WS, G_OFF, 512, off_sgpr=18)
        A("v_lshlrev_b32 v4, 2, v1\ns_mov_b64 s[12:13], exec\ns_mov_b64 exec, 0xffff")
        for m in range(1, 9):
            d = Q_ACC + (3 * 9 + m) * 4
            A(f"v_mul_f32 v{d}, 0xbfb8aa3b, v{d}\nv_exp_f32 v{d}, v{d}\nv_add_f32 v{d}, 1.0, v{d}\nv_rcp_f32 v{d}, v{d}")
            A(f"buffer_store_dword v{d}, v4, s[8:11], 0 offen offset:{(m-1)*64} SC_ST")
        A("s_mov_b64 exec, s[12:13]")
        A.label(skip)

def attention(A, sc_st=""):
    OST = 73728
    RS = 488
    A(f"""
    v_and_b32 v10, 3, v0
    v_lshrrev_b32 v11, 2, v0
    v_and_b32 v12, 3, v11
    v_lshrrev_b32 v13, 4, v0
    v_and_b32 v14, 1, v13
    v_lshrrev_b32 v15, 1, v13
    s_lshl_b32 s16, s3, 4
    """)
    A(f"""
    v_lshlrev_b32 v16, 3, v15
    v_add_u32 v16, v16, v14
    v_lshl_add_u32 v17, v10, 1, v16
    v_add_u32 v17, s16, v17
    s_movk_i32 s19, {RS}
    v_mul_u32_u24 v17, s19, v17
    v_mul_u32_u24 v18, 40, v12
    v_add_u32 v20, v17, v18
    """)
    A(f"""
    v_lshl_add_u32 v17, v12, 1, v16
    v_add_u32 v17, s16, v17
    v_mul_u32_u24 v17, s19, v17
    v_mul_u32_u24 v18, 40, v10
    v_add3_u32 v21, v17, v18, 0
    """)
    QF = 24
    KF = 34
    VF = 64
    S = 96
    P = 108
    PK = 120
    O = 128
    for dl in range(5): A(f"ds_read_b64 v[{QF+2*dl}:{QF+2*dl+1}], v20 offset:{16*RS + 8*dl}")
    for b in range(3):
        for dl in range(5): A(f"ds_read_b64 v[{KF+2*(b*5+dl)}:{KF+2*(b*5+dl)+1}], v20 offset:{b*8*RS + 160 + 8*dl}")
    A("s_waitcnt lgkmcnt(0)")
    for b in range(3):
        for dl in range(5): A(f"ds_read_b64_tr_b16 v[{VF+2*(b*5+dl)}:{VF+2*(b*5+dl)+1}], v21 offset:{b*8*RS + 320 + 8*dl}")
    for dl in range(5):
        for b in range(3):
            c = f"v[{S+4*b}:{S+4*b+3}]" if dl else "0"
            A(f"v_mfma_f32_4x4x4_16b_bf16 v[{S+4*b}:{S+4*b+3}], v[{KF+2*(b*5+dl)}:{KF+2*(b*5+dl)+1}], v[{QF+2*dl}:{QF+2*dl+1}], {c}")
    A(f"v_cmp_eq_u32 s[20:21], 0, v10\nv_cmp_ge_u32 s[22:23], 1, v10\nv_cmp_ge_u32 s[24:25], 2, v10")
    L = [S+4, S+5, S+6, S+7, S+8, 94, 95, 19]
    A(f"v_cndmask_b32 v94, v{S+9}, v{S+1}, s[20:21]\nv_cndmask_b32 v95, v{S+10}, v{S+2}, s[22:23]\nv_cndmask_b32 v19, v{S+11}, v{S+3}, s[24:25]")
    nomask = A.newlabel("Lnm")
    A(f"s_cmp_lg_u32 s4, 0\ns_cbranch_scc1 {nomask}\ns_cmp_gt_u32 s3, 0\ns_cbranch_scc1 {nomask}")
    A("v_lshlrev_b32 v22, 2, v15\nv_sub_u32 v22, 8, v22\nv_mov_b32 v23, 0xff800000")
    for idx, kap in enumerate([4, 5, 6, 7, 8]):
        A(f"v_cmp_gt_u32 vcc, v22, {kap}\nv_cndmask_b32 v{L[idx]}, v{L[idx]}, v23, vcc")
    for (reg, lo, hi, sm) in ((94, 1, 9, 20), (95, 2, 10, 22), (19, 3, 11, 24)):
        A(f"v_cndmask_b32 v9, {hi}, {lo}, s[{sm}:{sm+1}]\nv_cmp_gt_u32 vcc, v22, v9\nv_cndmask_b32 v{reg}, v{reg}, v23, vcc")
    A.label(nomask)
    import math
    cst = math.log2(math.e) / math.sqrt(20.0)
    import struct
    cbits = struct.unpack("<I", struct.pack("<f", cst))[0]
    A(f"v_max3_f32 v8, v{L[0]}, v{L[1]}, v{L[2]}\nv_max3_f32 v8, v8, v{L[3]}, v{L[4]}\nv_max3_f32 v8, v8, v{L[5]}, v{L[6]}\nv_max_f32 v8, v8, v{L[7]}")
    A(f"s_mov_b32 s26, {cbits:#x}\nv_mul_f32 v8, s26, v8")
    for i in range(8): A(f"v_fma_f32 v{L[i]}, v{L[i]}, s26, -v8")
    for i in range(8): A(f"v_exp_f32 v{L[i]}, v{L[i]}")
    A(f"v_add_f32 v8, v{L[0]}, v{L[1]}\nv_add_f32 v9, v{L[2]}, v{L[3]}\nv_add_f32 v8, v8, v{L[4]}\nv_add_f32 v9, v9, v{L[5]}\nv_add_f32 v8, v8, v{L[6]}\nv_add_f32 v9, v9, v{L[7]}\nv_add_f32 v8, v8, v9\nv_rcp_f32 v8, v8")
    for i in range(8): A(f"v_mul_f32 v{L[i]}, v{L[i]}, v8")
    A(f"v_mov_b32 v{P}, 0")
    A(f"v_cndmask_b32 v{P+1}, 0, v94, s[20:21]\nv_cndmask_b32 v{P+9}, v94, 0, s[20:21]")
    A(f"v_cndmask_b32 v{P+2}, 0, v95, s[22:23]\nv_cndmask_b32 v{P+10}, v95, 0, s[22:23]")
    A(f"v_cndmask_b32 v{P+3}, 0, v19, s[24:25]\nv_cndmask_b32 v{P+11}, v19, 0, s[24:25]")
    src = {0: P, 1: P+1, 2: P+2, 3: P+3, 4: L[0], 5: L[1], 6: L[2], 7: L[3], 8: L[4], 9: P+9, 10: P+10, 11: P+11}
    for b in range(3):
        A(f"v_cvt_pk_bf16_f32 v{PK+2*b}, v{src[4*b]}, v{src[4*b+1]}\nv_cvt_pk_bf16_f32 v{PK+2*b+1}, v{src[4*b+2]}, v{src[4*b+3]}")
    A("s_waitcnt lgkmcnt(0)")
    for b in range(3):
        for dl in range(5):
            c = f"v[{O+4*dl}:{O+4*dl+3}]" if b else "0"
            A(f"v_mfma_f32_4x4x4_16b_bf16 v[{O+4*dl}:{O+4*dl+3}], v[{VF+2*(b*5+dl)}:{VF+2*(b*5+dl)+1}], v[{PK+2*b}:{PK+2*b+1}], {c}")
    A(f"""
    v_lshl_add_u32 v17, v10, 1, v16
    v_mul_u32_u24 v17, 176, v17
    v_mul_u32_u24 v18, 40, v12
    s_mul_i32 s18, s3, 2816
    s_add_u32 s18, s18, {OST}
    v_add3_u32 v17, v17, v18, s18
    """)
    for dl in range(5):
        A(f"v_cvt_pk_bf16_f32 v{PK+6}, v{O+4*dl}, v{O+4*dl+1}\nv_cvt_pk_bf16_f32 v{PK+7}, v{O+4*dl+2}, v{O+4*dl+3}")
        A(f"ds_write_b64 v17, v[{PK+6}:{PK+7}] offset:{8*dl}")
    A(f"""
    v_and_b32 v1, 15, v0
    v_lshrrev_b32 v2, 4, v0
    v_mul_u32_u24 v17, 176, v1
    v_add_u32 v17, s18, v17
    s_and_b32 s20, s5, 1
    s_lshl_b32 s21, s20, 1
    v_subrev_u32 v18, s21, v2
    """)
    A(f"s_lshl_b32 s22, s4, 3\ns_add_u32 s22, s22, s3\ns_mul_i32 s22, s22, {44*1024}\ns_mul_i32 s23, s5, 10\ns_lshr_b32 s23, s23, 2\ns_lshl_b32 s23, s23, 10\ns_add_u32 s22, s22, s23")
    make_srd(A, 8, P_WS, A3_OFF, A3_SIZE)
    A("v_lshlrev_b32 v19, 4, v0\ns_waitcnt lgkmcnt(0)")
    A("s_mov_b64 s[12:13], exec")
    for n in range(3):
        A(f"v_add_u32 v22, {4*n}, v18\nv_cmp_gt_u32 vcc, 10, v22\nv_lshl_add_u32 v23, v22, 4, v17")
        A(f"s_and_b64 exec, s[12:13], vcc")
        A(f"ds_read_b128 v[{O+4*n}:{O+4*n+3}], v23")
        A(f"s_waitcnt lgkmcnt(0)")
        A(f"buffer_store_dwordx4 v[{O+4*n}:{O+4*n+3}], v19, s[8:11], s22 offen offset:{n*1024} {sc_st}")
        A("s_mov_b64 exec, s[12:13]")

Z_ACC1 = 16; Z_ACC2 = 64
Z_WF = [112, 136]; Z_XF = [160, 176]
Z_VXA = [192, 193]; Z_VXC = [194, 195]; Z_VW = [196, 197, 198, 199, 200, 201]; Z_VWC = [202, 203, 204, 205, 206, 207]

def z_consumer(A, mid=None):
    R = Z
    A("v_and_b32 v1, 15, v0\nv_lshrrev_b32 v2, 4, v0\ns_lshr_b32 s16, s3, 1\ns_and_b32 s17, s3, 1")
    A(f"""
    v_lshrrev_b32 v3, 1, v1
    v_xor_b32 v3, v3, v2
    v_lshlrev_b32 v3, 4, v3
    v_lshl_add_u32 v{Z_VXC[0]}, v1, 7, v3
    s_lshl_b32 s18, s16, 13
    v_add_u32 v{Z_VXC[0]}, s18, v{Z_VXC[0]}
    v_xor_b32 v{Z_VXC[1]}, 64, v{Z_VXC[0]}
    """)
    A(f"""
    v_lshrrev_b32 v3, 2, v1
    v_lshl_add_u32 v4, v2, 3, v3
    s_movk_i32 s19, 384
    v_mul_u32_u24 v4, s19, v4
    v_and_b32 v5, 3, v1
    v_lshl_add_u32 v4, v5, 3, v4
    v_lshrrev_b32 v3, 1, v3
    v_and_b32 v5, 1, v2
    v_lshl_or_b32 v3, v5, 1, v3
    s_mul_i32 s18, s17, 3
    """)
    for k in range(6):
        base = k if k < 3 else 6 + (k - 3)
        A(f"s_add_u32 s19, s18, {base}\nv_xor_b32 v5, s19, v3\nv_lshl_add_u32 v{Z_VWC[k]}, v5, 5, v4")
    for i in range(96): A(f"v_mov_b32 v{Z_ACC1+i}, 0")
    D = DsQ()
    def set_w():
        for k in range(6): A(f"v_add_u32 v{Z_VW[k]}, s22, v{Z_VWC[k]}")
    def set_x():
        A(f"v_add_u32 v{Z_VXA[0]}, s23, v{Z_VXC[0]}\nv_add_u32 v{Z_VXA[1]}, s23, v{Z_VXC[1]}")
    def rd_w(buf, k, tag):
        d = Z_WF[buf] + 4 * k
        A(f"ds_read_b64_tr_b16 v[{d}:{d+1}], v{Z_VW[k]}"); D.issue(tag)
        A(f"ds_read_b64_tr_b16 v[{d+2}:{d+3}], v{Z_VW[k]} offset:{4*384}"); D.issue(tag)
    def rd_x(buf, m, kk, tag):
        d = Z_XF[buf] + 4 * m
        A(f"ds_read_b128 v[{d}:{d+3}], v{Z_VXA[kk]} offset:{m * 2048}"); D.issue(tag)
    def adv_w(): A(f"s_add_u32 s22, s22, {R.W_SLOT}\ns_cmp_eq_u32 s22, {R.W_RING + R.NW*R.W_SLOT}\ns_cselect_b32 s22, {R.W_RING}, s22")
    def adv_x(): A(f"s_add_u32 s23, s23, {R.X_SLOT}\ns_cmp_eq_u32 s23, {R.X_RING + R.NX*R.X_SLOT}\ns_cselect_b32 s23, {R.X_RING}, s23")
    A(f"s_mov_b32 s22, {R.W_RING}\ns_mov_b32 s23, {R.X_RING}\ns_mov_b32 s24, 0")
    set_w(); set_x()
    stamp(A, 1)
    A("s_barrier")
    stamp(A, 2)
    ORDER = [("x", 0), ("w", 3), ("w", 4), ("w", 5), ("w", 0), ("w", 1), ("w", 2), ("x", 1), ("x", 2), ("x", 3)]
    for (t, idx) in ORDER:
        if t == "x": rd_x(0, idx, 0, ("x", 0, idx))
        else: rd_w(0, idx, ("w", 0, idx))
    def substage(kk, has_next, sim):
        pend = list(ORDER) if has_next else []
        cnt = 0
        for m in range(4):
            for k in (3, 4, 5, 0, 1, 2):
                n = D.wait({("x", sim, m), ("w", sim, k)})
                if n is not None: A(f"s_waitcnt lgkmcnt({min(n, 15)})")
                wf = Z_WF[kk] + 4 * k; xf = Z_XF[kk] + 4 * m
                if k < 3:
                    d = Z_ACC1 + (k * 4 + m) * 4
                    A(f"v_mfma_f32_16x16x32_bf16 v[{d}:{d+3}], v[{wf}:{wf+3}], v[{xf}:{xf+3}], v[{d}:{d+3}]")
                else:
                    d = Z_ACC2 + (m * 3 + (k - 3)) * 4
                    A(f"v_mfma_f32_16x16x32_bf16 v[{d}:{d+3}], v[{xf}:{xf+3}], v[{wf}:{wf+3}], v[{d}:{d+3}]")
                cnt += 1
                if cnt == 6 and has_next:
                    adv_w(); set_w()
                    if kk == 1: adv_x(); set_x()
                    if FINE and sim < 2:
                        l1 = A.newlabel("Lf"); A(f"s_cmp_lg_u32 s24, 4\ns_cbranch_scc1 {l1}"); stamp(A, 8 + 3 * sim, cyc=True); A.label(l1)
                    A("s_barrier")
                    if FINE and sim < 2:
                        l1 = A.newlabel("Lf"); A(f"s_cmp_lg_u32 s24, 4\ns_cbranch_scc1 {l1}"); stamp(A, 9 + 3 * sim, cyc=True); A.label(l1)
                if cnt >= 6 and pend:
                    t, idx = pend.pop(0)
                    if t == "x": rd_x(kk ^ 1, idx, kk ^ 1, ("x", sim + 1, idx))
                    else: rd_w(kk ^ 1, idx, ("w", sim + 1, idx))
    loop = A.newlabel("Lz")
    A.label(loop)
    if mid:
        lm = A.newlabel("Lmid"); A(f"s_cmp_lg_u32 s24, 3\ns_cbranch_scc1 {lm}"); mid(A); A.label(lm)
    substage(0, True, 0)
    substage(1, True, 1)
    A("s_add_u32 s24, s24, 1\ns_cmp_lt_u32 s24, 9")
    A(f"s_cbranch_scc1 {loop}")
    substage(0, True, 2)
    substage(1, False, 3)

GELU_C1 = -2.0 * 1.4426950408889634 * 0.7978845608028654
GELU_C2 = GELU_C1 * 0.044715
import struct
def fbits(x): return struct.unpack("<I", struct.pack("<f", x))[0]

def gelu_regs(A, regs0, n, C1, C2, T):
    for i in range(0, n, 4):
        for h in (0, 2):
            x = regs0 + i + h; t = T + 2 * h
            A(f"v_pk_mul_f32 v[{t}:{t+1}], v[{x}:{x+1}], v[{x}:{x+1}]")
        for h in (0, 2):
            t = T + 2 * h
            A(f"v_pk_fma_f32 v[{t}:{t+1}], v[{t}:{t+1}], v[{C2}:{C2+1}], v[{C1}:{C1+1}]")
        for h in (0, 2):
            x = regs0 + i + h; t = T + 2 * h
            A(f"v_pk_mul_f32 v[{t}:{t+1}], v[{t}:{t+1}], v[{x}:{x+1}]")
        for h in (0, 2):
            t = T + 2 * h
            A(f"v_exp_f32 v{t}, v{t}\nv_exp_f32 v{t+1}, v{t+1}")
        for h in (0, 2):
            t = T + 2 * h
            A(f"v_pk_add_f32 v[{t}:{t+1}], v[{t}:{t+1}], 1.0 op_sel_hi:[1,0]")
        for h in (0, 2):
            t = T + 2 * h
            A(f"v_rcp_f32 v{t}, v{t}\nv_rcp_f32 v{t+1}, v{t+1}")
        for h in (0, 2):
            x = regs0 + i + h; t = T + 2 * h
            A(f"v_pk_mul_f32 v[{x}:{x+1}], v[{x}:{x+1}], v[{t}:{t+1}]")

Z_PART = 0
Z_STAT = 2048

def z_epilogue_a(A):
    C1, C2, T = 112, 114, 116
    A(f"v_mov_b32 v{C1}, {fbits(GELU_C1):#x}\nv_mov_b32 v{C1+1}, {fbits(GELU_C1):#x}\nv_mov_b32 v{C2}, {fbits(GELU_C2):#x}\nv_mov_b32 v{C2+1}, {fbits(GELU_C2):#x}")
    gelu_regs(A, Z_ACC2, 48, C1, C2, T)
    SU = 128; SQ = 144
    for m in range(4):
        for r in range(4):
            a, b, c = [Z_ACC2 + (m * 3 + t) * 4 + r for t in range(3)]
            s_, q_ = SU + m * 4 + r, SQ + m * 4 + r
            A(f"v_add_f32 v{s_}, v{a}, v{b}\nv_mul_f32 v{q_}, v{a}, v{a}\nv_add_f32 v{s_}, v{s_}, v{c}\nv_fmac_f32 v{q_}, v{b}, v{b}\nv_fmac_f32 v{q_}, v{c}, v{c}")
    for sh in (8, 4, 2, 1):
        for i in range(32):
            A(f"v_add_f32_dpp v{SU+i}, v{SU+i}, v{SU+i} row_ror:{sh} row_mask:0xf bank_mask:0xf")
    A(f"""
    s_lshl_b32 s18, s17, 10
    s_lshl_b32 s19, s16, 9
    s_add_u32 s18, s18, s19
    s_add_u32 s18, s18, {Z_PART}
    v_lshlrev_b32 v3, 5, v2
    v_add_u32 v3, s18, v3
    s_mov_b64 s[12:13], exec
    s_mov_b32 s20, 0x00010001
    s_mov_b32 s21, 0x00010001
    s_mov_b64 exec, s[20:21]
    """)
    for m in range(4):
        for r in range(0, 4, 2):
            t = T
            A(f"v_mov_b32 v{t}, v{SU+m*4+r}\nv_mov_b32 v{t+1}, v{SQ+m*4+r}\nv_mov_b32 v{t+2}, v{SU+m*4+r+1}\nv_mov_b32 v{t+3}, v{SQ+m*4+r+1}")
            A(f"ds_write_b128 v3, v[{t}:{t+3}] offset:{m*128 + r*8}")
            T2 = T; T = 120 if T == 116 else 116
    A("s_mov_b64 exec, s[12:13]\ns_waitcnt lgkmcnt(0)")

def z_epilogue_b(A, sc_st=""):
    C1, C2, T = 112, 114, 116
    gelu_regs(A, Z_ACC1, 48, C1, C2, T)
    A(f"s_lshl_b32 s18, s4, 1\ns_add_u32 s18, s18, s16\ns_lshl_b32 s18, s18, 3\ns_add_u32 s18, s18, s5\ns_lshl_b32 s18, s18, 2\ns_lshl_b32 s19, s17, 1\ns_add_u32 s18, s18, s19\ns_mul_i32 s18, s18, 3072")
    make_srd(A, 8, P_WS, Z1_OFF, 6144, off_sgpr=18)
    A("v_lshlrev_b32 v4, 4, v0")
    for wt in range(2):
        for t in range(3):
            o = 120 + 4 * ((wt * 3 + t) % 2)
            for j in range(2):
                d = Z_ACC1 + (t * 4 + 2 * wt + j) * 4
                A(f"v_cvt_pk_bf16_f32 v{o+2*j}, v{d}, v{d+1}\nv_cvt_pk_bf16_f32 v{o+2*j+1}, v{d+2}, v{d+3}")
            A(f"s_mov_b32 s19, {wt*3072 + t*1024}\nbuffer_store_dwordx4 v[{o}:{o+3}], v4, s[8:11], s19 offen {sc_st}")

def z_epilogue_c(A, sc_st=""):
    ST = 128
    A(f"s_lshl_b32 s19, s16, 9\ns_add_u32 s19, s19, {Z_STAT}\nv_lshlrev_b32 v3, 5, v2\nv_add_u32 v3, s19, v3")
    for m in range(4):
        A(f"ds_read_b128 v[{ST+8*m}:{ST+8*m+3}], v3 offset:{m*128}\nds_read_b128 v[{ST+8*m+4}:{ST+8*m+7}], v3 offset:{m*128+16}")
    A("s_waitcnt lgkmcnt(0)")
    A(f"s_mul_i32 s18, s5, 393216\ns_lshl_b32 s19, s4, 2\ns_lshl_b32 s20, s16, 1\ns_add_u32 s19, s19, s20\ns_mul_i32 s19, s19, 6144\ns_add_u32 s18, s18, s19\ns_mul_i32 s19, s17, 3072\ns_add_u32 s18, s18, s19")
    make_srd(A, 8, P_WS, ZN_OFF, 6144 + 3072, off_sgpr=18)
    A("v_lshlrev_b32 v4, 4, v0")
    for P in range(2):
        for t in range(3):
            o = 160 + 4 * ((P * 3 + t) % 3)
            for j in range(2):
                m = 2 * P + j
                d = Z_ACC2 + (m * 3 + t) * 4
                for r in range(4):
                    A(f"v_fma_f32 v{d+r}, v{d+r}, v{ST+8*m+2*r}, v{ST+8*m+2*r+1}")
                A(f"v_cvt_pk_bf16_f32 v{o+2*j}, v{d}, v{d+1}\nv_cvt_pk_bf16_f32 v{o+2*j+1}, v{d+2}, v{d+3}")
            A(f"v_permlane32_swap_b32 v{o}, v{o+2}\nv_permlane32_swap_b32 v{o+1}, v{o+3}")
            A(f"v_permlane16_swap_b32 v{o}, v{o+2}\nv_permlane16_swap_b32 v{o+1}, v{o+3}")
            A(f"s_mov_b32 s19, {P*6144 + t*1024}\nbuffer_store_dwordx4 v[{o}:{o+3}], v4, s[8:11], s19 offen {sc_st}")

def get_nonce(A, sreg):
    make_srd(A, 28, P_DBG, 0, 256)
    lp = A.newlabel("Lnonce")
    A("v_mov_b32 v6, 0\ns_mov_b32 s32, 0")
    A.label(lp)
    A(f"buffer_load_dword v7, v6, s[28:31], 0 offen sc1\ns_waitcnt vmcnt(0)\nv_readfirstlane_b32 s{sreg}, v7")
    A(f"s_add_u32 s32, s32, 1\ns_cmp_gt_u32 s32, {1<<20}")
    out = A.newlabel("Lnonce_o")
    A(f"s_cbranch_scc1 {out}")
    A(f"s_cmp_eq_u32 s{sreg}, 0\ns_cbranch_scc1 {lp}")
    A.label(out)

def publish_nonce(A):
    make_srd(A, 28, P_DBG, 0, 256)
    A("s_memrealtime s[32:33]\ns_waitcnt lgkmcnt(0)\ns_or_b32 s32, s32, 1\nv_mov_b32 v6, 0\nv_mov_b32 v7, s32\nbuffer_store_dword v7, v6, s[28:31], 0 offen sc1")

def z_stats_exchange(A, NONCE):
    A(f"s_sub_u32 s16, s3, 4\ns_lshl_b32 s17, s16, 9\nv_lshlrev_b32 v2, 3, v0\nv_add_u32 v2, s17, v2")
    A(f"v_add_u32 v14, {Z_PART}, v2")
    A(f"ds_read_b64 v[4:5], v14\nds_read_b64 v[6:7], v14 offset:1024\ns_waitcnt lgkmcnt(0)")
    A(f"v_add_f32 v8, v4, v6\nv_add_f32 v10, v5, v7\nv_mov_b32 v9, s{NONCE}\nv_mov_b32 v11, s{NONCE}")
    A("s_lshl_b32 s18, s4, 14")
    make_srd(A, 8, P_WS, ST_OFF, 16384, off_sgpr=18)
    A("v_lshlrev_b32 v3, 1, v2\ns_lshl_b32 s19, s5, 11")
    A("buffer_store_dwordx4 v[8:11], v3, s[8:11], s19 offen sc1")
    lp = A.newlabel("Lst"); ok = A.newlabel("Lstok")
    A("s_mov_b32 s20, 0")
    A.label(lp)
    for c in range(8):
        A(f"s_mov_b32 s19, {c*2048}\nbuffer_load_dwordx4 v[{16+4*c}:{19+4*c}], v3, s[8:11], s19 offen sc1")
    A("s_waitcnt vmcnt(0)")
    A(f"v_mov_b32 v12, 0")
    for c in range(8):
        A(f"v_xor_b32 v13, s{NONCE}, v{17+4*c}\nv_or_b32 v12, v12, v13\nv_xor_b32 v13, s{NONCE}, v{19+4*c}\nv_or_b32 v12, v12, v13")
    A(f"v_cmp_ne_u32 vcc, 0, v12\ns_cmp_eq_u64 vcc, 0\ns_cbranch_scc1 {ok}")
    A(f"s_add_u32 s20, s20, 1\ns_cmp_gt_u32 s20, {1<<16}\ns_cbranch_scc1 {ok}\ns_sleep 2\ns_branch {lp}")
    A.label(ok)
    A("v_add_f32 v4, v16, v20\nv_add_f32 v5, v18, v22")
    for c in range(2, 8): A(f"v_add_f32 v4, v4, v{16+4*c}\nv_add_f32 v5, v5, v{18+4*c}")
    inv = fbits(1.0 / 768.0)
    A(f"""
    v_mul_f32 v4, {inv:#x}, v4
    v_mul_f32 v5, {inv:#x}, v5
    v_fma_f32 v5, -v4, v4, v5
    v_max_f32 v5, 0, v5
    v_add_f32 v5, {fbits(1e-5):#x}, v5
    v_rsq_f32 v6, v5
    s_nop 0
    v_mul_f32 v7, -v4, v6
    """)
    A(f"ds_write_b64 v14, v[6:7] offset:{Z_STAT - Z_PART}\ns_waitcnt lgkmcnt(0)")

def gen_p1_kernel():
    A = Asm()
    end = prologue(A)
    stamp(A, 0); stamp(A, 5, cyc=True)
    wg_map_p1(A)
    fin = A.newlabel("Lfin")
    zrole = A.newlabel("Lz_role")
    A(f"s_cmp_eq_u32 s6, 1\ns_cbranch_scc1 {zrole}")
    lw = A.newlabel("Lq_w"); lx = A.newlabel("Lq_x"); att = A.newlabel("Lq_att")
    A(f"s_cmp_eq_u32 s3, 7\ns_cbranch_scc1 {lx}\ns_cmp_ge_u32 s3, 4\ns_cbranch_scc1 {lw}")
    qkv_consumer(A, False)
    wl = [A.newlabel(f"Lq_c{w}") for w in range(4)]
    for w in range(1, 4): A(f"s_cmp_eq_u32 s3, {w}\ns_cbranch_scc1 {wl[w]}")
    for w in range(4):
        A.label(wl[w])
        qkv_main(A, w)
        stamp(A, 3)
        qkv_epilogue_store(A, w)
        A(f"s_waitcnt lgkmcnt(0)\ns_branch {att}")
    A.label(lw)
    pack_issue(A)
    w_loader(A, QKV)
    pack_finish(A)
    A(f"s_branch {att}")
    A.label(lx)
    pub = A.newlabel("Lpub")
    A(f"s_cmp_lg_u32 s2, 0\ns_cbranch_scc1 {pub}")
    publish_nonce(A)
    A.label(pub)
    x_loader(A, QKV)
    A.label(att)
    A("s_barrier")
    stamp(A, 7)
    attention(A)
    A("s_waitcnt vmcnt(0)")
    A(f"s_branch {fin}")
    A.label(zrole)
    lw = A.newlabel("Lz_w"); lx = A.newlabel("Lz_x"); ztail = A.newlabel("Lz_tail")
    A(f"s_cmp_eq_u32 s3, 7\ns_cbranch_scc1 {lx}\ns_cmp_ge_u32 s3, 4\ns_cbranch_scc1 {lw}")
    z_consumer(A)
    stamp(A, 3)
    z_epilogue_a(A)
    A("s_barrier")
    z_epilogue_b(A)
    stamp(A, 7)
    A("s_barrier")
    z_epilogue_c(A)
    A("s_waitcnt vmcnt(0)")
    A(f"s_branch {fin}")
    A.label(lw)
    pack_issue(A)
    w_loader(A, Z)
    pack_finish(A)
    noex = A.newlabel("Lnoex")
    A(f"s_cmp_ge_u32 s3, 6\ns_cbranch_scc1 {noex}")
    get_nonce(A, 26)
    A("s_barrier")
    z_stats_exchange(A, 26)
    A("s_barrier")
    A(f"s_branch {fin}")
    A.label(noex)
    A(f"s_barrier\ns_barrier\ns_branch {fin}")
    A.label(lx)
    x_loader(A, Z)
    A("s_barrier\ns_barrier")
    A.label(fin)
    stamp(A, 4); stamp(A, 6, cyc=True)
    dump_stamps(A, 14 if FINE else 8)
    A.label(end)
    A("s_endpgm")
    txt = A.text(verbose=True)
    return txt.replace("SC_ST", "")

if __name__ == "__main__":
    import common
    common.set_profile("prof" in sys.argv)
    txt = build_file([("p1_kernel", gen_p1_kernel(), 256, 102, 256)], [("p1_kernel", 256, 512, LDS_MAX)])
    open("p1.s", "w").write(txt)
```

```python
from common import *

W_SLOT = 32768; NWS = 5

def wg_map_p23(A):
    A("""
    s_and_b32 s6, s2, 7
    s_lshr_b32 s7, s2, 3
    s_lshr_b32 s4, s6, 1
    s_lshl_b32 s4, s4, 3
    s_lshr_b32 s5, s7, 2
    s_add_u32 s4, s4, s5
    s_and_b32 s5, s6, 1
    s_lshl_b32 s5, s5, 2
    s_and_b32 s7, s7, 3
    s_add_u32 s5, s5, s7
    """)

W_ORDER = [0, 4, 1, 5, 2, 6, 3, 7]
W_SLOT_OF = {0: 3, 4: 4, 1: 0, 5: 1, 2: 2, 6: 3, 3: 4, 7: 0}

def p2l_setup(A, rb):
    A(f"s_sub_u32 s16, s{S_WAVE}, 4")
    A(f"s_lshl_b32 s17, s{rb}, 18")
    make_srd(A, 8, P_WSP, 0, 262144, off_sgpr=17)
    A(f"""
    v_lshrrev_b32 v4, 5, v0
    s_lshl_b32 s17, s16, 2
    v_add_u32 v4, s17, v4
    v_and_b32 v5, 31, v0
    v_xor_b32 v6, v5, v4
    v_lshlrev_b32 v6, 4, v6
    v_lshl_add_u32 v2, v4, 12, v6
    v_add_u32 v4, 2, v4
    v_xor_b32 v6, v5, v4
    v_lshlrev_b32 v6, 4, v6
    v_lshl_add_u32 v3, v4, 12, v6
    s_lshl_b32 s18, s16, 11
    """)

def p2l_issue(A, blk, Q=None):
    slot = W_SLOT_OF[blk]
    for part in range(4):
        for e in range(2):
            A(f"s_add_u32 m0, s18, {slot * W_SLOT + (16 * part + 2 * e) * 512}")
            A(f"s_mov_b32 s20, {blk * 512 + part * 16 * 4096}")
            A(f"buffer_load_dwordx4 v{2+e}, s[8:11], s20 offen lds")
    if Q is not None: Q.issue(("w", blk), 8)

def p2_loader(A):
    p2l_setup(A, 4)
    p2l_issue(A, 0); p2l_issue(A, 4)
    Q = VmQueue(); Q.issue(("w", 0), 8); Q.issue(("w", 4), 8)
    p2l_main(A, Q)
    A("s_barrier")
    A("s_barrier")

def p2l_main(A, Q, hooks=None):
    hooks = hooks or {}
    H = lambda k: hooks[k]() if k in hooks else None
    def wait_blocks(bl):
        if not any(t in Q.q for t in {("w", b) for b in bl}): return
        n = Q.wait_for({("w", b) for b in bl})
        A(f"s_waitcnt vmcnt({n})"); Q.retire(n)
    H("start")
    wait_blocks([0, 4]); stamp(A, 1, f2=True); A("s_barrier"); stamp(A, 2, f2=True)
    p2l_issue(A, 1, Q); p2l_issue(A, 5, Q); p2l_issue(A, 2, Q)
    stamp(A, 10, f2=True)
    wait_blocks([1, 5]); stamp(A, 3, f2=True); A("s_barrier"); stamp(A, 4, f2=True)
    H("post_b1")
    p2l_issue(A, 6, Q); p2l_issue(A, 3, Q)
    stamp(A, 11, f2=True)
    wait_blocks([2, 6]); stamp(A, 12, f2=True); H("before_b2"); stamp(A, 5, f2=True); A("s_barrier"); stamp(A, 6, f2=True)
    H("post_b2")
    p2l_issue(A, 7, Q)
    wait_blocks([3, 7]); stamp(A, 13, f2=True); H("before_b3"); stamp(A, 7, f2=True); A("s_barrier"); stamp(A, 8, f2=True)

def p2_loader_rest(A, rb, sc, hooks=None, hooks3=None):
    import p3
    hooks = hooks or {}
    A("s_waitcnt vmcnt(0)")
    p2l_setup(A, rb)
    Q = VmQueue()
    p2l_main(A, Q, hooks)
    p3.p3l_setup(A)
    Q3 = VmQueue()
    for st in range(4): p3.p3l_issue(A, st, Q3, sc)
    A("s_barrier")
    for st in range(4, 6): p3.p3l_issue(A, st, Q3, sc)
    A("s_barrier")
    p3.p3l_main(A, Q3, 6, sc, hooks3)
    A("s_barrier\ns_barrier")

def p2_consumer(A, sc_st="", sc_ld="", lazy_z1=False):
    ACC = 8
    ZR = 56
    WF = [152, 168]
    VWL = 184
    VWB = 185
    VWA = [186, 187]
    VZ = 188
    Z1 = 192
    VB = 204
    T = 208
    A("s_lshr_b32 s16, s3, 1\ns_and_b32 s17, s3, 1")
    A(f"s_mul_i32 s18, s5, 393216")
    make_srd(A, 8, P_WS, ZN_OFF, 393216, off_sgpr=18)
    A(f"s_mul_i32 s19, s16, {32*6144}\ns_mul_i32 s18, s17, 3072\ns_add_u32 s19, s19, s18")
    A(f"v_lshlrev_b32 v{VZ}, 4, v0")
    def zload(q):
        for t in range(3):
            d = ZR + 12 * q + 4 * t
            A(f"buffer_load_dwordx4 v[{d}:{d+3}], v{VZ}, s[8:11], s19 offen offset:{t*1024} {sc_ld}")
        A("s_add_u32 s19, s19, 6144")
    def z1_loads():
        A(f"s_lshl_b32 s26, s4, 3\ns_add_u32 s26, s26, s5\ns_lshl_b32 s26, s26, 2\ns_lshl_b32 s27, s17, 1\ns_add_u32 s26, s26, s27\ns_add_u32 s26, s26, s16\ns_mul_i32 s26, s26, 3072")
        make_srd(A, 12, P_WS, Z1_OFF, 3072, off_sgpr=26)
        for u in range(3):
            A(f"buffer_load_dwordx4 v[{Z1+4*u}:{Z1+4*u+3}], v{VZ}, s[12:15], 0 offen offset:{u*1024} {sc_ld}")
        A(f"s_lshl_b32 s26, s4, 7\ns_lshl_b32 s27, s16, 6\ns_add_u32 s26, s26, s27")
        make_srd(A, 28, P_BSP, 0, 64, off_sgpr=26)
        A(f"v_and_b32 v1, 15, v0\nv_lshlrev_b32 v2, 1, v1")
        A(f"buffer_load_ushort v{VB}, v2, s[28:31], 0 offen")
        A(f"buffer_load_ushort v{VB+1}, v2, s[28:31], 0 offen offset:32")

    if not lazy_z1: z1_loads()
    for q in range(8): zload(q)
    A(f"""
    v_and_b32 v1, 15, v0
    v_lshrrev_b32 v3, 4, v0
    v_xor_b32 v3, v3, v1
    v_lshlrev_b32 v3, 4, v3
    v_lshl_add_u32 v{VWL}, v1, 9, v3
    """)
    for i in range(48): A(f"v_mov_b32 v{ACC+i}, 0")
    def wreads(buf, q):
        a = VWA[buf]
        A(f"v_xor_b32 v{a}, {q*64}, v{VWB}")
        for tt in range(4):
            d = WF[buf] + 4 * tt
            A(f"ds_read_b128 v[{d}:{d+3}], v{a} offset:{tt*8192}")
    def mfmas(buf, q):
        if "nomfma" in sys.argv: return
        for t in range(3):
            z = ZR + 12 * q + 4 * t
            for tt in range(4):
                d = ACC + (t * 4 + tt) * 4
                w = WF[buf] + 4 * tt
                A(f"v_mfma_f32_16x16x32_bf16 v[{d}:{d+3}], v[{z}:{z+3}], v[{w}:{w+3}], v[{d}:{d+3}]")
    A(f"s_cmp_eq_u32 s16, 0")
    sl0 = [W_SLOT_OF[n] for n in range(4)]; sl1 = [W_SLOT_OF[4 + n] for n in range(4)]
    for n in range(4): A(f"s_cselect_b32 s{20+n}, {sl0[n]}, {sl1[n]}")
    for n in range(4): A(f"s_lshl_b32 s{20+n}, s{20+n}, 15")
    A("s_mov_b32 s24, 0")
    loop = A.newlabel("Lp2")
    def st2(base):
        import common
        if not (common.FINE2 and common.PROFILE): return
        for n in range(4):
            l = A.newlabel("Lf2"); A(f"s_cmp_lg_u32 s24, {n}\ns_cbranch_scc1 {l}"); stamp(A, base + 2 * n, f2=True); A.label(l)
    def round_(last):
        A(f"v_add_u32 v{VWB}, s20, v{VWL}")
        st2(1)
        A("s_barrier")
        st2(2)
        if last and lazy_z1: z1_loads()
        wreads(0, 0)
        for q in range(8):
            if q < 7: wreads((q + 1) & 1, q + 1)
            if not last: vm = 21
            else: vm = 3 * (7 - q) + (5 if lazy_z1 else 0)
            A(f"s_waitcnt vmcnt({vm}) lgkmcnt({4 if q < 7 else 0})")
            mfmas(q & 1, q)
            if not last: zload(q)
    A.label(loop)
    round_(False)
    A("s_mov_b32 s20, s21\ns_mov_b32 s21, s22\ns_mov_b32 s22, s23")
    A("s_add_u32 s24, s24, 1\ns_cmp_lt_u32 s24, 3")
    A(f"s_cbranch_scc1 {loop}")
    round_(True)
    stamp(A, 13); stamp(A, 9, f2=True)
    A("s_barrier")
    A(f"s_mul_i32 s18, s3, 6144")
    A(f"v_add_u32 v3, s18, v{VZ}")
    A("s_xor_b32 s25, s3, 2\ns_mul_i32 s25, s25, 6144")
    A(f"v_add_u32 v4, s25, v{VZ}")
    snd = A.newlabel("Lsnd1"); snd_e = A.newlabel("Lsnde")
    A(f"s_cmp_eq_u32 s16, 0\ns_cbranch_scc0 {snd}")
    for t in range(3):
        for j in range(2):
            d = ACC + (t * 4 + 2 + j) * 4
            A(f"ds_write_b128 v3, v[{d}:{d+3}] offset:{(t*2+j)*1024}")
    A(f"s_branch {snd_e}")
    A.label(snd)
    for t in range(3):
        for j in range(2):
            d = ACC + (t * 4 + j) * 4
            A(f"ds_write_b128 v3, v[{d}:{d+3}] offset:{(t*2+j)*1024}")
            d2 = ACC + (t * 4 + 2 + j) * 4
    for t in range(3):
        for j in range(2):
            d = ACC + (t * 4 + j) * 4; d2 = ACC + (t * 4 + 2 + j) * 4
            for r in range(4): A(f"v_mov_b32 v{d+r}, v{d2+r}")
    A.label(snd_e)
    A("s_waitcnt lgkmcnt(0)\ns_barrier")
    RB = ZR
    for t in range(3):
        for j in range(2):
            d = RB + (t * 2 + j) * 4
            A(f"ds_read_b128 v[{d}:{d+3}], v4 offset:{(t*2+j)*1024}")
    A("s_waitcnt vmcnt(0) lgkmcnt(0)")
    A(f"v_lshlrev_b32 v{VB}, 16, v{VB}\nv_lshlrev_b32 v{VB+1}, 16, v{VB+1}")
    A(f"s_mul_i32 s18, s4, {4*44*1024}")
    make_srd(A, 8, P_WS, A3_OFF, 4*44*1024, off_sgpr=18)
    A(f"s_mul_i32 s18, s16, {2*44*1024}\ns_mul_i32 s19, s5, 3072\ns_add_u32 s18, s18, s19\ns_add_u32 s18, s18, {20*1024}")
    for t in range(3):
        A(f"s_mul_i32 s19, s17, 3\ns_add_u32 s19, s19, {t}\ns_lshr_b32 s23, s19, 1\ns_lshl_b32 s23, s23, 10\ns_and_b32 s19, s19, 1\ns_lshl_b32 s19, s19, 3\ns_add_u32 s23, s23, s19\ns_add_u32 s23, s23, s18")
        for j in range(2):
            d = ACC + (t * 4 + j) * 4
            p = RB + (t * 2 + j) * 4
            z = Z1 + 4 * t + 2 * j
            for r in range(4): A(f"v_add_f32 v{d+r}, v{d+r}, v{p+r}")
            for r in range(4): A(f"v_add_f32 v{d+r}, v{d+r}, v{VB+j}")
            A(f"v_lshlrev_b32 v{T}, 16, v{z}\nv_and_b32 v{T+1}, 0xffff0000, v{z}\nv_lshlrev_b32 v{T+2}, 16, v{z+1}\nv_and_b32 v{T+3}, 0xffff0000, v{z+1}")
            for r in range(4): A(f"v_mul_f32 v{d+r}, v{d+r}, v{T+r}")
            o = T + 4 + (t * 2 + j) * 2
            A(f"v_cvt_pk_bf16_f32 v{o}, v{d}, v{d+1}\nv_cvt_pk_bf16_f32 v{o+1}, v{d+2}, v{d+3}")
            if j == 0: A(f"buffer_store_dwordx2 v[{o}:{o+1}], v{VZ}, s[8:11], s23 offen {sc_st}")
            else: A(f"s_add_u32 s26, s23, {44*1024}\nbuffer_store_dwordx2 v[{o}:{o+1}], v{VZ}, s[8:11], s26 offen {sc_st}")

def gen_p2_kernel():
    A = Asm()
    end = prologue(A)
    stamp(A, 0)
    stamp(A, 5, cyc=True)
    wg_map_p23(A)
    if "small" in sys.argv: A("s_and_b32 s4, s4, 1\ns_and_b32 s5, s5, 1")
    ld = A.newlabel("Lp2ld")
    A(f"s_cmp_ge_u32 s3, 4\ns_cbranch_scc1 {ld}")
    p2_consumer(A)
    A("s_waitcnt vmcnt(0)")
    stamp(A, 2); stamp(A, 4); stamp(A, 6, cyc=True)
    dump_stamps(A, 7)
    A("s_endpgm")
    A.label(ld)
    p2_loader(A)
    stamp(A, 4); stamp(A, 6, cyc=True)
    dump_stamps(A, 7)
    A("s_endpgm")
    A.label(end)
    A("s_endpgm")
    return A.text(verbose=True)

if __name__ == "__main__":
    import common
    common.set_profile("prof" in sys.argv)
    txt = build_file([("p2_kernel", gen_p2_kernel(), 256, 102, 256)], [("p2_kernel", 256, 512, LDS_MAX)])
    open("p2%s.s" % ("small" if "small" in sys.argv else "nomfma" if "nomfma" in sys.argv else ""), "w").write(txt)
```

```python
from common import *
from p2 import wg_map_p23

FINE = 'fine' in sys.argv
S3_SLOT = 20480; S3_N = 6; S3_NST = 11; S3_BASE = 32768

def div12(A, q, d, r, tmp_s):
    A(f"s_mov_b32 s{tmp_s}, 43691")
    A(f"v_mul_u32_u24 v{d}, s{tmp_s}, v{q}")
    A(f"v_lshrrev_b32 v{d}, 19, v{d}")
    A(f"v_mul_u32_u24 v{r}, 12, v{d}")
    A(f"v_sub_u32 v{r}, v{q}, v{r}")

def p3l_setup(A):
    A(f"s_sub_u32 s16, s{S_WAVE}, 4")
    A(f"s_mul_i32 s17, s5, {WP_CB}")
    make_srd(A, 8, P_WS, WP_OFF, WP_CB, off_sgpr=17)
    A("s_mul_i32 s18, s16, 5120\nv_lshlrev_b32 v2, 4, v0\nv_add_u32 v2, s18, v2")

def p3l_issue(A, st, Q, sc=""):
    slot = st % S3_N
    A(f"s_mov_b32 s20, {st * S3_SLOT}")
    A(f"s_add_u32 m0, s18, {S3_BASE + slot * S3_SLOT}")
    for e in range(4):
        A(f"buffer_load_dwordx4 v2, s[8:11], s20 offen offset:{e*1024} {sc} lds")
    A(f"s_add_u32 m0, s18, {S3_BASE + slot * S3_SLOT + 4096}\ns_add_u32 s20, s20, 4096")
    A(f"buffer_load_dwordx4 v2, s[8:11], s20 offen {sc} lds")
    Q.issue(("w", st), 5)

def p3l_main(A, Q, nxt, sc="", hooks=None):
    hooks = hooks or {}
    for st in range(S3_NST):
        if ("pre", st) in hooks: hooks[("pre", st)]()
        if ("w", st) in Q.q:
            n = Q.wait_for({("w", st)})
            A(f"s_waitcnt vmcnt({n})"); Q.retire(n)
        A("s_barrier")
        if ("post", st) in hooks: hooks[("post", st)]()
        lim = min(S3_NST, max(S3_N, st - 1 + S3_N))
        cnt = 0
        while nxt < lim and cnt < 2:
            p3l_issue(A, nxt, Q, sc); nxt += 1; cnt += 1

def p3_loader(A):
    p3l_setup(A)
    Q = VmQueue()
    for st in range(2): p3l_issue(A, st, Q)
    p3l_main(A, Q, 2)

def p3_consumer(A, sc_ld="", hwait=None, drain0=False):
    ACA = 8; ACB = 48
    XR = 88; NX = 3
    WF = [152, 172]
    VE, VOD = 192, 193
    VEC, VOC = 194, 195
    VX = 196; VG = 197
    T = 200
    A("s_lshr_b32 s16, s3, 1\ns_and_b32 s17, s3, 1")
    A(f"s_lshl_b32 s18, s4, 2\ns_lshl_b32 s19, s17, 1\ns_add_u32 s18, s18, s19\ns_mul_i32 s18, s18, {44*1024}")
    make_srd(A, 8, P_WS, A3_OFF, 88 * 1024, off_sgpr=18)
    A(f"v_lshlrev_b32 v{VX}, 4, v0")
    A(f"s_lshl_b32 s18, s4, 8\ns_lshl_b32 s19, s17, 7\ns_add_u32 s18, s18, s19")
    make_srd(A, 12, P_WS, G_OFF, 128, off_sgpr=18)
    A(f"v_and_b32 v1, 15, v0\nv_lshlrev_b32 v2, 2, v1\nbuffer_load_dword v{VG}, v2, s[12:15], 0 offen {sc_ld}\nbuffer_load_dword v{VG+1}, v2, s[12:15], 0 offen offset:64 {sc_ld}")
    A("s_lshl_b32 s19, s16, 11")
    A(f"s_add_u32 s23, s19, {44*1024}")
    def xload(st):
        d = XR + 16 * (st % NX)
        A(f"buffer_load_dwordx4 v[{d}:{d+3}], v{VX}, s[8:11], s19 offen {sc_ld}")
        A(f"buffer_load_dwordx4 v[{d+4}:{d+7}], v{VX}, s[8:11], s23 offen {sc_ld}")
        A(f"buffer_load_dwordx4 v[{d+8}:{d+11}], v{VX}, s[8:11], s19 offen offset:1024 {sc_ld}")
        A(f"buffer_load_dwordx4 v[{d+12}:{d+15}], v{VX}, s[8:11], s23 offen offset:1024 {sc_ld}")
        A("s_add_u32 s19, s19, 4096\ns_add_u32 s23, s23, 4096")
    for st in range(2): xload(st)
    A(f"s_mul_i32 s21, s16, {2*5120}\nv_add_u32 v{VEC}, s21, v{VX}")
    for i in range(80): A(f"v_mov_b32 v{ACA+i}, 0")
    def setaddr():
        A(f"v_add_u32 v{VE}, s22, v{VEC}")
    def wpair(buf, j2, nu):
        dn = WF[buf] + 4 * nu
        A(f"ds_read_b128 v[{dn}:{dn+3}], v{VE} offset:{(j2 * 5 + nu) * 1024}")
    def adv_slot():
        A(f"s_add_u32 s22, s22, {S3_SLOT}\ns_cmp_eq_u32 s22, {S3_BASE + S3_N*S3_SLOT}\ns_cselect_b32 s22, {S3_BASE}, s22")
    A(f"s_mov_b32 s22, {S3_BASE}")
    setaddr()
    A("s_barrier")
    stamp(A, 11)
    for nu in range(5): wpair(0, 0, nu)
    nstep = 2 * S3_NST
    for step in range(nstep):
        st, j2 = step // 2, step % 2
        buf = step & 1
        acc = ACA if st < 5 else ACB
        last = step == nstep - 1
        if not last and j2 == 1:
            late_x = (st + 2 == 5)
            if st + 2 < S3_NST and not late_x: xload(st + 2)
            adv_slot(); setaddr()
            A("s_barrier")
            if late_x: xload(st + 2)
        for nu in range(5):
            lg = 4 if not last else 4 - nu
            vm = f"vmcnt({0 if (drain0 and st == 0) else 4 * min(1, S3_NST - 1 - st)}) " if (nu == 0 and j2 == 0) else ""
            A(f"s_waitcnt {vm}lgkmcnt({lg})")
            w = WF[buf] + 4 * nu
            for tt in range(2):
                d = acc + (tt * 5 + nu) * 4
                x = XR + 16 * (st % NX) + 8 * j2 + 4 * tt
                A(f"v_mfma_f32_16x16x32_bf16 v[{d}:{d+3}], v[{w}:{w+3}], v[{x}:{x+3}], v[{d}:{d+3}]")
                if tt == 0 and not last: wpair(buf ^ 1, (j2 + 1) % 2, nu)
    stamp(A, 12)
    for tt in range(2):
        for nu in range(5):
            a = ACA + (tt * 5 + nu) * 4; b = ACB + (tt * 5 + nu) * 4
            for r in range(4): A(f"v_sub_f32 v{a+r}, v{a+r}, v{b+r}")
            for r in range(4): A(f"v_fma_f32 v{a+r}, v{VG+tt}, v{a+r}, v{b+r}")
    A("s_barrier")
    A(f"s_mul_i32 s18, s3, 5120\nv_add_u32 v3, s18, v{VX}")
    A(f"s_xor_b32 s18, s3, 2\ns_mul_i32 s18, s18, 5120\nv_add_u32 v4, s18, v{VX}")
    k1 = A.newlabel("Lp3k1"); ke = A.newlabel("Lp3ke")
    A(f"s_cmp_eq_u32 s16, 0\ns_cbranch_scc0 {k1}")
    for nu in range(5):
        a = ACA + (5 + nu) * 4
        A(f"ds_write_b128 v3, v[{a}:{a+3}] offset:{nu*1024}")
    A(f"s_branch {ke}")
    A.label(k1)
    for nu in range(5):
        a = ACA + nu * 4
        A(f"ds_write_b128 v3, v[{a}:{a+3}] offset:{nu*1024}")
    for nu in range(5):
        for r in range(4): A(f"v_mov_b32 v{ACA+nu*4+r}, v{ACA+(5+nu)*4+r}")
    A.label(ke)
    A("s_waitcnt lgkmcnt(0)\ns_barrier")
    for nu in range(5):
        d = ACB + 4 * nu
        A(f"ds_read_b128 v[{d}:{d+3}], v4 offset:{nu*1024}")
    A(f"s_lshl_b32 s18, s4, 2\ns_lshl_b32 s19, s17, 1\ns_add_u32 s18, s18, s19\ns_add_u32 s18, s18, s16\ns_mul_i32 s18, s18, {16*1280}\ns_mul_i32 s19, s5, 160\ns_add_u32 s18, s18, s19")
    make_srd(A, 12, P_OUT, 0, 2048 * 1280)
    A(f"s_movk_i32 s19, 1280\nv_mul_u32_u24 v2, s19, v1\nv_lshrrev_b32 v4, 4, v0\nv_lshl_add_u32 v2, v4, 3, v2")
    A("s_waitcnt lgkmcnt(0)")
    for nu in range(5):
        a = ACA + 4 * nu; b = ACB + 4 * nu
        for r in range(4): A(f"v_add_f32 v{a+r}, v{a+r}, v{b+r}")
        o = T + 2 * nu
        A(f"v_cvt_pk_bf16_f32 v{o}, v{a}, v{a+1}\nv_cvt_pk_bf16_f32 v{o+1}, v{a+2}, v{a+3}")
        A(f"buffer_store_dwordx2 v[{o}:{o+1}], v2, s[12:15], s18 offen offset:{nu*32}")

def gen_p3_kernel():
    A = Asm()
    end = prologue(A)
    stamp(A, 0)
    stamp(A, 5, cyc=True)
    wg_map_p23(A)
    ld = A.newlabel("Lp3ld")
    A(f"s_cmp_ge_u32 s3, 4\ns_cbranch_scc1 {ld}")
    p3_consumer(A)
    A("s_waitcnt vmcnt(0)")
    stamp(A, 4); stamp(A, 6, cyc=True)
    dump_stamps(A, 15 if FINE else 7)
    A("s_endpgm")
    A.label(ld)
    stamp(A, 1)
    p3_loader(A)
    A("s_barrier\ns_barrier")
    stamp(A, 3); stamp(A, 4); stamp(A, 6, cyc=True)
    dump_stamps(A, 15 if FINE else 7)
    A("s_endpgm")
    A.label(end)
    A("s_endpgm")
    return A.text(verbose=True)

if __name__ == "__main__":
    import common
    common.set_profile("prof" in sys.argv)
    for q in range(1024): assert (q * 43691) >> 19 == q // 12
    txt = build_file([("p3_kernel", gen_p3_kernel(), 256, 102, 256)], [("p3_kernel", 256, 512, LDS_MAX)])
    open("p3.s", "w").write(txt)
```

```python
from common import *
from p1 import udiv_small, DsQ, gelu_regs, GELU_C1, GELU_C2, fbits, barrier_plan_loader

ZS_SLOT = 28672; ZS_N = 4; ZS_BASE = 4096; ZS_X = 0; ZS_W = 16384
ZS_NST = 20
Z_PART = 0
Z_STAT = 2048
ZA2 = 16; ZA1 = 64
ZWF = [112, 124]; ZXF = [136, 152]
ZVX = [168, 169]; ZVXC = [170, 171]; ZVE, ZVO, ZVEC, ZVOC = 172, 173, 174, 175

def z_loader(A, late=None, hooks=None):
    hooks = hooks or {}
    lx = A.newlabel("Lzl_x"); join = A.newlabel("Lzl_j")
    A(f"s_cmp_ge_u32 s3, 6\ns_cbranch_scc1 {lx}")
    make_srd(A, 8, P_WIN, 0, 640 * 3072)
    A("s_sub_u32 s16, s3, 4\ns_mul_i32 s17, s5, 192")
    for e in range(6):
        A(f"s_mul_i32 s18, s16, 384\ns_add_u32 s18, s18, {64 * e}\nv_add_u32 v12, s18, v0")
        udiv_small(A, 12, 13, 14, 12, 19, 768)
        A("v_lshrrev_b32 v15, 2, v13\nv_and_b32 v15, 2, v15\nv_xor_b32 v14, v14, v15")
        A(f"s_movk_i32 s19, 3072\nv_mul_u32_u24 v13, s19, v13\nv_lshl_add_u32 v13, v14, 4, v13\nv_add_u32 v{2+e}, s17, v13")
    A("s_mul_i32 s18, s16, 6144")
    Q = VmQueue()
    def issue_w(st):
        col = 1536 if st < 10 else 0
        A(f"s_mov_b32 s20, {(st % 10) * 64 * 3072 + col}")
        for e in range(6):
            A(f"s_add_u32 m0, s18, {ZS_BASE + (st % ZS_N) * ZS_SLOT + ZS_W + e * 1024}")
            A(f"buffer_load_dwordx4 v{2+e}, s[8:11], s20 offen lds")
        Q.issue(("d", st), 6)
    run_loader(A, Q, issue_w, late, hooks)
    A(f"s_branch {join}")
    A.label(lx)
    make_srd(A, 8, P_AX, 0, 2048 * 1280)
    A("""
    s_sub_u32 s16, s3, 6
    v_lshrrev_b32 v4, 3, v0
    v_and_b32 v5, 7, v0
    v_lshrrev_b32 v6, 1, v4
    v_xor_b32 v7, v5, v6
    s_movk_i32 s19, 1280
    v_mul_u32_u24 v8, s19, v4
    v_lshl_add_u32 v2, v7, 4, v8
    v_xor_b32 v7, 4, v7
    v_lshl_add_u32 v3, v7, 4, v8
    v_add_u32 v3, 10240, v3
    s_lshl_b32 s17, s4, 7
    s_lshl_b32 s18, s16, 6
    s_add_u32 s17, s17, s18
    s_mul_i32 s17, s17, 1280
    s_lshl_b32 s18, s16, 13
    """)
    Q = VmQueue()
    def issue_x(st):
        for e in range(8):
            A(f"s_add_u32 m0, s18, {ZS_BASE + (st % ZS_N) * ZS_SLOT + ZS_X + e * 1024}")
            A(f"s_add_u32 s20, s17, {(e >> 1) * 16 * 1280 + (st % 10) * 128}")
            A(f"buffer_load_dwordx4 v{2 + (e & 1)}, s[8:11], s20 offen lds")
        Q.issue(("d", st), 8)
    run_loader(A, Q, issue_x, late, {})
    A.label(join)

def run_loader(A, Q, issue, late, hooks):
    issue(0); issue(1)
    stamp(A, 1)
    nxt = 2
    for st in range(ZS_NST):
        if ("d", st) in Q.q:
            n = Q.wait_for({("d", st)})
            A(f"s_waitcnt vmcnt({min(n, 63)})"); Q.retire(min(n, 63))
        A("s_barrier")
        if st == 0: stamp(A, 2)
        lim = min(ZS_NST, max(ZS_N, st - 1 + ZS_N)); c = 0
        while nxt < lim and c < 2:
            issue(nxt); nxt += 1; c += 1
        if st == 4 and "st4" in hooks: hooks["st4"](A, Q)
        if st == 9:
            A("s_barrier")
            if "after_z1" in hooks: hooks["after_z1"](A, Q)
        if st == ZS_NST - 2 and "pre_last" in hooks: hooks["pre_last"](A, Q)
        if st == ZS_NST - 1 and late: late(A)

def z_consumer(A, mid=None, between=None):
    A("v_and_b32 v1, 15, v0\nv_lshrrev_b32 v2, 4, v0\ns_lshr_b32 s16, s3, 1\ns_and_b32 s17, s3, 1")
    A(f"""
    v_lshrrev_b32 v3, 1, v1
    v_xor_b32 v3, v3, v2
    v_lshlrev_b32 v3, 4, v3
    v_lshl_add_u32 v{ZVXC[0]}, v1, 7, v3
    s_lshl_b32 s18, s16, 13
    v_add_u32 v{ZVXC[0]}, s18, v{ZVXC[0]}
    v_xor_b32 v{ZVXC[1]}, 64, v{ZVXC[0]}
    """)
    A(f"""
    v_lshrrev_b32 v3, 2, v1
    v_lshl_add_u32 v3, v2, 3, v3
    v_mul_u32_u24 v3, 192, v3
    v_and_b32 v4, 3, v1
    v_lshl_add_u32 v3, v4, 3, v3
    s_mul_i32 s18, s17, 96
    s_add_u32 s18, s18, {ZS_W}
    v_add_u32 v3, s18, v3
    v_and_b32 v4, 1, v2
    v_lshlrev_b32 v4, 5, v4
    v_add_u32 v5, v3, v4
    v_sub_u32 v3, v3, v4
    s_cmp_eq_u32 s17, 0
    s_cselect_b64 vcc, -1, 0
    v_cndmask_b32 v{ZVEC}, v3, v5, vcc
    v_cndmask_b32 v{ZVOC}, v5, v3, vcc
    """)
    for i in range(96): A(f"v_mov_b32 v{ZA2+i}, 0")
    D = DsQ()
    def setaddr():
        A(f"v_add_u32 v{ZVX[0]}, s22, v{ZVXC[0]}"); A(f"v_add_u32 v{ZVX[1]}, s22, v{ZVXC[1]}")
        A(f"v_add_u32 v{ZVE}, s22, v{ZVEC}"); A(f"v_add_u32 v{ZVO}, s22, v{ZVOC}")
    def rd_w(buf, t, kk, tag):
        d = ZWF[buf] + 4 * t; a = ZVO if t & 1 else ZVE
        off = kk * 32 * 192 + t * 32
        A(f"ds_read_b64_tr_b16 v[{d}:{d+1}], v{a} offset:{off}"); D.issue(tag)
        A(f"ds_read_b64_tr_b16 v[{d+2}:{d+3}], v{a} offset:{off + 4*192}"); D.issue(tag)
    def rd_x(buf, m, kk, tag):
        d = ZXF[buf] + 4 * m
        A(f"ds_read_b128 v[{d}:{d+3}], v{ZVX[kk]} offset:{m * 2048}"); D.issue(tag)
    ORDER = [("x", 0), ("w", 0), ("w", 1), ("w", 2), ("x", 1), ("x", 2), ("x", 3)]
    def rd(buf, item, kk, sim):
        if item[0] == "x": rd_x(buf, item[1], kk, ("x", sim, item[1]))
        else: rd_w(buf, item[1], kk, ("w", sim, item[1]))
    def half(kk, z2, has_next, sim):
        pend = list(ORDER) if has_next else []
        cnt = 0
        if kk == 1 and has_next:
            A(f"s_add_u32 s22, s22, {ZS_SLOT}"); A(f"s_cmp_eq_u32 s22, {ZS_BASE + ZS_N*ZS_SLOT}"); A(f"s_cselect_b32 s22, {ZS_BASE}, s22")
        for m in range(4):
            for t in range(3):
                n = D.wait({("x", sim, m), ("w", sim, t)})
                if n is not None: A(f"s_waitcnt lgkmcnt({min(n, 15)})")
                wf = ZWF[kk] + 4 * t; xf = ZXF[kk] + 4 * m
                if z2:
                    d = ZA2 + (m * 3 + t) * 4
                    A(f"v_mfma_f32_16x16x32_bf16 v[{d}:{d+3}], v[{xf}:{xf+3}], v[{wf}:{wf+3}], v[{d}:{d+3}]")
                else:
                    d = ZA1 + (t * 4 + m) * 4
                    A(f"v_mfma_f32_16x16x32_bf16 v[{d}:{d+3}], v[{wf}:{wf+3}], v[{xf}:{xf+3}], v[{d}:{d+3}]")
                cnt += 1
                if kk == 1 and has_next and cnt == 1:
                    setaddr()
                    A("s_barrier")
                if pend and cnt >= 1:
                    rd(kk ^ 1, pend.pop(0), kk ^ 1, sim + 1)
    def gemm_pass(z2, first):
        for it in ORDER: rd(0, it, 0, 0)
        loop = A.newlabel("Lzp")
        A("s_mov_b32 s24, 0")
        A.label(loop)
        if mid and first:
            lm = A.newlabel("Lmid"); A(f"s_cmp_lg_u32 s24, 3\ns_cbranch_scc1 {lm}"); mid(A); A.label(lm)
        half(0, z2, True, 0)
        half(1, z2, True, 1)
        A("s_add_u32 s24, s24, 1\ns_cmp_lt_u32 s24, 9")
        A(f"s_cbranch_scc1 {loop}")
        half(0, z2, True, 2)
        half(1, z2, False, 3)
        D.q.clear()
    A(f"s_mov_b32 s22, {ZS_BASE}")
    setaddr()
    stamp(A, 1)
    A("s_barrier")
    stamp(A, 2)
    gemm_pass(True, True)
    stamp(A, 3)
    between(A)
    A(f"s_add_u32 s22, s22, {ZS_SLOT}\ns_cmp_eq_u32 s22, {ZS_BASE + ZS_N*ZS_SLOT}\ns_cselect_b32 s22, {ZS_BASE}, s22")
    setaddr()
    A("s_barrier")
    gemm_pass(False, False)

def z_epi_stats(A):
    C1, C2, T = 176, 178, 180
    A(f"v_mov_b32 v{C1}, {fbits(GELU_C1):#x}\nv_mov_b32 v{C1+1}, {fbits(GELU_C1):#x}\nv_mov_b32 v{C2}, {fbits(GELU_C2):#x}\nv_mov_b32 v{C2+1}, {fbits(GELU_C2):#x}")
    gelu_regs(A, ZA2, 48, C1, C2, T)
    SU = 192; SQ = 208
    for m in range(4):
        for r in range(4):
            a, b, c = [ZA2 + (m * 3 + t) * 4 + r for t in range(3)]
            s_, q_ = SU + m * 4 + r, SQ + m * 4 + r
            A(f"v_add_f32 v{s_}, v{a}, v{b}\nv_mul_f32 v{q_}, v{a}, v{a}\nv_add_f32 v{s_}, v{s_}, v{c}\nv_fmac_f32 v{q_}, v{b}, v{b}\nv_fmac_f32 v{q_}, v{c}, v{c}")
    for base in (SU, SQ):
        for j in range(8): A(f"v_add_f32_dpp v{base+j}, v{base+j}, v{base+j} row_ror:8 row_mask:0xf bank_mask:0x3")
    for base in (SU, SQ):
        for j in range(8): A(f"v_add_f32_dpp v{base+j}, v{base+j+8}, v{base+j+8} row_ror:8 row_mask:0xf bank_mask:0xc")
    for base in (SU, SQ):
        for j in range(4): A(f"v_add_f32_dpp v{base+j}, v{base+j}, v{base+j} row_half_mirror row_mask:0xf bank_mask:0x5")
    for base in (SU, SQ):
        for j in range(4): A(f"v_add_f32_dpp v{base+j}, v{base+j+4}, v{base+j+4} row_half_mirror row_mask:0xf bank_mask:0xa")
    for base in (SU, SQ):
        for j in range(4):
            A(f"v_add_f32_dpp v{base+j}, v{base+j}, v{base+j} quad_perm:[2,3,0,1] row_mask:0xf bank_mask:0xf")
    for base in (SU, SQ):
        for j in range(4):
            A(f"v_add_f32_dpp v{base+j}, v{base+j}, v{base+j} quad_perm:[1,0,3,2] row_mask:0xf bank_mask:0xf")
    A(f"""
    s_lshl_b32 s18, s17, 10
    s_lshl_b32 s19, s16, 9
    s_add_u32 s18, s18, s19
    s_add_u32 s18, s18, {Z_PART}
    v_lshrrev_b32 v3, 2, v1
    v_lshlrev_b32 v3, 7, v3
    v_lshl_add_u32 v3, v2, 5, v3
    v_add_u32 v3, s18, v3
    s_mov_b64 s[12:13], exec
    s_mov_b32 s20, 0x11111111
    s_mov_b32 s21, 0x11111111
    s_mov_b64 exec, s[20:21]
    """)
    T = 180
    A(f"v_mov_b32 v{T}, v{SU}\nv_mov_b32 v{T+1}, v{SQ}\nv_mov_b32 v{T+2}, v{SU+1}\nv_mov_b32 v{T+3}, v{SQ+1}")
    A(f"v_mov_b32 v{T+4}, v{SU+2}\nv_mov_b32 v{T+5}, v{SQ+2}\nv_mov_b32 v{T+6}, v{SU+3}\nv_mov_b32 v{T+7}, v{SQ+3}")
    A(f"ds_write_b128 v3, v[{T}:{T+3}]\nds_write_b128 v3, v[{T+4}:{T+7}] offset:16")
    A("s_mov_b64 exec, s[12:13]\ns_waitcnt lgkmcnt(0)")

def z_publish_stats(A, NONCE):
    A(f"s_sub_u32 s21, s3, 4\ns_lshl_b32 s21, s21, 9\nv_lshlrev_b32 v20, 3, v0\nv_add_u32 v20, s21, v20")
    A(f"v_add_u32 v60, {Z_PART}, v20")
    A(f"ds_read_b64 v[22:23], v60\nds_read_b64 v[24:25], v60 offset:1024\ns_waitcnt lgkmcnt(0)")
    A(f"v_add_f32 v28, v22, v24\nv_add_f32 v30, v23, v25\nv_mov_b32 v29, s{NONCE}\nv_mov_b32 v31, s{NONCE}")
    A("s_lshl_b32 s21, s4, 14")
    make_srd(A, 92, P_WS, ST_OFF, 16384, off_sgpr=21)
    A("v_lshlrev_b32 v61, 1, v20\ns_lshl_b32 s21, s5, 11")
    A("buffer_store_dwordx4 v[28:31], v61, s[92:95], s21 offen sc1")

def z_gather_issue(A):
    for c in range(8):
        A(f"s_mov_b32 s21, {c*2048}\nbuffer_load_dwordx4 v[{64+4*c}:{67+4*c}], v61, s[92:95], s21 offen sc1")

def z_gather_finish(A, NONCE, spin_max):
    lp = A.newlabel("Lst"); ok = A.newlabel("Lstok")
    A("s_mov_b32 s20, 0")
    A.label(lp)
    A("s_waitcnt vmcnt(0)")
    A(f"v_mov_b32 v12, 0")
    for c in range(8):
        A(f"v_xor_b32 v13, s{NONCE}, v{65+4*c}\nv_or_b32 v12, v12, v13\nv_xor_b32 v13, s{NONCE}, v{67+4*c}\nv_or_b32 v12, v12, v13")
    A(f"v_cmp_ne_u32 vcc, 0, v12\ns_cmp_eq_u64 vcc, 0\ns_cbranch_scc1 {ok}")
    A(f"s_add_u32 s20, s20, 1\ns_cmp_gt_u32 s20, {spin_max}\ns_cbranch_scc1 {ok}\ns_sleep 1")
    z_gather_issue(A)
    A(f"s_branch {lp}")
    A.label(ok)
    A("v_add_f32 v4, v64, v68\nv_add_f32 v5, v66, v70")
    for c in range(2, 8): A(f"v_add_f32 v4, v4, v{64+4*c}\nv_add_f32 v5, v5, v{66+4*c}")
    inv = fbits(1.0 / 768.0)
    A(f"""
    v_mul_f32 v4, {inv:#x}, v4
    v_mul_f32 v5, {inv:#x}, v5
    v_fma_f32 v5, -v4, v4, v5
    v_max_f32 v5, 0, v5
    v_add_f32 v5, {fbits(1e-5):#x}, v5
    v_rsq_f32 v6, v5
    s_nop 0
    v_mul_f32 v7, -v4, v6
    """)
    A(f"ds_write_b64 v60, v[6:7] offset:{Z_STAT - Z_PART}\ns_waitcnt lgkmcnt(0)")

def z_epi_norm(A, sc_st=""):
    ST = 112
    A(f"s_lshl_b32 s19, s16, 9\ns_add_u32 s19, s19, {Z_STAT}\nv_lshlrev_b32 v3, 5, v2\nv_add_u32 v3, s19, v3")
    for m in range(4):
        A(f"ds_read_b128 v[{ST+8*m}:{ST+8*m+3}], v3 offset:{m*128}\nds_read_b128 v[{ST+8*m+4}:{ST+8*m+7}], v3 offset:{m*128+16}")
    A(f"s_mul_i32 s18, s5, 393216\ns_lshl_b32 s19, s4, 2\ns_lshl_b32 s20, s16, 1\ns_add_u32 s19, s19, s20\ns_mul_i32 s19, s19, 6144\ns_add_u32 s18, s18, s19\ns_mul_i32 s19, s17, 3072\ns_add_u32 s18, s18, s19")
    make_srd(A, 8, P_WS, ZN_OFF, 6144 + 3072, off_sgpr=18)
    A("v_lshlrev_b32 v4, 4, v0\ns_waitcnt lgkmcnt(0)")
    for P in range(2):
        for t in range(3):
            o = 144 + 4 * (P * 3 + t)
            for j in range(2):
                m = 2 * P + j
                d = ZA2 + (m * 3 + t) * 4
                for r in range(4):
                    A(f"v_fma_f32 v{d+r}, v{d+r}, v{ST+8*m+2*r}, v{ST+8*m+2*r+1}")
                A(f"v_cvt_pk_bf16_f32 v{o+2*j}, v{d}, v{d+1}\nv_cvt_pk_bf16_f32 v{o+2*j+1}, v{d+2}, v{d+3}")
            A(f"v_permlane32_swap_b32 v{o}, v{o+2}\nv_permlane32_swap_b32 v{o+1}, v{o+3}")
            A(f"v_permlane16_swap_b32 v{o}, v{o+2}\nv_permlane16_swap_b32 v{o+1}, v{o+3}")
            A(f"s_mov_b32 s19, {P*6144 + t*1024}\nbuffer_store_dwordx4 v[{o}:{o+3}], v4, s[8:11], s19 offen {sc_st}")

def z_epi_z1(A, sc_st=""):
    C1, C2, T = 176, 178, 180
    gelu_regs(A, ZA1, 48, C1, C2, T)
    A(f"s_lshl_b32 s18, s4, 1\ns_add_u32 s18, s18, s16\ns_lshl_b32 s18, s18, 3\ns_add_u32 s18, s18, s5\ns_lshl_b32 s18, s18, 2\ns_lshl_b32 s19, s17, 1\ns_add_u32 s18, s18, s19\ns_mul_i32 s18, s18, 3072")
    make_srd(A, 8, P_WS, Z1_OFF, 6144, off_sgpr=18)
    A("v_lshlrev_b32 v4, 4, v0")
    for wt in range(2):
        for t in range(3):
            o = 192 + 4 * (wt * 3 + t)
            for j in range(2):
                d = ZA1 + (t * 4 + 2 * wt + j) * 4
                A(f"v_cvt_pk_bf16_f32 v{o+2*j}, v{d}, v{d+1}\nv_cvt_pk_bf16_f32 v{o+2*j+1}, v{d+2}, v{d+3}")
            A(f"s_mov_b32 s19, {wt*3072 + t*1024}\nbuffer_store_dwordx4 v[{o}:{o+3}], v4, s[8:11], s19 offen {sc_st}")
```

```python
import sys
import common
from common import *
import p1, p2, p3, zrole
from p1 import *

NONCE = 62
RB64, CB = 60, 61
ZF_OFF, OF_OFF, PF_OFF, HF_OFF, Z1F_OFF = 0x0000, 0x1000, 0x2000, 0x3000, 0x0800
LAZY = 63
NONCE_LDS = 163824 - 2048
NONCE_LDS = 161792
SPIN_MAX = 1 << 17

def flag_srd(A):
    make_srd(A, 28, P_WS, FL_OFF, 0x4000)

def set_flag(A, soff_sgpr):
    flag_srd(A)
    A(f"s_mov_b64 s[32:33], exec\ns_mov_b64 exec, 1\nv_mov_b32 v250, 0\nv_mov_b32 v251, s{NONCE}")
    A(f"buffer_store_dword v251, v250, s[28:31], s{soff_sgpr} offen sc1")
    A("s_mov_b64 exec, s[32:33]")

def wait_flags(A, soff_sgpr, n):
    flag_srd(A)
    lo = (1 << min(n, 32)) - 1; hi = (1 << max(n - 32, 0)) - 1
    lp = A.newlabel("Lw"); ok = A.newlabel("Lwok")
    A(f"s_mov_b64 s[32:33], exec\ns_mov_b32 exec_lo, {lo:#x}\ns_mov_b32 exec_hi, {hi:#x}\nv_lshlrev_b32 v250, 2, v0\ns_mov_b32 s34, 0")
    A.label(lp)
    A(f"buffer_load_dword v251, v250, s[28:31], s{soff_sgpr} offen sc1\ns_waitcnt vmcnt(0)")
    A(f"v_cmp_ne_u32 vcc, s{NONCE}, v251\ns_cmp_eq_u64 vcc, 0\ns_cbranch_scc1 {ok}")
    A(f"s_add_u32 s34, s34, 1\ns_cmp_gt_u32 s34, {SPIN_MAX}\ns_cbranch_scc1 {ok}\ns_sleep 1\ns_branch {lp}")
    A.label(ok)
    A("s_mov_b64 exec, s[32:33]")

def poll_issue(A, soff_sgpr, n, vreg):
    flag_srd(A)
    A(f"v_min_u32 v250, {n-1}, v0\nv_lshlrev_b32 v250, 2, v250\nbuffer_load_dword v{vreg}, v250, s[28:31], s{soff_sgpr} offen sc1")

def poll_check(A, soff_sgpr, n, vreg):
    ok = A.newlabel("Lpok")
    A(f"v_cmp_ne_u32 vcc, s{NONCE}, v{vreg}\ns_cmp_eq_u64 vcc, 0\ns_cbranch_scc1 {ok}")
    wait_flags(A, soff_sgpr, n)
    A.label(ok)

def read_nonce_lds(A):
    A(f"v_mov_b32 v250, {NONCE_LDS}\nds_read_b32 v251, v250\ns_waitcnt lgkmcnt(0)\nv_readfirstlane_b32 s{NONCE}, v251")

def touch_prefetch(A):
    A("s_lshr_b32 s16, s2, 3\ns_lshl_b32 s16, s16, 2\ns_add_u32 s16, s16, s3\ns_lshl_b32 s16, s16, 6")
    A("v_add_u32 v240, s16, v0")
    A("s_and_b32 s17, s2, 7\ns_lshr_b32 s18, s17, 1\ns_and_b32 s18, s18, 1\ns_and_b32 s19, s17, 1")
    make_srd(A, 8, P_AX, 0, 2048 * 1280)
    A("s_lshl_b32 s20, s18, 10\ns_movk_i32 s21, 1280")
    A("v_and_b32 v241, 1023, v240\nv_add_u32 v241, s20, v241\nv_mul_u32_u24 v241, s21, v241\nv_lshrrev_b32 v242, 10, v240\nv_lshl_add_u32 v241, v242, 7, v241")
    A("buffer_load_dword v245, v241, s[8:11], 0 offen")
    wq = A.newlabel("Ltq"); wj = A.newlabel("Ltj")
    A(f"s_cmp_eq_u32 s6, 1\ns_cbranch_scc1 {wq}")
    def wpart(nl, per_seg, rs, segstride, colhalf_bytes, ptr, size, total):
        make_srd(A, 12, ptr, 0, size)
        A(f"s_mul_i32 s22, s19, {colhalf_bytes}")
        for part in range(2):
            A(f"v_add_u32 v243, {8192*part}, v240")
            udiv_small(A, 243, 244, 246, nl, 23, 16384)
            udiv_small(A, 246, 247, 248, per_seg, 23, 16)
            A(f"s_movk_i32 s23, {rs}\nv_mul_u32_u24 v244, s23, v244\ns_movk_i32 s23, {segstride}\nv_mul_u32_u24 v247, s23, v247\nv_lshlrev_b32 v248, 7, v248\nv_add3_u32 v244, v244, v247, v248")
            if part == 1:
                A(f"v_cmp_gt_u32 vcc, {total}, v243\nv_cndmask_b32 v244, -1, v244, vcc")
            A(f"buffer_load_dword v{249+part}, v244, s[12:15], s22 offen")
    wpart(15, 5, 3840, 1280, 640, P_WQKV, 640 * 3840, 9600)
    A(f"s_branch {wj}")
    A.label(wq)
    wpart(12, 6, 3072, 1536, 768, P_WIN, 640 * 3072, 7680)
    A.label(wj)
    A("v_add_u32 v241, 1024, v241\nv_cmp_gt_u32 vcc, 2048, v240\nv_cndmask_b32 v241, -1, v241, vcc")
    A("buffer_load_dword v251, v241, s[8:11], 0 offen")

def touch_wsp(A):
    A(f"s_lshl_b32 s26, s{RB64}, 18\ns_lshl_b32 s27, s{CB}, 15\ns_add_u32 s26, s26, s27\ns_lshl_b32 s27, s3, 13\ns_add_u32 s26, s26, s27")
    make_srd(A, 28, P_WSP, 0, 2048 * 4096)
    A("v_lshlrev_b32 v240, 7, v0\nbuffer_load_dword v242, v240, s[28:31], s26 offen")

def touch_wsp_l2(A):
    A(f"s_lshl_b32 s24, s{RB64}, 18\ns_and_b32 s25, s{CB}, 3\ns_lshl_b32 s25, s25, 16\ns_add_u32 s24, s24, s25")
    make_srd(A, 92, P_WSP, 0, 2048 * 4096)
    A("s_sub_u32 s25, s3, 4\ns_lshl_b32 s25, s25, 7\nv_add_u32 v230, s25, v0")
    for j in range(2):
        A(f"v_add_u32 v231, {64*j}, v230\nv_and_b32 v232, 15, v231\nv_lshrrev_b32 v231, 4, v231\nv_lshlrev_b32 v231, 7, v231\nv_lshl_add_u32 v231, v232, 12, v231")
        A(f"buffer_load_dword v{233+j}, v231, s[92:95], s24 offen")

def touch_z(A, sc):
    A(f"s_mul_i32 s24, s5, 393216")
    make_srd(A, 92, P_WS, ZN_OFF, 393216, off_sgpr=24)
    A("s_and_b32 s24, s4, 7\ns_mul_i32 s24, s24, 768")
    A("s_sub_u32 s25, s3, 4\ns_lshl_b32 s25, s25, 6\nv_add_u32 v230, s25, v0")
    for j in range(2):
        A(f"v_add_u32 v231, {256*j}, v230")
        udiv_small(A, 231, 232, 233, 12, 25, 512)
        udiv_small(A, 233, 234, 235, 6, 25, 12)
        A("v_lshl_add_u32 v232, v234, 5, v232\ns_movk_i32 s25, 6144\nv_mul_u32_u24 v232, s25, v232\nv_lshl_add_u32 v232, v235, 7, v232")
        if j == 1: A("v_cmp_gt_u32 vcc, 384, v231\nv_cndmask_b32 v232, -1, v232, vcc")
        A(f"buffer_load_dword v{236+j}, v232, s[92:95], s24 offen {sc}")

def touch_wp(A, sc):
    A(f"s_mul_i32 s24, s5, {WP_CB}")
    make_srd(A, 92, P_WS, WP_OFF, WP_CB, off_sgpr=24)
    A("s_sub_u32 s25, s3, 4\ns_lshl_b32 s25, s25, 6\nv_add_u32 v230, s25, v0\nv_lshlrev_b32 v231, 3, v230\ns_and_b32 s24, s4, 7\nv_add_u32 v231, s24, v231\nv_lshlrev_b32 v231, 7, v231")
    A(f"buffer_load_dword v238, v231, s[92:95], 0 offen {sc}")

def touch_a3(A, sc, blk0, nblk):
    total = 4 * nblk * 8
    A(f"s_mul_i32 s24, s4, {4*44*1024}")
    make_srd(A, 92, P_WS, A3_OFF, 4 * 44 * 1024, off_sgpr=24)
    A("s_and_b32 s24, s5, 3")
    n = -(-total // 4 // 64)
    for j in range(n):
        A(f"v_add_u32 v230, {64*j}, v0\nv_lshlrev_b32 v230, 2, v230\nv_add_u32 v230, s24, v230")
        A(f"v_lshrrev_b32 v231, 5, v230\nv_bfe_u32 v232, v230, 3, 2\nv_and_b32 v233, 7, v230\nv_mul_u32_u24 v232, 44, v232\nv_add3_u32 v231, v231, v232, {blk0}\nv_lshlrev_b32 v231, 10, v231\nv_lshl_add_u32 v231, v233, 7, v231")
        A(f"v_cmp_gt_u32 vcc, {total}, v230\nv_cndmask_b32 v231, -1, v231, vcc")
        A(f"buffer_load_dword v{239+j}, v231, s[92:95], 0 offen {sc}")

def nonce_issue(A):
    make_srd(A, 28, P_DBG, 0, 256)
    A("v_mov_b32 v243, 0\nbuffer_load_dword v244, v243, s[28:31], 0 offen sc1")

def nonce_take(A):
    ok = A.newlabel("Lnok")
    A(f"s_waitcnt vmcnt(0)\nv_readfirstlane_b32 s{NONCE}, v244\ns_cmp_lg_u32 s{NONCE}, 0\ns_cbranch_scc1 {ok}")
    get_nonce(A, NONCE)
    A.label(ok)

def code_prefetch(A, nbytes):
    lines = -(-nbytes // 128)
    per = -(-lines // 32)
    assert per <= 64
    pc = A.newlabel("Lpc")
    A("s_getpc_b64 s[16:17]")
    A.label(pc)
    A(f"s_sub_u32 s16, s16, {pc}-{NAME}_kernel\ns_subb_u32 s17, s17, 0")
    A(f"s_lshr_b32 s18, s2, 3\ns_mul_i32 s18, s18, {per*128}\nv_lshlrev_b32 v240, 7, v0\nv_add_u32 v240, s18, v240")
    A(f"v_cmp_gt_u32 vcc, {per}, v0\ns_and_saveexec_b64 s[18:19], vcc")
    A(f"v_min_u32 v240, {nbytes - 4}, v240\nglobal_load_dword v241, v240, s[16:17]\ns_mov_b64 exec, s[18:19]")

def gen(opts):
    A = Asm()
    kstart = A.newlabel("Lkstart")
    end = prologue(A)
    stamp(A, 0); stamp(A, 5, cyc=True)
    p2.wg_map_p23(A)
    A(f"s_mov_b32 s{RB64}, s4\ns_mov_b32 s{CB}, s5")
    wg_map_p1(A)
    def mid_hook(A):
        if opts.get("touch", True): touch_wsp(A)
        nonce_issue(A)
    P1EXIT = A.newlabel("Lp1exit")
    P2 = A.newlabel("LP2")
    zrole_l = A.newlabel("Lz_role")
    SC = "sc1"
    notc = A.newlabel("Lnotc")
    A(f"s_cmp_ge_u32 s3, 4\ns_cbranch_scc1 {notc}")
    pub = A.newlabel("Lpub")
    A(f"s_lshl_b32 s16, s2, 3\ns_add_u32 s16, s16, s3\ns_cmp_lg_u32 s16, 3\ns_cbranch_scc1 {pub}")
    publish_nonce(A)
    A.label(pub)
    if opts.get("touch", True): touch_prefetch(A)
    w3 = A.newlabel("Lw3")
    A(f"s_cmp_lg_u32 s3, 3\ns_cbranch_scc1 {w3}")
    if opts.get("codepf", 0): code_prefetch(A, opts["codepf"])
    A.label(w3)
    A.label(notc)
    A(f"s_cmp_eq_u32 s6, 1\ns_cbranch_scc1 {zrole_l}")
    lw = A.newlabel("Lq_w"); lx = A.newlabel("Lq_x"); att = A.newlabel("Lq_att"); ldj = A.newlabel("Lq_ldj")
    A(f"s_cmp_eq_u32 s3, 7\ns_cbranch_scc1 {lx}\ns_cmp_ge_u32 s3, 4\ns_cbranch_scc1 {lw}")
    qkv_consumer(A)
    wg3 = A.newlabel("Lq_c3")
    A(f"s_cmp_eq_u32 s3, 3\ns_cbranch_scc1 {wg3}")
    for gate in (False, True):
        if gate: A.label(wg3)
        qkv_main(A, gate, mid=mid_hook)
        stamp(A, 3)
        nonce_take(A)
        qkv_epilogue_store(A, gate)
        A(f"s_waitcnt lgkmcnt(0)\ns_barrier\ns_branch {att}")
    A.label(lw)
    pack_issue(A)
    w_loader(A, QKV, late=nonce_issue)
    nonce_take(A)
    pack_finish(A, SC, lazy=True)
    A(f"s_branch {ldj}")
    A.label(lx)
    A("s_mov_b32 s27, 999")
    x_loader(A, QKV, late=nonce_issue)
    nonce_take(A)
    A.label(ldj)
    A("s_barrier")
    p2.p2l_setup(A, RB64)
    p2.p2l_issue(A, 0); p2.p2l_issue(A, 4)
    if opts.get("touch2", True): touch_wsp_l2(A)
    A.label(att)
    stamp(A, 7)
    attention(A, SC)
    A("s_barrier")
    A(f"s_lshl_b32 s16, s4, 7\ns_lshl_b32 s17, s5, 2\ns_add_u32 s16, s16, s17\ns_add_u32 s{LAZY}, s16, {OF_OFF}")
    A(f"s_branch {P2}")
    A.label(zrole_l)
    zld = A.newlabel("Lz_ld")
    A(f"s_cmp_ge_u32 s3, 4\ns_cbranch_scc1 {zld}")
    def between(A):
        zrole.z_epi_stats(A)
        A("s_barrier")
    zrole.z_consumer(A, mid=mid_hook, between=between)
    stamp(A, 7)
    nonce_take(A)
    A("s_barrier")
    zrole.z_epi_norm(A, SC)
    A("s_waitcnt vmcnt(0)\ns_barrier")
    zrole.z_epi_z1(A, SC)
    A(f"s_branch {P2}")
    A.label(zld)
    pk = A.newlabel("Lzpk")
    A(f"s_mov_b32 s27, 999\ns_cmp_ge_u32 s3, 6\ns_cbranch_scc1 {pk}")
    pack_issue(A)
    A.label(pk)
    def st4(A, Q):
        nonce_issue(A); Q.issue(("n", 0), 1)
    def after_z1(A, Q):
        n = Q.wait_for({("n", 0)})
        ok = A.newlabel("Lnok")
        A(f"s_waitcnt vmcnt({n})\nv_readfirstlane_b32 s{NONCE}, v244\ns_cmp_lg_u32 s{NONCE}, 0\ns_cbranch_scc1 {ok}")
        get_nonce(A, NONCE)
        A.label(ok)
        Q.retire(n)
        zrole.z_publish_stats(A, NONCE); Q.issue(("s", 0), 1)
        pack_finish(A, SC, lazy=True); Q.issue(("p", 0), 5)
    def pre_last(A, Q):
        zrole.z_gather_issue(A); Q.issue(("g", 0), 8)
    zrole.z_loader(A, late=None, hooks={"st4": st4, "after_z1": after_z1, "pre_last": pre_last})
    xw = A.newlabel("Lzxw"); xj = A.newlabel("Lzxj")
    A(f"s_cmp_ge_u32 s3, 6\ns_cbranch_scc1 {xw}")
    zrole.z_gather_finish(A, NONCE, SPIN_MAX)
    A(f"s_branch {xj}")
    A.label(xw)
    nonce_issue(A); nonce_take(A)
    A.label(xj)
    A("s_barrier")
    A("s_barrier")
    fl = A.newlabel("Lzf")
    A(f"s_cmp_lg_u32 s3, 4\ns_cbranch_scc1 {fl}")
    A(f"s_lshl_b32 s16, s5, 7\ns_lshl_b32 s17, s4, 2\ns_add_u32 s16, s16, s17\ns_add_u32 s16, s16, {ZF_OFF}")
    set_flag(A, 16)
    A.label(fl)
    p2.p2l_setup(A, RB64)
    p2.p2l_issue(A, 0); p2.p2l_issue(A, 4)
    if opts.get("touch2", True): touch_wsp_l2(A)
    A(f"s_lshl_b32 s16, s4, 5\ns_lshl_b32 s17, s5, 2\ns_add_u32 s16, s16, s17\ns_add_u32 s{LAZY}, s16, {Z1F_OFF}")
    A.label(P2)
    if not p1.FINE: stamp(A, 8)
    if opts.get("p1only"):
        A(f"s_waitcnt vmcnt(0)\ns_branch {P1EXIT}")
    A(f"s_mov_b32 s4, s{RB64}\ns_mov_b32 s5, s{CB}")
    ld2 = A.newlabel("Lp2ld"); fin = A.newlabel("Lfin")
    A(f"s_cmp_ge_u32 s3, 4\ns_cbranch_scc1 {ld2}")
    A(f"s_lshl_b32 s16, s5, 7\ns_add_u32 s16, s16, {ZF_OFF}")
    wait_flags(A, 16, 16)
    if opts.get("delay2"): A("s_sleep 127")
    stamp(A, 9)
    p2.p2_consumer(A, sc_st=SC, sc_ld=opts.get('scld', SC), lazy_z1=True)
    stamp(A, 10)
    p3.p3_consumer(A, sc_ld=opts.get('scld', SC), drain0=True)
    A("s_waitcnt vmcnt(0)")
    A(f"s_branch {fin}")
    A.label(ld2)
    def pf_wait():
        A(f"s_lshl_b32 s21, s5, 8\ns_add_u32 s21, s21, {PF_OFF}")
        wait_flags(A, 21, 44)
    def only(wave, fn):
        l = A.newlabel("Lonly"); A(f"s_cmp_lg_u32 s3, {wave}\ns_cbranch_scc1 {l}"); fn(); A.label(l)
    def lazy(): set_flag(A, LAZY)
    T2 = opts.get("touch2", True)
    def z1off(): A(f"s_lshr_b32 s21, s4, 1\ns_lshl_b32 s21, s21, 5\ns_lshl_b32 s19, s5, 2\ns_add_u32 s21, s21, s19\ns_add_u32 s21, s21, {Z1F_OFF}")
    def ooff(): A(f"s_lshr_b32 s21, s4, 1\ns_lshl_b32 s21, s21, 7\ns_add_u32 s21, s21, {OF_OFF}")
    def hoff(): A(f"s_lshl_b32 s21, s4, 7\ns_add_u32 s21, s21, {HF_OFF}")
    def start2():
        pk = A.newlabel("Lpkf")
        A(f"s_cmp_ge_u32 s27, 352\ns_cbranch_scc1 {pk}")
        pack_flag(A)
        A.label(pk)
        if T2:
            A(f"s_lshl_b32 s21, s5, 7\ns_add_u32 s21, s21, {ZF_OFF}")
            wait_flags(A, 21, 16)
            touch_z(A, opts.get('sctouch', SC))
    def post_b1():
        only(4, lazy)
    def post_b2():
        only(5, lambda: (z1off(), poll_issue(A, 21, 1, 228)))
        only(6, lambda: (ooff(), poll_issue(A, 21, 8, 228)))
        A(f"s_lshl_b32 s21, s5, 8\ns_add_u32 s21, s21, {PF_OFF}")
        poll_issue(A, 21, 44, 229)
    def pre_b3():
        A("s_waitcnt vmcnt(0)")
        only(5, lambda: (z1off(), poll_check(A, 21, 1, 228)))
        only(6, lambda: (ooff(), poll_check(A, 21, 8, 228)))
        A(f"s_lshl_b32 s21, s5, 8\ns_add_u32 s21, s21, {PF_OFF}")
        poll_check(A, 21, 44, 229)
    def hflag():
        A(f"s_lshl_b32 s21, s4, 7\ns_lshl_b32 s19, s5, 2\ns_add_u32 s21, s21, s19\ns_add_u32 s21, s21, {HF_OFF}")
        set_flag(A, 21)
    hooks = {"start": start2, "post_b1": post_b1, "post_b2": post_b2, "before_b3": pre_b3}
    hooks3 = {("post", 1): lambda: only(4, hflag),
              ("post", 3): lambda: only(5, lambda: (hoff(), poll_issue(A, 21, 8, 228))),
              ("pre", 4): lambda: only(5, lambda: (A("s_waitcnt vmcnt(0)"), hoff(), poll_check(A, 21, 8, 228)))}
    p2.p2_loader_rest(A, RB64, opts.get('scld', SC), hooks, hooks3)
    A.label(fin)
    A.label(P1EXIT)
    stamp(A, 4); stamp(A, 6, cyc=True)
    dump_stamps(A, 14)
    A.label(end)
    A("s_endpgm")
    txt = A.text(verbose=True)
    return txt.replace("SC_ST", SC)

def pack_flag_factory(A):
    pass

def pack_flag(A):
    A(f"s_and_b32 s16, s27, 7\ns_lshl_b32 s16, s16, 8\ns_lshr_b32 s17, s27, 3\ns_lshl_b32 s17, s17, 2\ns_add_u32 s16, s16, s17\ns_add_u32 s16, s16, {PF_OFF}")
    set_flag(A, 16)

if __name__ == "__main__":
    common.set_profile("prof" in sys.argv)
    opts = {"touch": "notouch" not in sys.argv, "p1only": "p1only" in sys.argv, "touch2": "touch2" in sys.argv}
    if "plainld" in sys.argv: opts["scld"] = ""
    opts["delay2"] = "delay2" in sys.argv
    if "plaintouch" in sys.argv: opts["sctouch"] = ""
    body = gen(opts)
    if "nocodepf" not in sys.argv:
        import subprocess
        tmp = build_file([(NAME + "_kernel", body, 256, 102, 256)], [(NAME + "_kernel", 256, 512, LDS_MAX)])
        open("_tmp.s", "w").write(tmp)
        subprocess.run(["clang", "-x", "assembler", "-target", "amdgcn-amd-amdhsa", "-mcpu=gfx950", "-c", "_tmp.s", "-o", "_tmp.o"], check=True)
        out = subprocess.run(["llvm-readelf", "-S", "_tmp.o"], capture_output=True, text=True).stdout
        size = [int(l.split("PROGBITS")[1].split()[2], 16) for l in out.splitlines() if ".text" in l][0]
        opts["codepf"] = size - 256
        body = gen(opts)
        print("code bytes", size)
    txt = build_file([(NAME + "_kernel", body, 256, 102, 256)], [(NAME + "_kernel", 256, 512, LDS_MAX)])
    open(sys.argv[1], "w").write(txt)
```

```python
import sys; sys.path.insert(0, "tools")
from asmlib import *

A3_OFF = 0x000000
A3_SIZE = 32 * 4 * 44 * 1024
G_OFF  = 0x580000
Z1_OFF = 0x600000
ZN_OFF = 0x900000
ST_OFF = 0xC00000
FL_OFF = 0xC80000
WP_OFF = 0xD00000
WP_CB = 44 * 5 * 1024
LDS_MAX = 163840

P_AX, P_WQKV, P_WO, P_BX, P_WIN, P_WSP, P_BSP, P_WOUT = 36, 38, 40, 42, 44, 46, 48, 50
P_GATE, P_OUT, P_DBG, P_WS = 52, 54, 56, 58
S_WAVE = 3

def prologue(A, ngrid=256, codepf=0, kname=None):
    end = A.newlabel("Lexit")
    A(f"""
    s_cmp_ge_u32 s2, {ngrid}
    s_cbranch_scc1 {end}
    s_load_dwordx16 s[36:51], s[0:1], 0
    s_load_dwordx8 s[52:59], s[0:1], 64""")
    if codepf:
        pc = A.newlabel("Lpc"); sk = A.newlabel("Lpcs")
        A("s_getpc_b64 s[16:17]")
        A.label(pc)
        A(f"s_sub_u32 s16, s16, {pc}-{kname}\ns_subb_u32 s17, s17, 0")
        A(f"s_lshr_b32 s18, s2, 3\ns_lshl_b32 s18, s18, 11\nv_lshlrev_b32 v240, 7, v0\nv_add_u32 v240, s18, v240\nv_min_u32 v240, {codepf - 4}, v240")
        A(f"v_cmp_gt_u32 vcc, 16, v0\ns_and_saveexec_b64 s[18:19], vcc\ns_cbranch_execz {sk}\nglobal_load_dword v255, v240, s[16:17]")
        A.label(sk)
        A("s_mov_b64 exec, s[18:19]")
    A(f"""
    v_lshrrev_b32 v1, 6, v0
    v_and_b32 v0, 63, v0
    v_readfirstlane_b32 s{S_WAVE}, v1
    s_waitcnt lgkmcnt(0)
    """)
    return end

def make_srd(A, d, ptr, off, size, off_sgpr=None):
    A(f"s_add_u32 s{d}, s{ptr}, {off}" if off else f"s_mov_b32 s{d}, s{ptr}")
    A(f"s_addc_u32 s{d+1}, s{ptr+1}, 0" if off else f"s_mov_b32 s{d+1}, s{ptr+1}")
    if off_sgpr is not None:
        A(f"s_add_u32 s{d}, s{d}, s{off_sgpr}")
        A(f"s_addc_u32 s{d+1}, s{d+1}, 0")
    A(f"s_mov_b32 s{d+2}, {size}")
    A(f"s_mov_b32 s{d+3}, 0x00020000")

class VmQueue:
    def __init__(self): self.q = []
    def issue(self, tag, n=1): self.q += [tag] * n
    def wait_for(self, tags):
        last = -1
        for i, t in enumerate(self.q):
            if t in tags: last = i
        n = len(self.q) - 1 - last
        return n
    def retire(self, n):
        self.q = self.q[len(self.q) - n:] if n > 0 else []

PROF_OFF = 0x1000000
PROFILE = False
def set_profile(x):
    global PROFILE
    PROFILE = x
FINE2 = 'fine2' in sys.argv
FINE3 = 'fine3' in sys.argv
def stamp(A, i, cyc=False, f2=False, f3=False):
    if not PROFILE: return
    if FINE3:
        if not f3 and i != 0: return
    else:
        if f3: return
        if FINE2 and not f2 and i != 0: return
        if f2 and not FINE2: return
    if 'allcyc' in sys.argv: cyc = True
    A(f"{'s_memtime' if cyc else 's_memrealtime'} s[{64+2*i}:{65+2*i}]\ns_waitcnt lgkmcnt(0)")
def dump_stamps(A, n):
    if not PROFILE: return
    A(f"s_lshl_b32 s60, s2, 3\ns_add_u32 s60, s60, s3\ns_lshl_b32 s60, s60, 6")
    A(f"s_add_u32 s96, s{P_WS}, {PROF_OFF}\ns_addc_u32 s97, s{P_WS+1}, 0\ns_mov_b32 s98, 0x100000\ns_mov_b32 s99, 0x00020000")
    A("v_mov_b32 v250, 0")
    for i in range(n):
        A(f"v_mov_b32 v251, s{64+2*i}\nbuffer_store_dword v251, v250, s[96:99], s60 offen offset:{4*i}")
    A("s_waitcnt vmcnt(0)")
```

```python
from common import *

FINE = 'fine' in sys.argv
NOLOAD = 'noload' in sys.argv
NOBAR = 'nobar' in sys.argv
NSUB = 20
MIXED = 'mixed' in sys.argv
ROT = 'norot' not in sys.argv
S_V0 = 7
def rot_setup(A):
    if not ROT:
        A('s_mov_b32 s7, 0'); return
    A('s_lshr_b32 s7, s2, 5\ns_and_b32 s7, s7, 7\ns_lshr_b32 s16, s2, 3\ns_and_b32 s16, s16, 3\ns_mul_i32 s16, s16, 3\ns_add_u32 s7, s7, s16\ns_cmp_ge_u32 s7, 10\ns_cselect_b32 s16, 10, 0\ns_sub_u32 s7, s7, s16')

def wg_map_p1(A):
    if MIXED:
        A("""
        s_and_b32 s6, s2, 7
        s_lshr_b32 s7, s2, 3
        s_lshr_b32 s4, s6, 1
        s_lshl_b32 s4, s4, 2
        s_lshr_b32 s5, s7, 2
        s_and_b32 s5, s5, 3
        s_add_u32 s4, s4, s5
        s_and_b32 s5, s6, 1
        s_lshl_b32 s5, s5, 2
        s_and_b32 s6, s7, 3
        s_add_u32 s5, s5, s6
        s_lshr_b32 s6, s7, 4
        """)
        return
    A("""
    s_and_b32 s6, s2, 7
    s_lshr_b32 s7, s2, 3
    s_and_b32 s4, s6, 2
    s_lshl_b32 s4, s4, 2
    s_lshr_b32 s5, s7, 2
    s_add_u32 s4, s4, s5
    s_and_b32 s5, s6, 1
    s_lshl_b32 s5, s5, 2
    s_and_b32 s7, s7, 3
    s_add_u32 s5, s5, s7
    s_lshr_b32 s6, s6, 2
    """)

def udiv_small(A, q, d, r, n, tmp_s, qmax):
    for sh in range(10, 24):
        m = -(-(1 << sh) // n)
        if all((x * m) >> sh == x // n for x in range(qmax)) and m * qmax < (1 << 32) and m < (1 << 24): break
    else: raise ValueError
    A(f"s_mov_b32 s{tmp_s}, {m}")
    A(f"v_mul_u32_u24 v{d}, s{tmp_s}, v{q}")
    A(f"v_lshrrev_b32 v{d}, {sh}, v{d}")
    A(f"v_mul_u32_u24 v{r}, {n}, v{d}")
    A(f"v_sub_u32 v{r}, v{q}, v{r}")

class Role:
    pass
QKV = Role(); QKV.name = "qkv"
QKV.W_SLOT = 18432; QKV.NW = 5; QKV.W_RING = 0
QKV.X_SLOT = 18432; QKV.NX = 3; QKV.X_RING = 92160; QKV.MT = 9
QKV.WI = 6
QKV.GATE = 147456
Z = Role(); Z.name = "z"
Z.W_SLOT = 12288; Z.NW = 6; Z.W_RING = 0
Z.X_SLOT = 16384; Z.NX = 3; Z.X_RING = 73728; Z.MT = 8
Z.WI = 4

def barrier_plan_loader(R, A, issue, Q, tags_needed, late=None, each=None):
    for u in range(NSUB):
        n = Q.wait_for(tags_needed(u))
        if FINE and u in (9, 10): stamp(A, 8 + 3 * (u - 9), cyc=True)
        A(f"s_waitcnt vmcnt({min(n, 63)})"); Q.retire(min(n, 63))
        if FINE and u in (9, 10): stamp(A, 9 + 3 * (u - 9), cyc=True)
        if not (NOBAR and R is QKV and u > 0): A("s_barrier")
        if FINE and u in (9, 10): stamp(A, 10 + 3 * (u - 9), cyc=True)
        if u == 0: stamp(A, 2)
        if u == 0 and 'st0' in sys.argv: A("s_memrealtime s[72:73]")
        issue(u)
        if each: each(A, Q, u)
        if late and u == NSUB - 1: late(A)

def w_loader(A, R, late=None, pre=None, early=None, each=None):
    SRD = 8
    A("s_sub_u32 s16, s3, 4")
    if R is QKV:
        make_srd(A, SRD, P_WQKV, 0, 640 * 3840)
        A("s_mul_i32 s17, s5, 160\ns_and_b32 s18, s5, 1\ns_lshl_b32 s18, s18, 5\ns_sub_u32 s17, s17, s18")
        rowc, rs_src = 36, 3840
    else:
        make_srd(A, SRD, P_WIN, 0, 640 * 3072)
        A("s_mul_i32 s17, s5, 192")
        rowc, rs_src = 24, 3072
    VO = 2
    for e in range(R.WI):
        A(f"s_mul_i32 s18, s16, {64 * R.WI}\ns_add_u32 s18, s18, {64 * e}\nv_add_u32 v12, s18, v0")
        udiv_small(A, 12, 13, 14, rowc, 19, 64 * R.WI * 3)
        if R is QKV:
            A("v_lshrrev_b32 v15, 2, v13\nv_and_b32 v15, 2, v15\nv_xor_b32 v14, v14, v15")
            udiv_small(A, 14, 15, 16, 12, 19, 36)
            A(f"s_movk_i32 s19, 1280\nv_mul_u32_u24 v15, s19, v15\nv_lshl_add_u32 v15, v16, 4, v15")
        else:
            A("""
            v_and_b32 v15, 2, v13
            v_lshrrev_b32 v16, 1, v13
            v_and_b32 v16, 4, v16
            v_or_b32 v15, v15, v16
            v_xor_b32 v14, v14, v15
            """)
            udiv_small(A, 14, 15, 16, 12, 19, 24)
            A(f"s_movk_i32 s19, 1536\nv_mul_u32_u24 v15, s19, v15\nv_lshl_add_u32 v15, v16, 4, v15")
        A(f"s_movk_i32 s19, {rs_src}\nv_mul_u32_u24 v13, s19, v13\nv_add3_u32 v{VO+e}, v13, v15, s17")
    A(f"s_mul_i32 s18, s16, {R.WI * 1024}")
    Q = VmQueue()
    A("s_lshl_b32 s21, s7, 1")
    def issue_w(u):
        A(f"s_mul_i32 s20, s21, {32 * rs_src}\ns_add_u32 s21, s21, 1\ns_cmp_eq_u32 s21, 20\ns_cselect_b32 s21, 0, s21")
        for e in range(R.WI):
            A(f"s_add_u32 m0, s18, {R.W_RING + (u % R.NW) * R.W_SLOT + e * 1024}")
            if not NOLOAD or u < 5: A(f"buffer_load_dwordx4 v{VO+e}, s[{SRD}:{SRD+3}], s20 offen lds")
        Q.issue(("w", u), R.WI)
    if pre: pre()
    if 'st0' in sys.argv: A("s_memrealtime s[70:71]")
    for u in range(2): issue_w(u)
    if early: early()
    stamp(A, 1)
    st = {"n": 2}
    def issue(u):
        lim = min(NSUB, max(R.NW, u - 1 + R.NW)); c = 0
        while st["n"] < lim and c < 2:
            issue_w(st["n"]); st["n"] += 1; c += 1
    barrier_plan_loader(R, A, issue, Q, lambda u: {("w", u)}, late, each)

PACK_LDS = 149504
def pack_issue(A):
    skip = A.newlabel("Lpk")
    A("s_sub_u32 s27, s3, 4\ns_lshl_b32 s27, s27, 8\ns_add_u32 s27, s27, s2")
    A(f"s_cmp_ge_u32 s27, 352\ns_cbranch_scc1 {skip}")
    A("s_and_b32 s32, s27, 7\ns_lshr_b32 s33, s27, 3")
    A(f"s_cmp_lt_u32 s33, 20\ns_cselect_b32 s28, s{P_WO}, s{P_WOUT}\ns_cselect_b32 s29, s{P_WO+1}, s{P_WOUT+1}\ns_cselect_b32 s34, 0, 20")
    A(f"s_mov_b32 s30, {768*1280}\ns_cselect_b32 s30, {640*1280}, s30\ns_mov_b32 s31, 0x00020000")
    A("s_sub_u32 s34, s33, s34\ns_mul_i32 s34, s34, 40960")
    A("s_mul_i32 s35, s32, 160\ns_and_b32 s32, s32, 1\ns_lshl_b32 s32, s32, 5\ns_sub_u32 s35, s35, s32\ns_add_u32 s34, s34, s35")
    A(f"s_sub_u32 s35, s3, 4\ns_mul_i32 s35, s35, 6144\ns_add_u32 s35, s35, {PACK_LDS}")
    for e in range(6):
        A(f"v_add_u32 v17, {64*e}, v0")
        udiv_small(A, 17, 18, 19, 12, 32, 384)
        A(f"s_movk_i32 s32, 1280\nv_mul_u32_u24 v18, s32, v18\nv_lshl_add_u32 v18, v19, 4, v18")
        A(f"s_add_u32 m0, s35, {e*1024}\nbuffer_load_dwordx4 v18, s[28:31], s34 offen lds")
    A.label(skip)

def pack_finish(A, sc_st="", flag=None, lazy=False):
    skip = A.newlabel("Lpf")
    A(f"s_cmp_ge_u32 s27, 352\ns_cbranch_scc1 {skip}")
    if not lazy: A("s_waitcnt vmcnt(0)")
    A("s_and_b32 s32, s27, 7\ns_lshr_b32 s33, s27, 3")
    A("""
    v_and_b32 v17, 15, v0
    v_lshrrev_b32 v18, 4, v0
    v_lshrrev_b32 v19, 2, v17
    v_and_b32 v20, 3, v17
    s_cmp_lt_u32 s33, 20
    s_cselect_b32 s34, 3, 2
    s_cselect_b32 s35, 4, 16
    v_lshlrev_b32 v18, s34, v18
    v_add_u32 v18, v18, v19
    v_mul_u32_u24 v18, 192, v18
    v_lshl_add_u32 v18, v20, 3, v18
    s_and_b32 s32, s27, 1
    s_lshl_b32 s32, s32, 5
    """)
    A(f"s_sub_u32 s34, s3, 4\ns_mul_i32 s34, s34, 6144\ns_add_u32 s34, s34, {PACK_LDS}\ns_add_u32 s34, s34, s32")
    A("v_add_u32 v18, s34, v18\ns_mul_i32 s35, s35, 192\nv_add_u32 v19, s35, v18")
    for nu in range(5):
        A(f"ds_read_b64_tr_b16 v[{24+4*nu}:{25+4*nu}], v18 offset:{nu*32}\nds_read_b64_tr_b16 v[{26+4*nu}:{27+4*nu}], v19 offset:{nu*32}")
    A("s_and_b32 s32, s27, 7\ns_mul_i32 s32, s32, 44\ns_add_u32 s32, s32, s33\ns_mul_i32 s32, s32, 5120")
    make_srd(A, 28, P_WS, WP_OFF, 8 * WP_CB)
    A("v_lshlrev_b32 v20, 4, v0\ns_waitcnt lgkmcnt(0)")
    for nu in range(5):
        A(f"s_add_u32 s33, s32, {nu*1024}\nbuffer_store_dwordx4 v[{24+4*nu}:{27+4*nu}], v20, s[28:31], s33 offen {sc_st}")
    if not lazy: A("s_waitcnt vmcnt(0)")
    if flag: flag()
    A.label(skip)

def x_loader(A, R, late=None, pre=None, each=None):
    SRD = 8
    make_srd(A, SRD, P_AX, 0, 2048 * 1280)
    NI = 2 * R.MT
    A("""
    v_lshrrev_b32 v4, 3, v0
    v_and_b32 v5, 7, v0
    v_lshrrev_b32 v6, 1, v4
    v_xor_b32 v7, v5, v6
    s_movk_i32 s19, 1280
    v_mul_u32_u24 v8, s19, v4
    v_lshl_add_u32 v2, v7, 4, v8
    v_xor_b32 v7, 4, v7
    v_lshl_add_u32 v3, v7, 4, v8
    v_add_u32 v3, 10240, v3
    """)
    if R is QKV:
        A("s_lshl_b32 s17, s4, 7\ns_sub_u32 s17, s17, 16")
        A("""
        v_add_u32 v11, s17, v4
        v_max_i32 v11, 0, v11
        v_mul_u32_u24 v11, s19, v11
        v_xor_b32 v7, v5, v6
        v_lshl_add_u32 v9, v7, 4, v11
        v_add_u32 v11, s17, v4
        v_add_u32 v11, 8, v11
        v_max_i32 v11, 0, v11
        v_mul_u32_u24 v11, s19, v11
        v_xor_b32 v7, 4, v7
        v_lshl_add_u32 v10, v7, 4, v11
        """)
        A("s_mul_i32 s17, s17, 1280")
        if pre: pre()
        make_srd(A, 12, P_GATE, 0, 1280)
        A(f"v_lshlrev_b32 v12, 4, v0\ns_mov_b32 m0, {R.GATE}\ns_nop 0\nbuffer_load_dwordx4 v12, s[12:15], 0 offen lds\nbuffer_load_dwordx4 v12, s[12:15], 0 offen offset:1024 lds")
    else:
        A("s_lshl_b32 s17, s4, 7\ns_mul_i32 s17, s17, 1280")
    Q = VmQueue()
    if R is QKV: Q.issue(("g", 0), 2)
    A("s_mov_b32 s22, s7")
    def issue_x(vs, e0, e1):
        if e0 == 0:
            A("s_lshl_b32 s23, s22, 7\ns_add_u32 s22, s22, 1\ns_cmp_eq_u32 s22, 10\ns_cselect_b32 s22, 0, s22")
        for e in range(e0, e1):
            A(f"s_add_u32 m0, s21, {e * 1024}" if False else f"s_mov_b32 m0, {R.X_RING + (vs % R.NX) * R.X_SLOT + e * 1024}")
            if R is QKV and e < 2:
                A(f"buffer_load_dwordx4 v{9+e}, s[{SRD}:{SRD+3}], s23 offen lds")
            else:
                A(f"s_add_u32 s20, s17, {(e >> 1) * 16 * 1280}\ns_add_u32 s20, s20, s23")
                if not NOLOAD or vs < 3: A(f"buffer_load_dwordx4 v{2 + (e & 1)}, s[{SRD}:{SRD+3}], s20 offen lds")
        Q.issue(("x", vs), e1 - e0)
    issue_x(0, 0, NI)
    stamp(A, 1)
    half = NI // 2
    plan = {}
    plan[0] = [(1, 0, NI)]
    plan[1] = [(2, 0, NI)]
    for vs in range(3, 10):
        u = 2 * (vs - 3) + 3
        plan.setdefault(u, []).append((vs, 0, half))
        plan.setdefault(u + 1, []).append((vs, half, NI))
    def issue(u):
        for (vs, e0, e1) in plan.get(u, []): issue_x(vs, e0, e1)
    need = lambda u: ({("x", u >> 1), ("g", 0)})
    barrier_plan_loader(R, A, issue, Q, need, late, each)

class DsQ:
    def __init__(self): self.q = []
    def issue(self, tag): self.q.append(tag)
    def wait(self, tags):
        last = -1
        for i, t in enumerate(self.q):
            if t in tags: last = i
        n = len(self.q) - 1 - last
        if last < 0: return None
        self.q = self.q[last + 1:]
        return n

Q_ACC = 16; Q_WF = [160, 176]; Q_XF = [192 + 4 * i for i in range(6)]
Q_VW = [216, 217, 218, 219]; Q_VWC = [220, 221, 222, 223]; Q_VXA = [224, 225]; Q_VXC = [226, 227]; Q_VG = 228

def tile_info(T):
    seg, t = T // 5, T % 5
    return (6 * seg + t) * 32, t & 1

def qkv_consumer(A):
    A("v_and_b32 v1, 15, v0\nv_lshrrev_b32 v2, 4, v0")
    A(f"""
    v_lshrrev_b32 v3, 1, v1
    v_xor_b32 v3, v3, v2
    v_lshlrev_b32 v3, 4, v3
    v_lshl_add_u32 v{Q_VXC[0]}, v1, 7, v3
    v_xor_b32 v{Q_VXC[1]}, 64, v{Q_VXC[0]}
    """)
    A(f"""
    v_lshrrev_b32 v3, 2, v1
    v_lshl_add_u32 v3, v2, 3, v3
    s_movk_i32 s19, 576
    v_mul_u32_u24 v3, s19, v3
    v_and_b32 v4, 3, v1
    v_lshl_add_u32 v3, v4, 3, v3
    s_and_b32 s20, s5, 1
    s_lshl_b32 s21, s20, 5
    v_add_u32 v3, s21, v3
    v_and_b32 v4, 1, v2
    v_lshlrev_b32 v4, 5, v4
    """)
    for k in range(4):
        A(f"""
        s_lshl_b32 s21, s3, 2
        s_add_u32 s21, s21, {k}
        s_mul_i32 s22, s21, 52
        s_lshr_b32 s22, s22, 8
        s_mul_i32 s23, s22, 5
        s_sub_u32 s23, s21, s23
        s_mul_i32 s22, s22, 6
        s_add_u32 s22, s22, s23
        s_lshl_b32 s22, s22, 5
        s_add_u32 s23, s23, s20
        s_and_b32 s23, s23, 1
        v_add_u32 v5, v3, v4
        v_sub_u32 v6, v3, v4
        s_cmp_eq_u32 s23, 0
        s_cselect_b64 vcc, -1, 0
        v_cndmask_b32 v5, v6, v5, vcc
        v_add_u32 v{Q_VWC[k]}, s22, v5
        """)
    for T in range(16): assert (T * 52) >> 8 == T // 5

def qkv_main(A, gate, mid=None, it_hook=None, b0hook=None, preb0=None):
    R = QKV
    for i in range(144): A(f"v_mov_b32 v{Q_ACC+i}, 0")
    if gate:
        A(f"v_lshlrev_b32 v{Q_VG+1}, 4, v2\nv_add_u32 v{Q_VG+1}, {R.GATE}, v{Q_VG+1}\ns_lshl_b32 s18, s7, 7\nv_add_u32 v{Q_VG}, s18, v{Q_VG+1}")
    D = DsQ()
    def rd_w(buf, k, half, tag):
        d = Q_WF[buf] + 4 * k
        if gate and k == 3:
            if half == 0:
                A(f"ds_read_b128 v[{d}:{d+3}], v{Q_VG}"); D.issue(tag)
            else:
                A(f"s_add_u32 s18, s18, 64\ns_cmp_eq_u32 s18, 1280\ns_cselect_b32 s18, 0, s18\nv_add_u32 v{Q_VG}, s18, v{Q_VG+1}")
            return
        A(f"ds_read_b64_tr_b16 v[{d+2*half}:{d+2*half+1}], v{Q_VW[k]} offset:{half*4*576}"); D.issue(tag)
    def rd_x(slot, m, kk, tag):
        d = Q_XF[slot]
        A(f"ds_read_b128 v[{d}:{d+3}], v{Q_VXA[kk]} offset:{m * 2048}"); D.issue(tag)
    A(f"s_mov_b32 s22, {R.W_RING}\ns_mov_b32 s23, {R.X_RING}\ns_mov_b32 s24, 0")
    for k in range(4): A(f"v_add_u32 v{Q_VW[k]}, s22, v{Q_VWC[k]}")
    for j in range(2): A(f"v_add_u32 v{Q_VXA[j]}, s23, v{Q_VXC[j]}")
    if preb0: preb0(A)
    stamp(A, 1)
    A("s_barrier")
    stamp(A, 2)
    if b0hook: b0hook(A)
    for k in range(4):
        rd_w(0, k, 0, ("w", 0, k)); rd_w(0, k, 1, ("w", 0, k))
    for m in range(4): rd_x(m % 6, m, 0, ("x", 0, m))
    def substage(kk, has_next, sim):
        base = 9 * kk
        fill = {}
        def add(m, k, fn): fill.setdefault((m, k), []).append(fn)
        for m in range(9):
            if m + 4 < 9: add(m, 0, lambda m=m: rd_x((base + m + 4) % 6, m + 4, kk, ("x", sim, m + 4)))
            elif has_next: add(m, 0, lambda m=m: rd_x((base + m + 4) % 6, m + 4 - 9, kk ^ 1, ("x", sim + 1, m + 4 - 9)))
        if has_next:
            add(0, 1, lambda: A(f"s_add_u32 s22, s22, {R.W_SLOT}"))
            add(0, 2, lambda: A(f"s_cmp_eq_u32 s22, {R.W_RING + R.NW*R.W_SLOT}\ns_cselect_b32 s22, {R.W_RING}, s22"))
            for k in range(4): add(1, k, lambda k=k: A(f"v_add_u32 v{Q_VW[k]}, s22, v{Q_VWC[k]}"))
            def bar():
                if FINE and sim < 2:
                    l1 = A.newlabel("Lf"); A(f"s_cmp_lg_u32 s24, 4\ns_cbranch_scc1 {l1}"); stamp(A, 8 + 3 * sim, cyc=True); A.label(l1)
                if not NOBAR: A("s_barrier")
                if FINE and sim < 2:
                    l1 = A.newlabel("Lf"); A(f"s_cmp_lg_u32 s24, 4\ns_cbranch_scc1 {l1}"); stamp(A, 9 + 3 * sim, cyc=True); A.label(l1)
            add(2, 3, bar)
            for k in range(4):
                add(3 + k, 1, lambda k=k: rd_w(kk ^ 1, k, 0, ("w", sim + 1, k)))
                add(3 + k, 2, lambda k=k: rd_w(kk ^ 1, k, 1, ("w", sim + 1, k)))
            if kk == 1:
                add(2, 1, lambda: A(f"s_add_u32 s23, s23, {R.X_SLOT}"))
                add(2, 2, lambda: A(f"s_cmp_eq_u32 s23, {R.X_RING + R.NX*R.X_SLOT}\ns_cselect_b32 s23, {R.X_RING}, s23"))
                add(4, 1, lambda: A(f"v_add_u32 v{Q_VXA[0]}, s23, v{Q_VXC[0]}"))
                add(4, 3, lambda: A(f"v_add_u32 v{Q_VXA[1]}, s23, v{Q_VXC[1]}"))
        for m in range(9):
            for k in range(4):
                n = D.wait({("x", sim, m), ("w", sim, k)})
                if n is not None: A(f"s_waitcnt lgkmcnt({min(n, 15)})")
                d = Q_ACC + (k * 9 + m) * 4; wf = Q_WF[kk] + 4 * k; xf = Q_XF[(base + m) % 6]
                A(f"v_mfma_f32_16x16x32_bf16 v[{d}:{d+3}], v[{wf}:{wf+3}], v[{xf}:{xf+3}], v[{d}:{d+3}]")
                for fn in fill.get((m, k), []): fn()
    loop = A.newlabel("Lqkv")
    A.label(loop)
    if it_hook: it_hook(A)
    if mid:
        lm = A.newlabel("Lmid"); A(f"s_cmp_lg_u32 s24, 3\ns_cbranch_scc1 {lm}"); mid(A); A.label(lm)
    substage(0, True, 0)
    substage(1, True, 1)
    A("s_add_u32 s24, s24, 1\ns_cmp_lt_u32 s24, 9")
    A(f"s_cbranch_scc1 {loop}")
    substage(0, True, 2)
    substage(1, False, 3)

def qkv_epilogue_store(A, gate):
    A(f"s_movk_i32 s19, 488\nv_mul_u32_u24 v3, s19, v1\nv_lshl_add_u32 v3, v2, 3, v3\ns_lshl_b32 s19, s3, 7\nv_add_u32 v3, s19, v3")
    ntile = 3 if gate else 4
    T = 160
    c = 0
    for k in range(ntile):
        for m in range(9):
            d = Q_ACC + (k * 9 + m) * 4
            o = T + 2 * (c % 12); c += 1
            A(f"v_cvt_pk_bf16_f32 v{o}, v{d}, v{d+1}\nv_cvt_pk_bf16_f32 v{o+1}, v{d+2}, v{d+3}")
            A(f"ds_write_b64 v3, v[{o}:{o+1}] offset:{16*m*488 + 32*k}")
    if gate:
        skip = A.newlabel("Lg")
        A(f"s_cmp_lg_u32 s5, 0\ns_cbranch_scc1 {skip}")
        A("s_lshl_b32 s18, s4, 9")
        make_srd(A, 8, P_WS, G_OFF, 512, off_sgpr=18)
        A("v_lshlrev_b32 v4, 2, v1\ns_mov_b64 s[12:13], exec\ns_mov_b64 exec, 0xffff")
        for m in range(1, 9):
            d = Q_ACC + (3 * 9 + m) * 4
            A(f"v_mul_f32 v{d}, 0xbfb8aa3b, v{d}\nv_exp_f32 v{d}, v{d}\nv_add_f32 v{d}, 1.0, v{d}\nv_rcp_f32 v{d}, v{d}")
            A(f"buffer_store_dword v{d}, v4, s[8:11], 0 offen offset:{(m-1)*64} SC_ST")
        A("s_mov_b64 exec, s[12:13]")
        A.label(skip)

def attention(A, sc_st=""):
    OST = 73728
    RS = 488
    A(f"""
    v_and_b32 v10, 3, v0
    v_lshrrev_b32 v11, 2, v0
    v_and_b32 v12, 3, v11
    v_lshrrev_b32 v13, 4, v0
    v_and_b32 v14, 1, v13
    v_lshrrev_b32 v15, 1, v13
    s_lshl_b32 s16, s3, 4
    """)
    A(f"""
    v_lshlrev_b32 v16, 3, v15
    v_add_u32 v16, v16, v14
    v_lshl_add_u32 v17, v10, 1, v16
    v_add_u32 v17, s16, v17
    s_movk_i32 s19, {RS}
    v_mul_u32_u24 v17, s19, v17
    v_mul_u32_u24 v18, 40, v12
    v_add_u32 v20, v17, v18
    """)
    A(f"""
    v_lshl_add_u32 v17, v12, 1, v16
    v_add_u32 v17, s16, v17
    v_mul_u32_u24 v17, s19, v17
    v_mul_u32_u24 v18, 40, v10
    v_add3_u32 v21, v17, v18, 0
    """)
    QF = 24
    KF = 34
    VF = 34
    S = 64
    P = 76
    PK = 24
    O = 64
    LA, LB, LC = 88, 89, 90
    for dl in range(5): A(f"ds_read_b64 v[{QF+2*dl}:{QF+2*dl+1}], v20 offset:{16*RS + 8*dl}")
    for b in range(3):
        for dl in range(5): A(f"ds_read_b64 v[{KF+2*(b*5+dl)}:{KF+2*(b*5+dl)+1}], v20 offset:{b*8*RS + 160 + 8*dl}")
    A("s_waitcnt lgkmcnt(0)")
    for dl in range(5):
        for b in range(3):
            c = f"v[{S+4*b}:{S+4*b+3}]" if dl else "0"
            A(f"v_mfma_f32_4x4x4_16b_bf16 v[{S+4*b}:{S+4*b+3}], v[{KF+2*(b*5+dl)}:{KF+2*(b*5+dl)+1}], v[{QF+2*dl}:{QF+2*dl+1}], {c}")
    for b in range(3):
        for dl in range(5): A(f"ds_read_b64_tr_b16 v[{VF+2*(b*5+dl)}:{VF+2*(b*5+dl)+1}], v21 offset:{b*8*RS + 320 + 8*dl}")
    A(f"v_cmp_eq_u32 s[20:21], 0, v10\nv_cmp_ge_u32 s[22:23], 1, v10\nv_cmp_ge_u32 s[24:25], 2, v10")
    L = [S+4, S+5, S+6, S+7, S+8, LA, LB, LC]
    A(f"v_cndmask_b32 v{LA}, v{S+9}, v{S+1}, s[20:21]\nv_cndmask_b32 v{LB}, v{S+10}, v{S+2}, s[22:23]\nv_cndmask_b32 v{LC}, v{S+11}, v{S+3}, s[24:25]")
    nomask = A.newlabel("Lnm")
    A(f"s_cmp_lg_u32 s4, 0\ns_cbranch_scc1 {nomask}\ns_cmp_gt_u32 s3, 0\ns_cbranch_scc1 {nomask}")
    A("v_lshlrev_b32 v22, 2, v15\nv_sub_u32 v22, 8, v22\nv_mov_b32 v23, 0xff800000")
    for idx, kap in enumerate([4, 5, 6, 7, 8]):
        A(f"v_cmp_gt_u32 vcc, v22, {kap}\nv_cndmask_b32 v{L[idx]}, v{L[idx]}, v23, vcc")
    for (reg, lo, hi, sm) in ((LA, 1, 9, 20), (LB, 2, 10, 22), (LC, 3, 11, 24)):
        A(f"v_cndmask_b32 v9, {hi}, {lo}, s[{sm}:{sm+1}]\nv_cmp_gt_u32 vcc, v22, v9\nv_cndmask_b32 v{reg}, v{reg}, v23, vcc")
    A.label(nomask)
    import math
    cst = math.log2(math.e) / math.sqrt(20.0)
    import struct
    cbits = struct.unpack("<I", struct.pack("<f", cst))[0]
    A(f"v_max3_f32 v8, v{L[0]}, v{L[1]}, v{L[2]}\nv_max3_f32 v8, v8, v{L[3]}, v{L[4]}\nv_max3_f32 v8, v8, v{L[5]}, v{L[6]}\nv_max_f32 v8, v8, v{L[7]}")
    A(f"s_mov_b32 s26, {cbits:#x}\nv_mul_f32 v8, s26, v8")
    for i in range(8): A(f"v_fma_f32 v{L[i]}, v{L[i]}, s26, -v8")
    for i in range(8): A(f"v_exp_f32 v{L[i]}, v{L[i]}")
    A(f"v_add_f32 v8, v{L[0]}, v{L[1]}\nv_add_f32 v9, v{L[2]}, v{L[3]}\nv_add_f32 v8, v8, v{L[4]}\nv_add_f32 v9, v9, v{L[5]}\nv_add_f32 v8, v8, v{L[6]}\nv_add_f32 v9, v9, v{L[7]}\nv_add_f32 v8, v8, v9\nv_rcp_f32 v8, v8")
    for i in range(8): A(f"v_mul_f32 v{L[i]}, v{L[i]}, v8")
    A(f"v_mov_b32 v{P}, 0")
    A(f"v_cndmask_b32 v{P+1}, 0, v{LA}, s[20:21]\nv_cndmask_b32 v{P+9}, v{LA}, 0, s[20:21]")
    A(f"v_cndmask_b32 v{P+2}, 0, v{LB}, s[22:23]\nv_cndmask_b32 v{P+10}, v{LB}, 0, s[22:23]")
    A(f"v_cndmask_b32 v{P+3}, 0, v{LC}, s[24:25]\nv_cndmask_b32 v{P+11}, v{LC}, 0, s[24:25]")
    src = {0: P, 1: P+1, 2: P+2, 3: P+3, 4: L[0], 5: L[1], 6: L[2], 7: L[3], 8: L[4], 9: P+9, 10: P+10, 11: P+11}
    for b in range(3):
        A(f"v_cvt_pk_bf16_f32 v{PK+2*b}, v{src[4*b]}, v{src[4*b+1]}\nv_cvt_pk_bf16_f32 v{PK+2*b+1}, v{src[4*b+2]}, v{src[4*b+3]}")
    A("s_waitcnt lgkmcnt(0)")
    for b in range(3):
        for dl in range(5):
            c = f"v[{O+4*dl}:{O+4*dl+3}]" if b else "0"
            A(f"v_mfma_f32_4x4x4_16b_bf16 v[{O+4*dl}:{O+4*dl+3}], v[{VF+2*(b*5+dl)}:{VF+2*(b*5+dl)+1}], v[{PK+2*b}:{PK+2*b+1}], {c}")
    A(f"""
    v_lshl_add_u32 v17, v10, 1, v16
    v_mul_u32_u24 v17, 176, v17
    v_mul_u32_u24 v18, 40, v12
    s_mul_i32 s18, s3, 2816
    s_add_u32 s18, s18, {OST}
    v_add3_u32 v17, v17, v18, s18
    """)
    for dl in range(5):
        A(f"v_cvt_pk_bf16_f32 v{PK+6}, v{O+4*dl}, v{O+4*dl+1}\nv_cvt_pk_bf16_f32 v{PK+7}, v{O+4*dl+2}, v{O+4*dl+3}")
        A(f"ds_write_b64 v17, v[{PK+6}:{PK+7}] offset:{8*dl}")
    A(f"""
    v_and_b32 v1, 15, v0
    v_lshrrev_b32 v2, 4, v0
    v_mul_u32_u24 v17, 176, v1
    v_add_u32 v17, s18, v17
    s_and_b32 s20, s5, 1
    s_lshl_b32 s21, s20, 1
    v_subrev_u32 v18, s21, v2
    """)
    A(f"s_lshl_b32 s22, s4, 3\ns_add_u32 s22, s22, s3\ns_mul_i32 s22, s22, {44*1024}\ns_mul_i32 s23, s5, 10\ns_lshr_b32 s23, s23, 2\ns_lshl_b32 s23, s23, 10\ns_add_u32 s22, s22, s23")
    make_srd(A, 8, P_WS, A3_OFF, A3_SIZE)
    A("v_lshlrev_b32 v19, 4, v0\ns_waitcnt lgkmcnt(0)")
    A("s_mov_b64 s[12:13], exec")
    for n in range(3):
        A(f"v_add_u32 v22, {4*n}, v18\nv_cmp_gt_u32 vcc, 10, v22\nv_lshl_add_u32 v23, v22, 4, v17")
        A(f"s_and_b64 exec, s[12:13], vcc")
        A(f"ds_read_b128 v[{O+4*n}:{O+4*n+3}], v23")
        A(f"s_waitcnt lgkmcnt(0)")
        A(f"buffer_store_dwordx4 v[{O+4*n}:{O+4*n+3}], v19, s[8:11], s22 offen offset:{n*1024} {sc_st}")
        A("s_mov_b64 exec, s[12:13]")

Z_ACC1 = 16; Z_ACC2 = 64
Z_WF = [112, 136]; Z_XF = [160, 176]
Z_VXA = [192, 193]; Z_VXC = [194, 195]; Z_VW = [196, 197, 198, 199, 200, 201]; Z_VWC = [202, 203, 204, 205, 206, 207]

def z_consumer(A, mid=None):
    R = Z
    A("v_and_b32 v1, 15, v0\nv_lshrrev_b32 v2, 4, v0\ns_lshr_b32 s16, s3, 1\ns_and_b32 s17, s3, 1")
    A(f"""
    v_lshrrev_b32 v3, 1, v1
    v_xor_b32 v3, v3, v2
    v_lshlrev_b32 v3, 4, v3
    v_lshl_add_u32 v{Z_VXC[0]}, v1, 7, v3
    s_lshl_b32 s18, s16, 13
    v_add_u32 v{Z_VXC[0]}, s18, v{Z_VXC[0]}
    v_xor_b32 v{Z_VXC[1]}, 64, v{Z_VXC[0]}
    """)
    A(f"""
    v_lshrrev_b32 v3, 2, v1
    v_lshl_add_u32 v4, v2, 3, v3
    s_movk_i32 s19, 384
    v_mul_u32_u24 v4, s19, v4
    v_and_b32 v5, 3, v1
    v_lshl_add_u32 v4, v5, 3, v4
    v_lshrrev_b32 v3, 1, v3
    v_and_b32 v5, 1, v2
    v_lshl_or_b32 v3, v5, 1, v3
    s_mul_i32 s18, s17, 3
    """)
    for k in range(6):
        base = k if k < 3 else 6 + (k - 3)
        A(f"s_add_u32 s19, s18, {base}\nv_xor_b32 v5, s19, v3\nv_lshl_add_u32 v{Z_VWC[k]}, v5, 5, v4")
    for i in range(96): A(f"v_mov_b32 v{Z_ACC1+i}, 0")
    D = DsQ()
    def set_w():
        for k in range(6): A(f"v_add_u32 v{Z_VW[k]}, s22, v{Z_VWC[k]}")
    def set_x():
        A(f"v_add_u32 v{Z_VXA[0]}, s23, v{Z_VXC[0]}\nv_add_u32 v{Z_VXA[1]}, s23, v{Z_VXC[1]}")
    def rd_w(buf, k, tag):
        d = Z_WF[buf] + 4 * k
        A(f"ds_read_b64_tr_b16 v[{d}:{d+1}], v{Z_VW[k]}"); D.issue(tag)
        A(f"ds_read_b64_tr_b16 v[{d+2}:{d+3}], v{Z_VW[k]} offset:{4*384}"); D.issue(tag)
    def rd_x(buf, m, kk, tag):
        d = Z_XF[buf] + 4 * m
        A(f"ds_read_b128 v[{d}:{d+3}], v{Z_VXA[kk]} offset:{m * 2048}"); D.issue(tag)
    def adv_w(): A(f"s_add_u32 s22, s22, {R.W_SLOT}\ns_cmp_eq_u32 s22, {R.W_RING + R.NW*R.W_SLOT}\ns_cselect_b32 s22, {R.W_RING}, s22")
    def adv_x(): A(f"s_add_u32 s23, s23, {R.X_SLOT}\ns_cmp_eq_u32 s23, {R.X_RING + R.NX*R.X_SLOT}\ns_cselect_b32 s23, {R.X_RING}, s23")
    A(f"s_mov_b32 s22, {R.W_RING}\ns_mov_b32 s23, {R.X_RING}\ns_mov_b32 s24, 0")
    set_w(); set_x()
    stamp(A, 1)
    A("s_barrier")
    stamp(A, 2)
    ORDER = [("x", 0), ("w", 3), ("w", 4), ("w", 5), ("w", 0), ("w", 1), ("w", 2), ("x", 1), ("x", 2), ("x", 3)]
    for (t, idx) in ORDER:
        if t == "x": rd_x(0, idx, 0, ("x", 0, idx))
        else: rd_w(0, idx, ("w", 0, idx))
    def substage(kk, has_next, sim):
        pend = list(ORDER) if has_next else []
        cnt = 0
        for m in range(4):
            for k in (3, 4, 5, 0, 1, 2):
                n = D.wait({("x", sim, m), ("w", sim, k)})
                if n is not None: A(f"s_waitcnt lgkmcnt({min(n, 15)})")
                wf = Z_WF[kk] + 4 * k; xf = Z_XF[kk] + 4 * m
                if k < 3:
                    d = Z_ACC1 + (k * 4 + m) * 4
                    A(f"v_mfma_f32_16x16x32_bf16 v[{d}:{d+3}], v[{wf}:{wf+3}], v[{xf}:{xf+3}], v[{d}:{d+3}]")
                else:
                    d = Z_ACC2 + (m * 3 + (k - 3)) * 4
                    A(f"v_mfma_f32_16x16x32_bf16 v[{d}:{d+3}], v[{xf}:{xf+3}], v[{wf}:{wf+3}], v[{d}:{d+3}]")
                cnt += 1
                if cnt == 6 and has_next:
                    adv_w(); set_w()
                    if kk == 1: adv_x(); set_x()
                    if FINE and sim < 2:
                        l1 = A.newlabel("Lf"); A(f"s_cmp_lg_u32 s24, 4\ns_cbranch_scc1 {l1}"); stamp(A, 8 + 3 * sim, cyc=True); A.label(l1)
                    A("s_barrier")
                    if FINE and sim < 2:
                        l1 = A.newlabel("Lf"); A(f"s_cmp_lg_u32 s24, 4\ns_cbranch_scc1 {l1}"); stamp(A, 9 + 3 * sim, cyc=True); A.label(l1)
                if cnt >= 6 and pend:
                    t, idx = pend.pop(0)
                    if t == "x": rd_x(kk ^ 1, idx, kk ^ 1, ("x", sim + 1, idx))
                    else: rd_w(kk ^ 1, idx, ("w", sim + 1, idx))
    loop = A.newlabel("Lz")
    A.label(loop)
    if it_hook: it_hook(A)
    if mid:
        lm = A.newlabel("Lmid"); A(f"s_cmp_lg_u32 s24, 3\ns_cbranch_scc1 {lm}"); mid(A); A.label(lm)
    substage(0, True, 0)
    substage(1, True, 1)
    A("s_add_u32 s24, s24, 1\ns_cmp_lt_u32 s24, 9")
    A(f"s_cbranch_scc1 {loop}")
    substage(0, True, 2)
    substage(1, False, 3)

GELU_C1 = -2.0 * 1.4426950408889634 * 0.7978845608028654
GELU_C2 = GELU_C1 * 0.044715
import struct
def fbits(x): return struct.unpack("<I", struct.pack("<f", x))[0]

def gelu_regs(A, regs0, n, C1, C2, T):
    for i in range(0, n, 4):
        for h in (0, 2):
            x = regs0 + i + h; t = T + 2 * h
            A(f"v_pk_mul_f32 v[{t}:{t+1}], v[{x}:{x+1}], v[{x}:{x+1}]")
        for h in (0, 2):
            t = T + 2 * h
            A(f"v_pk_fma_f32 v[{t}:{t+1}], v[{t}:{t+1}], v[{C2}:{C2+1}], v[{C1}:{C1+1}]")
        for h in (0, 2):
            x = regs0 + i + h; t = T + 2 * h
            A(f"v_pk_mul_f32 v[{t}:{t+1}], v[{t}:{t+1}], v[{x}:{x+1}]")
        for h in (0, 2):
            t = T + 2 * h
            A(f"v_exp_f32 v{t}, v{t}\nv_exp_f32 v{t+1}, v{t+1}")
        for h in (0, 2):
            t = T + 2 * h
            A(f"v_pk_add_f32 v[{t}:{t+1}], v[{t}:{t+1}], 1.0 op_sel_hi:[1,0]")
        for h in (0, 2):
            t = T + 2 * h
            A(f"v_rcp_f32 v{t}, v{t}\nv_rcp_f32 v{t+1}, v{t+1}")
        for h in (0, 2):
            x = regs0 + i + h; t = T + 2 * h
            A(f"v_pk_mul_f32 v[{x}:{x+1}], v[{x}:{x+1}], v[{t}:{t+1}]")

Z_PART = 0
Z_STAT = 2048

def z_epilogue_a(A):
    C1, C2, T = 112, 114, 116
    A(f"v_mov_b32 v{C1}, {fbits(GELU_C1):#x}\nv_mov_b32 v{C1+1}, {fbits(GELU_C1):#x}\nv_mov_b32 v{C2}, {fbits(GELU_C2):#x}\nv_mov_b32 v{C2+1}, {fbits(GELU_C2):#x}")
    gelu_regs(A, Z_ACC2, 48, C1, C2, T)
    SU = 128; SQ = 144
    for m in range(4):
        for r in range(4):
            a, b, c = [Z_ACC2 + (m * 3 + t) * 4 + r for t in range(3)]
            s_, q_ = SU + m * 4 + r, SQ + m * 4 + r
            A(f"v_add_f32 v{s_}, v{a}, v{b}\nv_mul_f32 v{q_}, v{a}, v{a}\nv_add_f32 v{s_}, v{s_}, v{c}\nv_fmac_f32 v{q_}, v{b}, v{b}\nv_fmac_f32 v{q_}, v{c}, v{c}")
    for sh in (8, 4, 2, 1):
        for i in range(32):
            A(f"v_add_f32_dpp v{SU+i}, v{SU+i}, v{SU+i} row_ror:{sh} row_mask:0xf bank_mask:0xf")
    A(f"""
    s_lshl_b32 s18, s17, 10
    s_lshl_b32 s19, s16, 9
    s_add_u32 s18, s18, s19
    s_add_u32 s18, s18, {Z_PART}
    v_lshlrev_b32 v3, 5, v2
    v_add_u32 v3, s18, v3
    s_mov_b64 s[12:13], exec
    s_mov_b32 s20, 0x00010001
    s_mov_b32 s21, 0x00010001
    s_mov_b64 exec, s[20:21]
    """)
    for m in range(4):
        for r in range(0, 4, 2):
            t = T
            A(f"v_mov_b32 v{t}, v{SU+m*4+r}\nv_mov_b32 v{t+1}, v{SQ+m*4+r}\nv_mov_b32 v{t+2}, v{SU+m*4+r+1}\nv_mov_b32 v{t+3}, v{SQ+m*4+r+1}")
            A(f"ds_write_b128 v3, v[{t}:{t+3}] offset:{m*128 + r*8}")
            T2 = T; T = 120 if T == 116 else 116
    A("s_mov_b64 exec, s[12:13]\ns_waitcnt lgkmcnt(0)")

def z_epilogue_b(A, sc_st=""):
    C1, C2, T = 112, 114, 116
    gelu_regs(A, Z_ACC1, 48, C1, C2, T)
    A(f"s_lshl_b32 s18, s4, 1\ns_add_u32 s18, s18, s16\ns_lshl_b32 s18, s18, 3\ns_add_u32 s18, s18, s5\ns_lshl_b32 s18, s18, 2\ns_lshl_b32 s19, s17, 1\ns_add_u32 s18, s18, s19\ns_mul_i32 s18, s18, 3072")
    make_srd(A, 8, P_WS, Z1_OFF, 6144, off_sgpr=18)
    A("v_lshlrev_b32 v4, 4, v0")
    for wt in range(2):
        for t in range(3):
            o = 120 + 4 * ((wt * 3 + t) % 2)
            for j in range(2):
                d = Z_ACC1 + (t * 4 + 2 * wt + j) * 4
                A(f"v_cvt_pk_bf16_f32 v{o+2*j}, v{d}, v{d+1}\nv_cvt_pk_bf16_f32 v{o+2*j+1}, v{d+2}, v{d+3}")
            A(f"s_mov_b32 s19, {wt*3072 + t*1024}\nbuffer_store_dwordx4 v[{o}:{o+3}], v4, s[8:11], s19 offen {sc_st}")

def z_epilogue_c(A, sc_st=""):
    ST = 128
    A(f"s_lshl_b32 s19, s16, 9\ns_add_u32 s19, s19, {Z_STAT}\nv_lshlrev_b32 v3, 5, v2\nv_add_u32 v3, s19, v3")
    for m in range(4):
        A(f"ds_read_b128 v[{ST+8*m}:{ST+8*m+3}], v3 offset:{m*128}\nds_read_b128 v[{ST+8*m+4}:{ST+8*m+7}], v3 offset:{m*128+16}")
    A("s_waitcnt lgkmcnt(0)")
    A(f"s_mul_i32 s18, s5, 393216\ns_lshl_b32 s19, s4, 2\ns_lshl_b32 s20, s16, 1\ns_add_u32 s19, s19, s20\ns_mul_i32 s19, s19, 6144\ns_add_u32 s18, s18, s19\ns_mul_i32 s19, s17, 3072\ns_add_u32 s18, s18, s19")
    make_srd(A, 8, P_WS, ZN_OFF, 6144 + 3072, off_sgpr=18)
    A("v_lshlrev_b32 v4, 4, v0")
    for P in range(2):
        for t in range(3):
            o = 160 + 4 * ((P * 3 + t) % 3)
            for j in range(2):
                m = 2 * P + j
                d = Z_ACC2 + (m * 3 + t) * 4
                for r in range(4):
                    A(f"v_fma_f32 v{d+r}, v{d+r}, v{ST+8*m+2*r}, v{ST+8*m+2*r+1}")
                A(f"v_cvt_pk_bf16_f32 v{o+2*j}, v{d}, v{d+1}\nv_cvt_pk_bf16_f32 v{o+2*j+1}, v{d+2}, v{d+3}")
            A(f"v_permlane32_swap_b32 v{o}, v{o+2}\nv_permlane32_swap_b32 v{o+1}, v{o+3}")
            A(f"v_permlane16_swap_b32 v{o}, v{o+2}\nv_permlane16_swap_b32 v{o+1}, v{o+3}")
            A(f"s_mov_b32 s19, {P*6144 + t*1024}\nbuffer_store_dwordx4 v[{o}:{o+3}], v4, s[8:11], s19 offen {sc_st}")

def get_nonce(A, sreg):
    make_srd(A, 28, P_DBG, 0, 256)
    lp = A.newlabel("Lnonce")
    A("v_mov_b32 v6, 0\ns_mov_b32 s32, 0")
    A.label(lp)
    A(f"buffer_load_dword v7, v6, s[28:31], 0 offen sc1\ns_waitcnt vmcnt(0)\nv_readfirstlane_b32 s{sreg}, v7")
    A(f"s_add_u32 s32, s32, 1\ns_cmp_gt_u32 s32, {1<<20}")
    out = A.newlabel("Lnonce_o")
    A(f"s_cbranch_scc1 {out}")
    A(f"s_cmp_eq_u32 s{sreg}, 0\ns_cbranch_scc1 {lp}")
    A.label(out)

def publish_nonce(A):
    make_srd(A, 28, P_DBG, 0, 256)
    A("s_memrealtime s[32:33]\ns_waitcnt lgkmcnt(0)\ns_or_b32 s32, s32, 1\nv_mov_b32 v6, 0\nv_mov_b32 v7, s32\nbuffer_store_dword v7, v6, s[28:31], 0 offen sc1")

def z_stats_exchange(A, NONCE):
    A(f"s_sub_u32 s16, s3, 4\ns_lshl_b32 s17, s16, 9\nv_lshlrev_b32 v2, 3, v0\nv_add_u32 v2, s17, v2")
    A(f"v_add_u32 v14, {Z_PART}, v2")
    A(f"ds_read_b64 v[4:5], v14\nds_read_b64 v[6:7], v14 offset:1024\ns_waitcnt lgkmcnt(0)")
    A(f"v_add_f32 v8, v4, v6\nv_add_f32 v10, v5, v7\nv_mov_b32 v9, s{NONCE}\nv_mov_b32 v11, s{NONCE}")
    A("s_lshl_b32 s18, s4, 14")
    make_srd(A, 8, P_WS, ST_OFF, 16384, off_sgpr=18)
    A("v_lshlrev_b32 v3, 1, v2\ns_lshl_b32 s19, s5, 11")
    A("buffer_store_dwordx4 v[8:11], v3, s[8:11], s19 offen sc1")
    lp = A.newlabel("Lst"); ok = A.newlabel("Lstok")
    A("s_mov_b32 s20, 0")
    A.label(lp)
    for c in range(8):
        A(f"s_mov_b32 s19, {c*2048}\nbuffer_load_dwordx4 v[{16+4*c}:{19+4*c}], v3, s[8:11], s19 offen sc1")
    A("s_waitcnt vmcnt(0)")
    A(f"v_mov_b32 v12, 0")
    for c in range(8):
        A(f"v_xor_b32 v13, s{NONCE}, v{17+4*c}\nv_or_b32 v12, v12, v13\nv_xor_b32 v13, s{NONCE}, v{19+4*c}\nv_or_b32 v12, v12, v13")
    A(f"v_cmp_ne_u32 vcc, 0, v12\ns_cmp_eq_u64 vcc, 0\ns_cbranch_scc1 {ok}")
    A(f"s_add_u32 s20, s20, 1\ns_cmp_gt_u32 s20, {1<<16}\ns_cbranch_scc1 {ok}\ns_sleep 2\ns_branch {lp}")
    A.label(ok)
    A("v_add_f32 v4, v16, v20\nv_add_f32 v5, v18, v22")
    for c in range(2, 8): A(f"v_add_f32 v4, v4, v{16+4*c}\nv_add_f32 v5, v5, v{18+4*c}")
    inv = fbits(1.0 / 768.0)
    A(f"""
    v_mul_f32 v4, {inv:#x}, v4
    v_mul_f32 v5, {inv:#x}, v5
    v_fma_f32 v5, -v4, v4, v5
    v_max_f32 v5, 0, v5
    v_add_f32 v5, {fbits(1e-5):#x}, v5
    v_rsq_f32 v6, v5
    s_nop 0
    v_mul_f32 v7, -v4, v6
    """)
    A(f"ds_write_b64 v14, v[6:7] offset:{Z_STAT - Z_PART}\ns_waitcnt lgkmcnt(0)")

def gen_p1_kernel():
    A = Asm()
    end = prologue(A)
    stamp(A, 0); stamp(A, 5, cyc=True)
    wg_map_p1(A)
    fin = A.newlabel("Lfin")
    zrole = A.newlabel("Lz_role")
    A(f"s_cmp_eq_u32 s6, 1\ns_cbranch_scc1 {zrole}")
    lw = A.newlabel("Lq_w"); lx = A.newlabel("Lq_x"); att = A.newlabel("Lq_att")
    A(f"s_cmp_eq_u32 s3, 7\ns_cbranch_scc1 {lx}\ns_cmp_ge_u32 s3, 4\ns_cbranch_scc1 {lw}")
    qkv_consumer(A, False)
    wl = [A.newlabel(f"Lq_c{w}") for w in range(4)]
    for w in range(1, 4): A(f"s_cmp_eq_u32 s3, {w}\ns_cbranch_scc1 {wl[w]}")
    for w in range(4):
        A.label(wl[w])
        qkv_main(A, w)
        stamp(A, 3)
        qkv_epilogue_store(A, w)
        A(f"s_waitcnt lgkmcnt(0)\ns_branch {att}")
    A.label(lw)
    pack_issue(A)
    w_loader(A, QKV)
    pack_finish(A)
    A(f"s_branch {att}")
    A.label(lx)
    pub = A.newlabel("Lpub")
    A(f"s_cmp_lg_u32 s2, 0\ns_cbranch_scc1 {pub}")
    publish_nonce(A)
    A.label(pub)
    x_loader(A, QKV)
    A.label(att)
    A("s_barrier")
    stamp(A, 7)
    attention(A)
    A("s_waitcnt vmcnt(0)")
    A(f"s_branch {fin}")
    A.label(zrole)
    lw = A.newlabel("Lz_w"); lx = A.newlabel("Lz_x"); ztail = A.newlabel("Lz_tail")
    A(f"s_cmp_eq_u32 s3, 7\ns_cbranch_scc1 {lx}\ns_cmp_ge_u32 s3, 4\ns_cbranch_scc1 {lw}")
    z_consumer(A)
    stamp(A, 3)
    z_epilogue_a(A)
    A("s_barrier")
    z_epilogue_b(A)
    stamp(A, 7)
    A("s_barrier")
    z_epilogue_c(A)
    A("s_waitcnt vmcnt(0)")
    A(f"s_branch {fin}")
    A.label(lw)
    pack_issue(A)
    w_loader(A, Z)
    pack_finish(A)
    noex = A.newlabel("Lnoex")
    A(f"s_cmp_ge_u32 s3, 6\ns_cbranch_scc1 {noex}")
    get_nonce(A, 26)
    A("s_barrier")
    z_stats_exchange(A, 26)
    A("s_barrier")
    A(f"s_branch {fin}")
    A.label(noex)
    A(f"s_barrier\ns_barrier\ns_branch {fin}")
    A.label(lx)
    x_loader(A, Z)
    A("s_barrier\ns_barrier")
    A.label(fin)
    stamp(A, 4); stamp(A, 6, cyc=True)
    dump_stamps(A, 14 if FINE else 8)
    A.label(end)
    A("s_endpgm")
    txt = A.text(verbose=True)
    return txt.replace("SC_ST", "")

if __name__ == "__main__":
    import common
    common.set_profile("prof" in sys.argv)
    txt = build_file([("p1_kernel", gen_p1_kernel(), 256, 102, 256)], [("p1_kernel", 256, 512, LDS_MAX)])
    open("p1.s", "w").write(txt)
```

```python
from common import *

W_SLOT = 32768; NWS = 5
S_R0, S_Q0 = 100, 101
def rot2_setup(A, on):
    if not on:
        A(f's_mov_b32 s{S_R0}, 0\ns_mov_b32 s{S_Q0}, 0'); return
    A(f's_lshr_b32 s16, s2, 5\ns_and_b32 s16, s16, 7\ns_lshr_b32 s17, s2, 3\ns_and_b32 s17, s17, 3\ns_add_u32 s17, s17, s16\ns_and_b32 s{S_R0}, s17, 3\ns_and_b32 s{S_Q0}, s16, 4')


def wg_map_p23(A):
    A("""
    s_and_b32 s6, s2, 7
    s_lshr_b32 s7, s2, 3
    s_lshr_b32 s4, s6, 1
    s_lshl_b32 s4, s4, 3
    s_lshr_b32 s5, s7, 2
    s_add_u32 s4, s4, s5
    s_and_b32 s5, s6, 1
    s_lshl_b32 s5, s5, 2
    s_and_b32 s7, s7, 3
    s_add_u32 s5, s5, s7
    """)

W_ORDER = [0, 4, 1, 5, 2, 6, 3, 7]
W_SLOT_OF = {0: 3, 4: 4, 1: 0, 5: 1, 2: 2, 6: 3, 3: 4, 7: 0}

def p2l_setup(A, rb):
    A(f"s_sub_u32 s16, s{S_WAVE}, 4")
    A(f"s_lshl_b32 s17, s{rb}, 18")
    make_srd(A, 8, P_WSP, 0, 262144, off_sgpr=17)
    A(f"""
    v_lshrrev_b32 v4, 5, v0
    s_lshl_b32 s17, s16, 2
    v_add_u32 v4, s17, v4
    v_and_b32 v5, 31, v0
    v_xor_b32 v6, v5, v4
    v_lshlrev_b32 v6, 4, v6
    v_lshl_add_u32 v2, v4, 12, v6
    v_add_u32 v4, 2, v4
    v_xor_b32 v6, v5, v4
    v_lshlrev_b32 v6, 4, v6
    v_lshl_add_u32 v3, v4, 12, v6
    s_lshl_b32 s18, s16, 11
    """)

def blk_off(A, dst, blk):
    A(f"s_add_u32 s{dst}, s{S_R0}, {blk & 3}\ns_and_b32 s{dst}, s{dst}, 3\ns_lshl_b32 s{dst}, s{dst}, 9")
    if blk >= 4: A(f"s_add_u32 s{dst}, s{dst}, 2048")

def p2l_issue(A, blk, Q=None):
    slot = W_SLOT_OF[blk]
    blk_off(A, 19, blk)
    for part in range(4):
        for e in range(2):
            A(f"s_add_u32 m0, s18, {slot * W_SLOT + (16 * part + 2 * e) * 512}")
            A(f"s_add_u32 s20, s19, {part * 16 * 4096}")
            A(f"buffer_load_dwordx4 v{2+e}, s[8:11], s20 offen lds")
    if Q is not None: Q.issue(("w", blk), 8)

PARK_BLOCKS = [1, 5, 2, 6, 3]
PARK0 = 96
PARK_VO = 92
def park_setup(A, rb):
    A(f"s_lshl_b32 s24, s{rb}, 18")
    make_srd(A, 40, P_WSP, 0, 262144, off_sgpr=24)
    A(f"""
    v_lshrrev_b32 v90, 5, v0
    s_sub_u32 s24, s3, 4
    s_lshl_b32 s24, s24, 2
    v_add_u32 v90, s24, v90
    v_and_b32 v91, 31, v0
    v_xor_b32 v{PARK_VO}, v91, v90
    v_lshlrev_b32 v{PARK_VO}, 4, v{PARK_VO}
    v_lshl_add_u32 v{PARK_VO}, v90, 12, v{PARK_VO}
    v_add_u32 v90, 2, v90
    v_xor_b32 v{PARK_VO+1}, v91, v90
    v_lshlrev_b32 v{PARK_VO+1}, 4, v{PARK_VO+1}
    v_lshl_add_u32 v{PARK_VO+1}, v90, 12, v{PARK_VO+1}
    """)

def park_load(A, i):
    blk = PARK_BLOCKS[i // 8]; part, e = (i % 8) // 2, i % 2
    d = PARK0 + 4 * i
    A(f"s_mov_b32 s24, {blk * 512 + part * 16 * 4096}")
    A(f"buffer_load_dwordx4 v[{d}:{d+3}], v{PARK_VO+e}, s[40:43], s24 offen")

def park_store(A, blk):
    bi = PARK_BLOCKS.index(blk); slot = W_SLOT_OF[blk]
    A(f"v_lshlrev_b32 v94, 4, v0\nv_add_u32 v94, s18, v94\nv_add_u32 v94, {slot * W_SLOT}, v94")
    for j in range(8):
        part, e = j // 2, j % 2
        d = PARK0 + 4 * (bi * 8 + j)
        A(f"ds_write_b128 v94, v[{d}:{d+3}] offset:{(16 * part + 2 * e) * 512}")

def p2_loader(A):
    p2l_setup(A, 4)
    p2l_issue(A, 0); p2l_issue(A, 4)
    Q = VmQueue(); Q.issue(("w", 0), 8); Q.issue(("w", 4), 8)
    p2l_main(A, Q)
    A("s_barrier")

def p2l_main(A, Q, hooks=None):
    hooks = hooks or {}
    H = lambda k: hooks[k]() if k in hooks else None
    def wait_blocks(bl):
        if not any(t in Q.q for t in {("w", b) for b in bl}): return
        n = Q.wait_for({("w", b) for b in bl})
        A(f"s_waitcnt vmcnt({n})"); Q.retire(n)
    park = hooks.get("park", False)
    H("start")
    if park:
        for b in (1, 5, 2): park_store(A, b)
    wait_blocks([0, 4]); stamp(A, 1, f2=True); A("s_barrier"); stamp(A, 2, f2=True)
    if not park: p2l_issue(A, 1, Q); p2l_issue(A, 5, Q); p2l_issue(A, 2, Q)
    stamp(A, 10, f2=True)
    if park: A("s_waitcnt lgkmcnt(0)")
    wait_blocks([1, 5]); stamp(A, 3, f2=True); A("s_barrier"); stamp(A, 4, f2=True)
    H("post_b1")
    if park:
        park_store(A, 6); park_store(A, 3); A("s_waitcnt lgkmcnt(0)")
    else:
        p2l_issue(A, 6, Q); p2l_issue(A, 3, Q)
    stamp(A, 11, f2=True)
    wait_blocks([2, 6]); stamp(A, 12, f2=True); H("before_b2"); stamp(A, 5, f2=True); A("s_barrier"); stamp(A, 6, f2=True)
    H("post_b2")
    p2l_issue(A, 7, Q)
    wait_blocks([3, 7]); stamp(A, 13, f2=True); H("before_b3"); stamp(A, 7, f2=True); A("s_barrier"); stamp(A, 8, f2=True)

def p2_loader_rest(A, rb, sc, hooks=None, hooks3=None):
    import p3
    hooks = hooks or {}
    A("s_waitcnt vmcnt(0)")
    p2l_setup(A, rb)
    Q = VmQueue()
    p2l_main(A, Q, hooks)
    p3.p3l_setup(A)
    Q3 = VmQueue()
    for st in range(3): p3.p3l_issue(A, st, Q3, sc)
    A("s_barrier")
    p3.p3l_main(A, Q3, 3, sc, hooks3)
    A("s_barrier\ns_barrier")

def p2_consumer(A, sc_st="", sc_ld="", lazy_z1=False, last_hook=None, last_n=0, poison=False):
    ACC = 8
    ZR = 56
    WF = [152, 168]
    VWL = 184
    VWB = 185
    VWA = [186, 187]
    VZ = 188
    Z1 = 192
    VB = 204
    T = 100
    A("s_lshr_b32 s16, s3, 1\ns_and_b32 s17, s3, 1")
    A(f"s_mul_i32 s18, s5, 393216")
    make_srd(A, 8, P_WS, ZN_OFF, 393216, off_sgpr=18)
    A(f"s_mul_i32 s32, s16, {32*6144}\ns_mul_i32 s18, s17, 3072\ns_add_u32 s32, s32, s18")
    A(f"s_mul_i32 s33, s{S_Q0}, 6144")
    A(f"v_lshlrev_b32 v{VZ}, 4, v0")
    def round_base(dp, dm, n_sgpr=None, n=None):
        if n is not None: A(f"s_add_u32 s{dp}, s{S_R0}, {n}")
        else: A(f"s_add_u32 s{dp}, s{S_R0}, s{n_sgpr}")
        A(f"s_and_b32 s{dp}, s{dp}, 3\ns_mul_i32 s{dp}, s{dp}, 49152\ns_add_u32 s{dp}, s{dp}, s32\ns_sub_u32 s{dm}, s{dp}, s33\ns_add_u32 s{dp}, s{dp}, s33")
    CP, CM, NP, NM = 46, 47, 52, 53
    def zoff(q, nxt):
        r = (NP if q < 4 else NM) if nxt else (CP if q < 4 else CM)
        A(f"s_add_u32 s19, s{r}, {q * 6144}")
    def zload(q, nxt=False):
        zoff(q, nxt)
        for t in range(3):
            d = ZR + 12 * q + 4 * t
            A(f"buffer_load_dwordx4 v[{d}:{d+3}], v{VZ}, s[8:11], s19 offen offset:{t*1024} {sc_ld}")
    round_base(CP, CM, n=0)
    def z1_loads():
        A(f"s_lshl_b32 s26, s4, 3\ns_add_u32 s26, s26, s5\ns_lshl_b32 s26, s26, 2\ns_lshl_b32 s27, s17, 1\ns_add_u32 s26, s26, s27\ns_add_u32 s26, s26, s16\ns_mul_i32 s26, s26, 3072")
        make_srd(A, 12, P_WS, Z1_OFF, 3072, off_sgpr=26)
        for u in range(3):
            A(f"buffer_load_dwordx4 v[{Z1+4*u}:{Z1+4*u+3}], v{VZ}, s[12:15], 0 offen offset:{u*1024} {sc_ld}")
        A(f"s_lshl_b32 s26, s4, 7\ns_lshl_b32 s27, s16, 6\ns_add_u32 s26, s26, s27")
        make_srd(A, 28, P_BSP, 0, 64, off_sgpr=26)
        A(f"v_and_b32 v1, 15, v0\nv_lshlrev_b32 v2, 1, v1")
        A(f"buffer_load_ushort v{VB}, v2, s[28:31], 0 offen")
        A(f"buffer_load_ushort v{VB+1}, v2, s[28:31], 0 offen offset:32")

    if not lazy_z1: z1_loads()
    for q in range(3): zload(q)
    A(f"""
    v_and_b32 v1, 15, v0
    v_lshrrev_b32 v3, 4, v0
    v_xor_b32 v3, v3, v1
    v_lshlrev_b32 v3, 4, v3
    v_lshl_add_u32 v{VWL}, v1, 9, v3
    s_lshl_b32 s18, s{S_Q0}, 6
    v_xor_b32 v{VWL}, s18, v{VWL}
    """)
    for i in range(48): A(f"v_mov_b32 v{ACC+i}, 0")
    def wreads(buf, q):
        a = VWA[buf]
        A(f"v_xor_b32 v{a}, {q*64}, v{VWB}")
        for tt in range(4):
            d = WF[buf] + 4 * tt
            A(f"ds_read_b128 v[{d}:{d+3}], v{a} offset:{tt*8192}")
    def mfmas(buf, q):
        if "nomfma" in sys.argv: return
        for t in range(3):
            z = ZR + 12 * q + 4 * t
            for tt in range(4):
                d = ACC + (t * 4 + tt) * 4
                w = WF[buf] + 4 * tt
                A(f"v_mfma_f32_16x16x32_bf16 v[{d}:{d+3}], v[{z}:{z+3}], v[{w}:{w+3}], v[{d}:{d+3}]")
    A(f"s_cmp_eq_u32 s16, 0")
    sl0 = [W_SLOT_OF[n] for n in range(4)]; sl1 = [W_SLOT_OF[4 + n] for n in range(4)]
    for n in range(4): A(f"s_cselect_b32 s{20+n}, {sl0[n]}, {sl1[n]}")
    for n in range(4): A(f"s_lshl_b32 s{20+n}, s{20+n}, 15")
    A("s_mov_b32 s24, 0")
    loop = A.newlabel("Lp2")
    def st2(base):
        import common
        if not (common.FINE2 and common.PROFILE): return
        for n in range(4):
            l = A.newlabel("Lf2"); A(f"s_cmp_lg_u32 s24, {n}\ns_cbranch_scc1 {l}"); stamp(A, base + 2 * n, f2=True); A.label(l)
    def check_z(q, last):
        z = ZR + 12 * q
        ok = A.newlabel("Lzok"); rl = A.newlabel("Lzrl")
        def test():
            A(f"v_max3_u32 v2, v{z}, v{z+4}, v{z+8}\nv_cmp_eq_u32 vcc, -1, v2\ns_cmp_eq_u64 vcc, 0")
        test()
        A(f"s_cbranch_scc1 {ok}")
        A(f"s_mov_b32 s35, 0")
        A.label(rl)
        A(f"s_add_u32 s34, s{CP if q < 4 else CM}, {q * 6144}")
        for t in range(3):
            A(f"buffer_load_dwordx4 v[{z+4*t}:{z+4*t+3}], v{VZ}, s[8:11], s34 offen offset:{t*1024} {sc_ld}")
        A("s_waitcnt vmcnt(0)")
        test()
        A(f"s_cbranch_scc1 {ok}\ns_add_u32 s35, s35, 1\ns_cmp_gt_u32 s35, 16384\ns_cbranch_scc1 {ok}\ns_sleep 1\ns_branch {rl}")
        A.label(ok)
    def round_(last):
        A(f"v_add_u32 v{VWB}, s20, v{VWL}")
        if not last:
            A("s_add_u32 s35, s24, 1"); round_base(NP, NM, n_sgpr=35)
        st2(1)
        A("s_barrier")
        st2(2)
        if not last:
            fl = A.newlabel("Lzf"); A(f"s_cmp_lg_u32 s24, 0\ns_cbranch_scc1 {fl}")
            for q in range(3, 8): zload(q)
            A.label(fl)
        if last and lazy_z1: z1_loads()
        if last and last_hook: last_hook()
        wreads(0, 0)
        for q in range(8):
            if not last: vm = 21
            else: vm = 3 * (7 - q) + (5 if lazy_z1 else 0) + last_n
            A(f"s_waitcnt vmcnt({vm}) lgkmcnt(0)")
            if poison: check_z(q, last)
            buf = q & 1
            nb = buf ^ 1
            if q < 7: A(f"v_xor_b32 v{VWA[nb]}, {(q+1)*64}, v{VWB}")
            if not last: zoff(q, True)
            for t in range(3):
                z = ZR + 12 * q + 4 * t
                for tt in range(4):
                    d = ACC + (t * 4 + tt) * 4
                    w = WF[buf] + 4 * tt
                    if not ("nomfma" in sys.argv):
                        A(f"v_mfma_f32_16x16x32_bf16 v[{d}:{d+3}], v[{z}:{z+3}], v[{w}:{w+3}], v[{d}:{d+3}]")
                    if t == 0 and q < 7:
                        dn = WF[nb] + 4 * tt
                        A(f"ds_read_b128 v[{dn}:{dn+3}], v{VWA[nb]} offset:{tt*8192}")
                    if tt == 3 and not last:
                        A(f"buffer_load_dwordx4 v[{z}:{z+3}], v{VZ}, s[8:11], s19 offen offset:{t*1024} {sc_ld}")
    A.label(loop)
    round_(False)
    A(f"s_mov_b32 s20, s21\ns_mov_b32 s21, s22\ns_mov_b32 s22, s23\ns_mov_b32 s{CP}, s{NP}\ns_mov_b32 s{CM}, s{NM}")
    A("s_add_u32 s24, s24, 1\ns_cmp_lt_u32 s24, 3")
    A(f"s_cbranch_scc1 {loop}")
    round_(True)
    stamp(A, 13); stamp(A, 9, f2=True); stamp(A, 13, f3=True)
    RED = 98304
    A(f"s_mul_i32 s18, s3, 6144\ns_add_u32 s18, s18, {RED}")
    A(f"v_add_u32 v3, s18, v{VZ}")
    A(f"s_xor_b32 s25, s3, 2\ns_mul_i32 s25, s25, 6144\ns_add_u32 s25, s25, {RED}")
    A(f"v_add_u32 v4, s25, v{VZ}")
    snd = A.newlabel("Lsnd1"); snd_e = A.newlabel("Lsnde")
    A(f"s_cmp_eq_u32 s16, 0\ns_cbranch_scc0 {snd}")
    for t in range(3):
        for j in range(2):
            d = ACC + (t * 4 + 2 + j) * 4
            A(f"ds_write_b128 v3, v[{d}:{d+3}] offset:{(t*2+j)*1024}")
    A(f"s_branch {snd_e}")
    A.label(snd)
    for t in range(3):
        for j in range(2):
            d = ACC + (t * 4 + j) * 4
            A(f"ds_write_b128 v3, v[{d}:{d+3}] offset:{(t*2+j)*1024}")
            d2 = ACC + (t * 4 + 2 + j) * 4
    for t in range(3):
        for j in range(2):
            d = ACC + (t * 4 + j) * 4; d2 = ACC + (t * 4 + 2 + j) * 4
            for r in range(4): A(f"v_mov_b32 v{d+r}, v{d2+r}")
    A.label(snd_e)
    A("s_waitcnt lgkmcnt(0)\ns_barrier")
    RB = ZR
    for t in range(3):
        for j in range(2):
            d = RB + (t * 2 + j) * 4
            A(f"ds_read_b128 v[{d}:{d+3}], v4 offset:{(t*2+j)*1024}")
    A("s_waitcnt vmcnt(0) lgkmcnt(0)")
    A(f"v_lshlrev_b32 v{VB}, 16, v{VB}\nv_lshlrev_b32 v{VB+1}, 16, v{VB+1}")
    A(f"s_mul_i32 s18, s4, {4*44*1024}")
    make_srd(A, 8, P_WS, A3_OFF, 4*44*1024, off_sgpr=18)
    A(f"s_mul_i32 s18, s16, {2*44*1024}\ns_mul_i32 s19, s5, 3072\ns_add_u32 s18, s18, s19\ns_add_u32 s18, s18, {20*1024}")
    HO = T + 4
    for t in range(3):
        for j in range(2):
            d = ACC + (t * 4 + j) * 4
            p = RB + (t * 2 + j) * 4
            z = Z1 + 4 * t + 2 * j
            for r in range(4): A(f"v_add_f32 v{d+r}, v{d+r}, v{p+r}")
            for r in range(4): A(f"v_add_f32 v{d+r}, v{d+r}, v{VB+j}")
            A(f"v_lshlrev_b32 v{T}, 16, v{z}\nv_and_b32 v{T+1}, 0xffff0000, v{z}\nv_lshlrev_b32 v{T+2}, 16, v{z+1}\nv_and_b32 v{T+3}, 0xffff0000, v{z+1}")
            for r in range(4): A(f"v_mul_f32 v{d+r}, v{d+r}, v{T+r}")
            o = HO + j * 6 + t * 2
            A(f"v_cvt_pk_bf16_f32 v{o}, v{d}, v{d+1}\nv_cvt_pk_bf16_f32 v{o+1}, v{d+2}, v{d+3}")
    f1 = A.newlabel("Lh1"); fe = A.newlabel("Lhe")
    A(f"s_add_u32 s26, s18, {44*1024}")
    A(f"s_cmp_eq_u32 s17, 0\ns_cbranch_scc0 {f1}")
    for j, so in ((0, 18), (1, 26)):
        o = HO + j * 6
        A(f"buffer_store_dwordx4 v[{o}:{o+3}], v{VZ}, s[8:11], s{so} offen {sc_st}")
        A(f"buffer_store_dwordx2 v[{o+4}:{o+5}], v{VZ}, s[8:11], s{so} offen offset:1024 {sc_st}")
    A(f"s_branch {fe}")
    A.label(f1)
    for j, so in ((0, 18), (1, 26)):
        o = HO + j * 6
        A(f"buffer_store_dwordx2 v[{o}:{o+1}], v{VZ}, s[8:11], s{so} offen offset:{1024+8} {sc_st}")
        A(f"buffer_store_dwordx4 v[{o+2}:{o+5}], v{VZ}, s[8:11], s{so} offen offset:2048 {sc_st}")
    A.label(fe)

def gen_p2_kernel():
    A = Asm()
    end = prologue(A)
    stamp(A, 0)
    stamp(A, 5, cyc=True)
    wg_map_p23(A)
    if "small" in sys.argv: A("s_and_b32 s4, s4, 1\ns_and_b32 s5, s5, 1")
    ld = A.newlabel("Lp2ld")
    A(f"s_cmp_ge_u32 s3, 4\ns_cbranch_scc1 {ld}")
    p2_consumer(A)
    A("s_waitcnt vmcnt(0)")
    stamp(A, 2); stamp(A, 4); stamp(A, 6, cyc=True)
    dump_stamps(A, 7)
    A("s_endpgm")
    A.label(ld)
    p2_loader(A)
    stamp(A, 4); stamp(A, 6, cyc=True)
    dump_stamps(A, 7)
    A("s_endpgm")
    A.label(end)
    A("s_endpgm")
    return A.text(verbose=True)

if __name__ == "__main__":
    import common
    common.set_profile("prof" in sys.argv)
    txt = build_file([("p2_kernel", gen_p2_kernel(), 256, 102, 256)], [("p2_kernel", 256, 512, LDS_MAX)])
    open("p2%s.s" % ("small" if "small" in sys.argv else "nomfma" if "nomfma" in sys.argv else ""), "w").write(txt)
```

```python
from common import *
from p2 import wg_map_p23

FINE = 'fine' in sys.argv
OUT_SC = 'sc1' if 'outsc1' in sys.argv else 'nt' if 'outnt' in sys.argv else ''
S3_SLOT = 20480; S3_N = 6; S3_NST = 11; S3_BASE = 32768

def div12(A, q, d, r, tmp_s):
    A(f"s_mov_b32 s{tmp_s}, 43691")
    A(f"v_mul_u32_u24 v{d}, s{tmp_s}, v{q}")
    A(f"v_lshrrev_b32 v{d}, 19, v{d}")
    A(f"v_mul_u32_u24 v{r}, 12, v{d}")
    A(f"v_sub_u32 v{r}, v{q}, v{r}")

def p3l_setup(A):
    A(f"s_sub_u32 s16, s{S_WAVE}, 4")
    A(f"s_mul_i32 s17, s5, {WP_CB}")
    make_srd(A, 8, P_WS, WP_OFF, WP_CB, off_sgpr=17)
    A("s_mul_i32 s18, s16, 5120\nv_lshlrev_b32 v2, 4, v0\nv_add_u32 v2, s18, v2")

def p3l_issue(A, st, Q, sc=""):
    slot = st % S3_N
    A(f"s_mov_b32 s20, {st * S3_SLOT}")
    A(f"s_add_u32 m0, s18, {S3_BASE + slot * S3_SLOT}")
    for e in range(4):
        A(f"buffer_load_dwordx4 v2, s[8:11], s20 offen offset:{e*1024} {sc} lds")
    A(f"s_add_u32 m0, s18, {S3_BASE + slot * S3_SLOT + 4096}\ns_add_u32 s20, s20, 4096")
    A(f"buffer_load_dwordx4 v2, s[8:11], s20 offen {sc} lds")
    Q.issue(("w", st), 5)

def p3l_main(A, Q, nxt, sc="", hooks=None, maxi=1):
    hooks = hooks or {}
    for st in range(S3_NST):
        if ("pre", st) in hooks: hooks[("pre", st)]()
        if ("w", st) in Q.q:
            n = Q.wait_for({("w", st)})
            A(f"s_waitcnt vmcnt({n})"); Q.retire(n)
        A("s_barrier")
        if ("post", st) in hooks: hooks[("post", st)]()
        lim = min(S3_NST, max(S3_N, st - 1 + S3_N))
        cnt = 0
        while nxt < lim and cnt < maxi:
            p3l_issue(A, nxt, Q, sc); nxt += 1; cnt += 1

def p3_loader(A):
    p3l_setup(A)
    Q = VmQueue()
    for st in range(2): p3l_issue(A, st, Q)
    p3l_main(A, Q, 2)

P3_XB = [208, 224, 88]
P3_VX = 242; P3_VG = 240
def p3_early(A, rb, sc_ld=""):
    A(f"s_lshr_b32 s38, s3, 1\ns_and_b32 s39, s3, 1")
    A(f"s_lshl_b32 s44, s{rb}, 2\ns_lshl_b32 s45, s39, 1\ns_add_u32 s44, s44, s45\ns_mul_i32 s44, s44, {44*1024}")
    make_srd(A, 40, P_WS, A3_OFF, 88 * 1024, off_sgpr=44)
    A(f"v_lshlrev_b32 v{P3_VX}, 4, v0")
    A(f"s_lshl_b32 s44, s{rb}, 8\ns_lshl_b32 s45, s39, 7\ns_add_u32 s44, s44, s45")
    make_srd(A, 48, P_WS, G_OFF, 128, off_sgpr=44)
    A(f"v_and_b32 v243, 15, v0\nv_lshlrev_b32 v243, 2, v243\nbuffer_load_dword v{P3_VG}, v243, s[48:51], 0 offen {sc_ld}\nbuffer_load_dword v{P3_VG+1}, v243, s[48:51], 0 offen offset:64 {sc_ld}")
    A(f"s_lshl_b32 s44, s38, 11\ns_add_u32 s45, s44, {44*1024}")
    p3_xload(A, 0, sc_ld); p3_xload(A, 1, sc_ld)

def p3_xload(A, st, sc_ld):
    d = P3_XB[st % 3]
    A(f"buffer_load_dwordx4 v[{d}:{d+3}], v{P3_VX}, s[40:43], s44 offen {sc_ld}")
    A(f"buffer_load_dwordx4 v[{d+4}:{d+7}], v{P3_VX}, s[40:43], s45 offen {sc_ld}")
    A(f"buffer_load_dwordx4 v[{d+8}:{d+11}], v{P3_VX}, s[40:43], s44 offen offset:1024 {sc_ld}")
    A(f"buffer_load_dwordx4 v[{d+12}:{d+15}], v{P3_VX}, s[40:43], s45 offen offset:1024 {sc_ld}")
    A("s_add_u32 s44, s44, 4096\ns_add_u32 s45, s45, 4096")

def p3_consumer(A, sc_ld="", early_done=False, drain0=False, rb=4, hflag=None, poison=False):
    ACA = 8; ACB = 48
    WF = [152, 172]
    VE = 192; VEC = 194
    VX = P3_VX; VG = P3_VG
    T = 104
    if not early_done: p3_early(A, rb, sc_ld)
    A("s_lshr_b32 s16, s3, 1\ns_and_b32 s17, s3, 1\nv_and_b32 v1, 15, v0")
    def xload(st): p3_xload(A, st, sc_ld)
    A(f"s_mul_i32 s21, s16, {2*5120}\nv_add_u32 v{VEC}, s21, v{VX}")
    def setaddr():
        A(f"v_add_u32 v{VE}, s22, v{VEC}")
    def wpair(buf, j2, nu):
        dn = WF[buf] + 4 * nu
        A(f"ds_read_b128 v[{dn}:{dn+3}], v{VE} offset:{(j2 * 5 + nu) * 1024}")
    def adv_slot():
        A(f"s_add_u32 s22, s22, {S3_SLOT}\ns_cmp_eq_u32 s22, {S3_BASE + S3_N*S3_SLOT}\ns_cselect_b32 s22, {S3_BASE}, s22")
    A(f"s_mov_b32 s22, {S3_BASE}")
    setaddr()
    A("s_barrier")
    stamp(A, 11)
    for nu in range(5): wpair(0, 0, nu)
    def check_x(st):
        x = P3_XB[st % 3]
        ok = A.newlabel("Lxok"); rl = A.newlabel("Lxrl")
        def test():
            A(f"v_max3_u32 v2, v{x}, v{x+2}, v{x+4}\nv_max3_u32 v3, v{x+6}, v{x+8}, v{x+10}\nv_max3_u32 v2, v2, v{x+12}, v{x+14}\nv_max_u32 v2, v2, v3\nv_cmp_eq_u32 vcc, -1, v2\ns_cmp_eq_u64 vcc, 0")
        test()
        A(f"s_cbranch_scc1 {ok}\ns_mov_b32 s35, 0")
        A.label(rl)
        issued = min(st + 2, S3_NST)
        back = (issued - st) * 4096
        A(f"s_sub_u32 s32, s44, {back}\ns_sub_u32 s33, s45, {back}")
        A(f"buffer_load_dwordx4 v[{x}:{x+3}], v{VX}, s[40:43], s32 offen {sc_ld}")
        A(f"buffer_load_dwordx4 v[{x+4}:{x+7}], v{VX}, s[40:43], s33 offen {sc_ld}")
        A(f"buffer_load_dwordx4 v[{x+8}:{x+11}], v{VX}, s[40:43], s32 offen offset:1024 {sc_ld}")
        A(f"buffer_load_dwordx4 v[{x+12}:{x+15}], v{VX}, s[40:43], s33 offen offset:1024 {sc_ld}")
        A("s_waitcnt vmcnt(0)")
        test()
        A(f"s_cbranch_scc1 {ok}\ns_add_u32 s35, s35, 1\ns_cmp_gt_u32 s35, s99\ns_cbranch_scc0 {rl}\ns_mov_b32 s99, 0")
        A.label(ok)
    nstep = 2 * S3_NST
    for step in range(nstep):
        st, j2 = step // 2, step % 2
        buf = step & 1
        acc = ACA if st < 5 else ACB
        last = step == nstep - 1
        if st == 1 and j2 == 0 and hflag:
            A("s_waitcnt vmcnt(0)"); hflag()
        if not last and j2 == 1:
            late_x = (st + 2 == 5) and not poison
            if st + 2 < S3_NST and not late_x: xload(st + 2)
            adv_slot(); setaddr()
            A("s_barrier")
            if late_x: xload(st + 2)
        for nu in range(5):
            lg = 4 if not last else 4 - nu
            vm = f"vmcnt({(4 if st <= 1 and drain0 else 0) + 4 * min(1, S3_NST - 1 - st)}) " if (nu == 0 and j2 == 0) else ""
            A(f"s_waitcnt {vm}lgkmcnt({lg})")
            if poison and st >= 5 and nu == 0 and j2 == 0: check_x(st)
            if nu == 0 and j2 == 0: stamp(A, 1 + st, f3=True)
            w = WF[buf] + 4 * nu
            for tt in range(2):
                d = acc + (tt * 5 + nu) * 4
                x = P3_XB[st % 3] + 8 * j2 + 4 * tt
                c = "0" if (st in (0, 5) and j2 == 0) else f"v[{d}:{d+3}]"
                A(f"v_mfma_f32_16x16x32_bf16 v[{d}:{d+3}], v[{w}:{w+3}], v[{x}:{x+3}], {c}")
                if tt == 0 and not last: wpair(buf ^ 1, (j2 + 1) % 2, nu)
    stamp(A, 12); stamp(A, 12, f3=True)
    for tt in range(2):
        for nu in range(5):
            a = ACA + (tt * 5 + nu) * 4; b = ACB + (tt * 5 + nu) * 4
            for r in range(4): A(f"v_sub_f32 v{a+r}, v{a+r}, v{b+r}")
            for r in range(4): A(f"v_fma_f32 v{a+r}, v{VG+tt}, v{a+r}, v{b+r}")
    A(f"s_mul_i32 s18, s3, 5120\nv_add_u32 v3, s18, v{VX}")
    A(f"s_xor_b32 s18, s3, 2\ns_mul_i32 s18, s18, 5120\nv_add_u32 v4, s18, v{VX}")
    k1 = A.newlabel("Lp3k1"); ke = A.newlabel("Lp3ke")
    A(f"s_cmp_eq_u32 s16, 0\ns_cbranch_scc0 {k1}")
    for nu in range(5):
        a = ACA + (5 + nu) * 4
        A(f"ds_write_b128 v3, v[{a}:{a+3}] offset:{nu*1024}")
    A(f"s_branch {ke}")
    A.label(k1)
    for nu in range(5):
        a = ACA + nu * 4
        A(f"ds_write_b128 v3, v[{a}:{a+3}] offset:{nu*1024}")
    for nu in range(5):
        for r in range(4): A(f"v_mov_b32 v{ACA+nu*4+r}, v{ACA+(5+nu)*4+r}")
    A.label(ke)
    A("s_waitcnt lgkmcnt(0)\ns_barrier")
    for nu in range(5):
        d = ACB + 4 * nu
        A(f"ds_read_b128 v[{d}:{d+3}], v4 offset:{nu*1024}")
    A(f"s_lshl_b32 s18, s4, 2\ns_lshl_b32 s19, s17, 1\ns_add_u32 s18, s18, s19\ns_add_u32 s18, s18, s16\ns_mul_i32 s18, s18, {16*1280}\ns_mul_i32 s19, s5, 160\ns_add_u32 s18, s18, s19")
    make_srd(A, 12, P_OUT, 0, 2048 * 1280)
    A(f"s_movk_i32 s19, 1280\nv_mul_u32_u24 v2, s19, v1\nv_lshrrev_b32 v4, 4, v0\nv_lshl_add_u32 v2, v4, 3, v2")
    A("s_waitcnt lgkmcnt(0)")
    for nu in range(5):
        a = ACA + 4 * nu; b = ACB + 4 * nu
        for r in range(4): A(f"v_add_f32 v{a+r}, v{a+r}, v{b+r}")
        o = T + 2 * nu
        A(f"v_cvt_pk_bf16_f32 v{o}, v{a}, v{a+1}\nv_cvt_pk_bf16_f32 v{o+1}, v{a+2}, v{a+3}")
        A(f"buffer_store_dwordx2 v[{o}:{o+1}], v2, s[12:15], s18 offen offset:{nu*32} {OUT_SC}")

def gen_p3_kernel():
    A = Asm()
    end = prologue(A)
    stamp(A, 0)
    stamp(A, 5, cyc=True)
    wg_map_p23(A)
    ld = A.newlabel("Lp3ld")
    A(f"s_cmp_ge_u32 s3, 4\ns_cbranch_scc1 {ld}")
    p3_consumer(A)
    A("s_waitcnt vmcnt(0)")
    stamp(A, 4); stamp(A, 6, cyc=True)
    dump_stamps(A, 15 if FINE else 7)
    A("s_endpgm")
    A.label(ld)
    stamp(A, 1)
    p3_loader(A)
    A("s_barrier\ns_barrier")
    stamp(A, 3); stamp(A, 4); stamp(A, 6, cyc=True)
    dump_stamps(A, 15 if FINE else 7)
    A("s_endpgm")
    A.label(end)
    A("s_endpgm")
    return A.text(verbose=True)

if __name__ == "__main__":
    import common
    common.set_profile("prof" in sys.argv)
    for q in range(1024): assert (q * 43691) >> 19 == q // 12
    txt = build_file([("p3_kernel", gen_p3_kernel(), 256, 102, 256)], [("p3_kernel", 256, 512, LDS_MAX)])
    open("p3.s", "w").write(txt)
```

```python
from common import *
from p1 import udiv_small, DsQ, gelu_regs, GELU_C1, GELU_C2, fbits, barrier_plan_loader

ZS_SLOT = 28672; ZS_N = 3; ZS_BASE = 4096; ZS_X = 0; ZS_W = 16384
ZS_NST = 20
Z_PART = 0
Z_STAT = 2048
ZA2 = 16; ZA1 = 64
ZWF = [112, 124]; ZXF = [136, 152]
ZVX = [168, 169]; ZVXC = [170, 171]; ZVE, ZVO, ZVEC, ZVOC = 172, 173, 174, 175

def z_loader(A, late=None, hooks=None, pre=None, xhooks=None):
    hooks = hooks or {}
    lx = A.newlabel("Lzl_x"); join = A.newlabel("Lzl_j")
    A(f"s_cmp_ge_u32 s3, 6\ns_cbranch_scc1 {lx}")
    make_srd(A, 8, P_WIN, 0, 640 * 3072)
    A("s_sub_u32 s16, s3, 4\ns_mul_i32 s17, s5, 192")
    for e in range(6):
        A(f"s_mul_i32 s18, s16, 384\ns_add_u32 s18, s18, {64 * e}\nv_add_u32 v12, s18, v0")
        udiv_small(A, 12, 13, 14, 12, 19, 768)
        A("v_lshrrev_b32 v15, 2, v13\nv_and_b32 v15, 2, v15\nv_xor_b32 v14, v14, v15")
        A(f"s_movk_i32 s19, 3072\nv_mul_u32_u24 v13, s19, v13\nv_lshl_add_u32 v13, v14, 4, v13\nv_add_u32 v{2+e}, s17, v13")
    A("s_mul_i32 s18, s16, 6144")
    Q = VmQueue()
    A("s_mov_b32 s22, s7")
    def issue_w(st):
        col = 1536 if st < 10 else 0
        A(f"s_mul_i32 s20, s22, {64 * 3072}\ns_add_u32 s20, s20, {col}\ns_add_u32 s22, s22, 1\ns_cmp_eq_u32 s22, 10\ns_cselect_b32 s22, 0, s22")
        for e in range(6):
            A(f"s_add_u32 m0, s18, {ZS_BASE + (st % ZS_N) * ZS_SLOT + ZS_W + e * 1024}")
            A(f"buffer_load_dwordx4 v{2+e}, s[8:11], s20 offen lds")
        Q.issue(("d", st), 6)
    run_loader(A, Q, issue_w, late, hooks, pre)
    A(f"s_branch {join}")
    A.label(lx)
    make_srd(A, 8, P_AX, 0, 2048 * 1280)
    A("""
    s_sub_u32 s16, s3, 6
    v_lshrrev_b32 v4, 3, v0
    v_and_b32 v5, 7, v0
    v_lshrrev_b32 v6, 1, v4
    v_xor_b32 v7, v5, v6
    s_movk_i32 s19, 1280
    v_mul_u32_u24 v8, s19, v4
    v_lshl_add_u32 v2, v7, 4, v8
    v_xor_b32 v7, 4, v7
    v_lshl_add_u32 v3, v7, 4, v8
    v_add_u32 v3, 10240, v3
    s_lshl_b32 s17, s4, 7
    s_lshl_b32 s18, s16, 6
    s_add_u32 s17, s17, s18
    s_mul_i32 s17, s17, 1280
    s_lshl_b32 s18, s16, 13
    """)
    Q = VmQueue()
    A("s_mov_b32 s22, s7")
    def issue_x(st):
        A("s_lshl_b32 s23, s22, 7\ns_add_u32 s23, s23, s17\ns_add_u32 s22, s22, 1\ns_cmp_eq_u32 s22, 10\ns_cselect_b32 s22, 0, s22")
        for e in range(8):
            A(f"s_add_u32 m0, s18, {ZS_BASE + (st % ZS_N) * ZS_SLOT + ZS_X + e * 1024}")
            A(f"s_add_u32 s20, s23, {(e >> 1) * 16 * 1280}")
            A(f"buffer_load_dwordx4 v{2 + (e & 1)}, s[8:11], s20 offen lds")
        Q.issue(("d", st), 8)
    run_loader(A, Q, issue_x, late, xhooks or {}, pre)
    A.label(join)

def run_loader(A, Q, issue, late, hooks, pre=None):
    if pre: pre()
    issue(0); issue(1)
    if "early" in hooks: hooks["early"](A, Q)
    stamp(A, 1)
    nxt = 2
    for st in range(ZS_NST):
        if ("d", st) in Q.q:
            n = Q.wait_for({("d", st)})
            A(f"s_waitcnt vmcnt({min(n, 63)})"); Q.retire(min(n, 63))
        A("s_barrier")
        if st == 0: stamp(A, 2)
        lim = min(ZS_NST, st + ZS_N); c = 0
        while nxt < lim and c < 2:
            issue(nxt); nxt += 1; c += 1
        if "each" in hooks: hooks["each"](A, Q, st)
        if st == 4 and "st4" in hooks: hooks["st4"](A, Q)
        if st == 2 and "st2" in hooks: hooks["st2"](A, Q)
        if st == 9:
            A("s_barrier")
            if "after_z1" in hooks: hooks["after_z1"](A, Q)
        if st == 13 and "st13" in hooks: hooks["st13"](A, Q)
        if st == ZS_NST - 2 and "pre_last" in hooks: hooks["pre_last"](A, Q)
        if st == ZS_NST - 1 and late: late(A)

def z_consumer(A, mid=None, between=None, it_hook=None, b0hook=None, preb0=None):
    A("v_and_b32 v1, 15, v0\nv_lshrrev_b32 v2, 4, v0\ns_lshr_b32 s16, s3, 1\ns_and_b32 s17, s3, 1")
    A(f"""
    v_lshrrev_b32 v3, 1, v1
    v_xor_b32 v3, v3, v2
    v_lshlrev_b32 v3, 4, v3
    v_lshl_add_u32 v{ZVXC[0]}, v1, 7, v3
    s_lshl_b32 s18, s16, 13
    v_add_u32 v{ZVXC[0]}, s18, v{ZVXC[0]}
    v_xor_b32 v{ZVXC[1]}, 64, v{ZVXC[0]}
    """)
    A(f"""
    v_lshrrev_b32 v3, 2, v1
    v_lshl_add_u32 v3, v2, 3, v3
    v_mul_u32_u24 v3, 192, v3
    v_and_b32 v4, 3, v1
    v_lshl_add_u32 v3, v4, 3, v3
    s_mul_i32 s18, s17, 96
    s_add_u32 s18, s18, {ZS_W}
    v_add_u32 v3, s18, v3
    v_and_b32 v4, 1, v2
    v_lshlrev_b32 v4, 5, v4
    v_add_u32 v5, v3, v4
    v_sub_u32 v3, v3, v4
    s_cmp_eq_u32 s17, 0
    s_cselect_b64 vcc, -1, 0
    v_cndmask_b32 v{ZVEC}, v3, v5, vcc
    v_cndmask_b32 v{ZVOC}, v5, v3, vcc
    """)
    for i in range(96): A(f"v_mov_b32 v{ZA2+i}, 0")
    D = DsQ()
    def setaddr():
        A(f"v_add_u32 v{ZVX[0]}, s22, v{ZVXC[0]}"); A(f"v_add_u32 v{ZVX[1]}, s22, v{ZVXC[1]}")
        A(f"v_add_u32 v{ZVE}, s22, v{ZVEC}"); A(f"v_add_u32 v{ZVO}, s22, v{ZVOC}")
    def rd_w(buf, t, kk, tag):
        d = ZWF[buf] + 4 * t; a = ZVO if t & 1 else ZVE
        off = kk * 32 * 192 + t * 32
        A(f"ds_read_b64_tr_b16 v[{d}:{d+1}], v{a} offset:{off}"); D.issue(tag)
        A(f"ds_read_b64_tr_b16 v[{d+2}:{d+3}], v{a} offset:{off + 4*192}"); D.issue(tag)
    def rd_x(buf, m, kk, tag):
        d = ZXF[buf] + 4 * m
        A(f"ds_read_b128 v[{d}:{d+3}], v{ZVX[kk]} offset:{m * 2048}"); D.issue(tag)
    ORDER = [("x", 0), ("w", 0), ("w", 1), ("w", 2), ("x", 1), ("x", 2), ("x", 3)]
    def rd(buf, item, kk, sim):
        if item[0] == "x": rd_x(buf, item[1], kk, ("x", sim, item[1]))
        else: rd_w(buf, item[1], kk, ("w", sim, item[1]))
    def half(kk, z2, has_next, sim):
        pend = list(ORDER) if has_next else []
        cnt = 0
        if kk == 1 and has_next:
            A(f"s_add_u32 s22, s22, {ZS_SLOT}"); A(f"s_cmp_eq_u32 s22, {ZS_BASE + ZS_N*ZS_SLOT}"); A(f"s_cselect_b32 s22, {ZS_BASE}, s22")
        for m in range(4):
            for t in range(3):
                n = D.wait({("x", sim, m), ("w", sim, t)})
                if n is not None: A(f"s_waitcnt lgkmcnt({min(n, 15)})")
                wf = ZWF[kk] + 4 * t; xf = ZXF[kk] + 4 * m
                if z2:
                    d = ZA2 + (m * 3 + t) * 4
                    A(f"v_mfma_f32_16x16x32_bf16 v[{d}:{d+3}], v[{xf}:{xf+3}], v[{wf}:{wf+3}], v[{d}:{d+3}]")
                else:
                    d = ZA1 + (t * 4 + m) * 4
                    A(f"v_mfma_f32_16x16x32_bf16 v[{d}:{d+3}], v[{wf}:{wf+3}], v[{xf}:{xf+3}], v[{d}:{d+3}]")
                cnt += 1
                if kk == 1 and has_next and cnt == 1:
                    setaddr()
                    A("s_waitcnt lgkmcnt(0)"); D.q.clear()
                    A("s_barrier")
                if pend and cnt >= 1:
                    rd(kk ^ 1, pend.pop(0), kk ^ 1, sim + 1)
    def gemm_pass(z2, first):
        for it in ORDER: rd(0, it, 0, 0)
        loop = A.newlabel("Lzp")
        A("s_mov_b32 s24, 0")
        A.label(loop)
        if it_hook and first: it_hook(A)
        if mid and first:
            lm = A.newlabel("Lmid"); A(f"s_cmp_lg_u32 s24, 3\ns_cbranch_scc1 {lm}"); mid(A); A.label(lm)
        half(0, z2, True, 0)
        half(1, z2, True, 1)
        A("s_add_u32 s24, s24, 1\ns_cmp_lt_u32 s24, 9")
        A(f"s_cbranch_scc1 {loop}")
        half(0, z2, True, 2)
        half(1, z2, False, 3)
        D.q.clear()
    A(f"s_mov_b32 s22, {ZS_BASE}")
    setaddr()
    if preb0: preb0(A)
    stamp(A, 1)
    A("s_barrier")
    stamp(A, 2)
    if b0hook: b0hook(A)
    gemm_pass(True, True)
    stamp(A, 3)
    between(A)
    A(f"s_add_u32 s22, s22, {ZS_SLOT}\ns_cmp_eq_u32 s22, {ZS_BASE + ZS_N*ZS_SLOT}\ns_cselect_b32 s22, {ZS_BASE}, s22")
    setaddr()
    A("s_barrier")
    gemm_pass(False, False)

def z_epi_stats(A):
    C1, C2, T = 176, 178, 180
    A(f"v_mov_b32 v{C1}, {fbits(GELU_C1):#x}\nv_mov_b32 v{C1+1}, {fbits(GELU_C1):#x}\nv_mov_b32 v{C2}, {fbits(GELU_C2):#x}\nv_mov_b32 v{C2+1}, {fbits(GELU_C2):#x}")
    gelu_regs(A, ZA2, 48, C1, C2, T)
    SU = 192; SQ = 208
    for m in range(4):
        for r in range(4):
            a, b, c = [ZA2 + (m * 3 + t) * 4 + r for t in range(3)]
            s_, q_ = SU + m * 4 + r, SQ + m * 4 + r
            A(f"v_add_f32 v{s_}, v{a}, v{b}\nv_mul_f32 v{q_}, v{a}, v{a}\nv_add_f32 v{s_}, v{s_}, v{c}\nv_fmac_f32 v{q_}, v{b}, v{b}\nv_fmac_f32 v{q_}, v{c}, v{c}")
    for base in (SU, SQ):
        for j in range(8): A(f"v_add_f32_dpp v{base+j}, v{base+j}, v{base+j} row_ror:8 row_mask:0xf bank_mask:0x3")
    for base in (SU, SQ):
        for j in range(8): A(f"v_add_f32_dpp v{base+j}, v{base+j+8}, v{base+j+8} row_ror:8 row_mask:0xf bank_mask:0xc")
    for base in (SU, SQ):
        for j in range(4): A(f"v_add_f32_dpp v{base+j}, v{base+j}, v{base+j} row_half_mirror row_mask:0xf bank_mask:0x5")
    for base in (SU, SQ):
        for j in range(4): A(f"v_add_f32_dpp v{base+j}, v{base+j+4}, v{base+j+4} row_half_mirror row_mask:0xf bank_mask:0xa")
    for base in (SU, SQ):
        for j in range(4):
            A(f"v_add_f32_dpp v{base+j}, v{base+j}, v{base+j} quad_perm:[2,3,0,1] row_mask:0xf bank_mask:0xf")
    for base in (SU, SQ):
        for j in range(4):
            A(f"v_add_f32_dpp v{base+j}, v{base+j}, v{base+j} quad_perm:[1,0,3,2] row_mask:0xf bank_mask:0xf")
    A(f"""
    s_lshl_b32 s18, s17, 10
    s_lshl_b32 s19, s16, 9
    s_add_u32 s18, s18, s19
    s_add_u32 s18, s18, {Z_PART}
    v_lshrrev_b32 v3, 2, v1
    v_lshlrev_b32 v3, 7, v3
    v_lshl_add_u32 v3, v2, 5, v3
    v_add_u32 v3, s18, v3
    s_mov_b64 s[12:13], exec
    s_mov_b32 s20, 0x11111111
    s_mov_b32 s21, 0x11111111
    s_mov_b64 exec, s[20:21]
    """)
    T = 180
    A(f"v_mov_b32 v{T}, v{SU}\nv_mov_b32 v{T+1}, v{SQ}\nv_mov_b32 v{T+2}, v{SU+1}\nv_mov_b32 v{T+3}, v{SQ+1}")
    A(f"v_mov_b32 v{T+4}, v{SU+2}\nv_mov_b32 v{T+5}, v{SQ+2}\nv_mov_b32 v{T+6}, v{SU+3}\nv_mov_b32 v{T+7}, v{SQ+3}")
    A(f"ds_write_b128 v3, v[{T}:{T+3}]\nds_write_b128 v3, v[{T+4}:{T+7}] offset:16")
    A("s_mov_b64 exec, s[12:13]\ns_waitcnt lgkmcnt(0)")

def z_publish_stats(A, NONCE):
    A(f"s_sub_u32 s21, s3, 4\ns_lshl_b32 s21, s21, 9\nv_lshlrev_b32 v20, 3, v0\nv_add_u32 v20, s21, v20")
    A(f"v_add_u32 v88, {Z_PART}, v20")
    A(f"ds_read_b64 v[22:23], v88\nds_read_b64 v[24:25], v88 offset:1024\ns_waitcnt lgkmcnt(0)")
    A(f"v_add_f32 v28, v22, v24\nv_add_f32 v30, v23, v25\nv_mov_b32 v29, s{NONCE}\nv_mov_b32 v31, s{NONCE}")
    A("s_lshl_b32 s21, s4, 14")
    make_srd(A, 92, P_WS, ST_OFF, 16384, off_sgpr=21)
    A("v_lshlrev_b32 v89, 1, v20\ns_lshl_b32 s21, s5, 11")
    A("buffer_store_dwordx4 v[28:31], v89, s[92:95], s21 offen sc1")

def z_gather_issue(A):
    for c in range(8):
        A(f"s_mov_b32 s21, {c*2048}\nbuffer_load_dwordx4 v[{56+4*c}:{59+4*c}], v89, s[92:95], s21 offen sc1")

def z_gather_finish(A, NONCE, spin_max):
    lp = A.newlabel("Lst"); ok = A.newlabel("Lstok")
    A("s_mov_b32 s20, 0")
    A.label(lp)
    A("s_waitcnt vmcnt(0)")
    A(f"v_mov_b32 v12, 0")
    for c in range(8):
        A(f"v_xor_b32 v13, s{NONCE}, v{57+4*c}\nv_or_b32 v12, v12, v13\nv_xor_b32 v13, s{NONCE}, v{59+4*c}\nv_or_b32 v12, v12, v13")
    A(f"v_cmp_ne_u32 vcc, 0, v12\ns_cmp_eq_u64 vcc, 0\ns_cbranch_scc1 {ok}")
    A(f"s_add_u32 s20, s20, 1\ns_cmp_gt_u32 s20, {spin_max}\ns_cbranch_scc1 {ok}\ns_sleep 1")
    z_gather_issue(A)
    A(f"s_branch {lp}")
    A.label(ok)
    A("v_add_f32 v4, v56, v60\nv_add_f32 v5, v58, v62")
    for c in range(2, 8): A(f"v_add_f32 v4, v4, v{56+4*c}\nv_add_f32 v5, v5, v{58+4*c}")
    inv = fbits(1.0 / 768.0)
    A(f"""
    v_mul_f32 v4, {inv:#x}, v4
    v_mul_f32 v5, {inv:#x}, v5
    v_fma_f32 v5, -v4, v4, v5
    v_max_f32 v5, 0, v5
    v_add_f32 v5, {fbits(1e-5):#x}, v5
    v_rsq_f32 v6, v5
    s_nop 0
    v_mul_f32 v7, -v4, v6
    """)
    A(f"ds_write_b64 v88, v[6:7] offset:{Z_STAT - Z_PART}\ns_waitcnt lgkmcnt(0)")

def z_epi_norm(A, sc_st=""):
    ST = 112
    A(f"s_lshl_b32 s19, s16, 9\ns_add_u32 s19, s19, {Z_STAT}\nv_lshlrev_b32 v3, 5, v2\nv_add_u32 v3, s19, v3")
    for m in range(4):
        A(f"ds_read_b128 v[{ST+8*m}:{ST+8*m+3}], v3 offset:{m*128}\nds_read_b128 v[{ST+8*m+4}:{ST+8*m+7}], v3 offset:{m*128+16}")
    A(f"s_mul_i32 s18, s5, 393216\ns_lshl_b32 s19, s4, 2\ns_lshl_b32 s20, s16, 1\ns_add_u32 s19, s19, s20\ns_mul_i32 s19, s19, 6144\ns_add_u32 s18, s18, s19\ns_mul_i32 s19, s17, 3072\ns_add_u32 s18, s18, s19")
    make_srd(A, 8, P_WS, ZN_OFF, 6144 + 3072, off_sgpr=18)
    A("v_lshlrev_b32 v4, 4, v0\ns_waitcnt lgkmcnt(0)")
    for P in range(2):
        for t in range(3):
            o = 144 + 4 * (P * 3 + t)
            for j in range(2):
                m = 2 * P + j
                d = ZA2 + (m * 3 + t) * 4
                for r in range(4):
                    A(f"v_fma_f32 v{d+r}, v{d+r}, v{ST+8*m+2*r}, v{ST+8*m+2*r+1}")
                A(f"v_cvt_pk_bf16_f32 v{o+2*j}, v{d}, v{d+1}\nv_cvt_pk_bf16_f32 v{o+2*j+1}, v{d+2}, v{d+3}")
            A(f"v_permlane32_swap_b32 v{o}, v{o+2}\nv_permlane32_swap_b32 v{o+1}, v{o+3}")
            A(f"v_permlane16_swap_b32 v{o}, v{o+2}\nv_permlane16_swap_b32 v{o+1}, v{o+3}")
            A(f"s_mov_b32 s19, {P*6144 + t*1024}\nbuffer_store_dwordx4 v[{o}:{o+3}], v4, s[8:11], s19 offen {sc_st}")

def z_epi_z1(A, sc_st=""):
    C1, C2, T = 176, 178, 180
    gelu_regs(A, ZA1, 48, C1, C2, T)
    A(f"s_lshl_b32 s18, s4, 1\ns_add_u32 s18, s18, s16\ns_lshl_b32 s18, s18, 3\ns_add_u32 s18, s18, s5\ns_lshl_b32 s18, s18, 2\ns_lshl_b32 s19, s17, 1\ns_add_u32 s18, s18, s19\ns_mul_i32 s18, s18, 3072")
    make_srd(A, 8, P_WS, Z1_OFF, 6144, off_sgpr=18)
    A("v_lshlrev_b32 v4, 4, v0")
    for wt in range(2):
        for t in range(3):
            o = 192 + 4 * (wt * 3 + t)
            for j in range(2):
                d = ZA1 + (t * 4 + 2 * wt + j) * 4
                A(f"v_cvt_pk_bf16_f32 v{o+2*j}, v{d}, v{d+1}\nv_cvt_pk_bf16_f32 v{o+2*j+1}, v{d+2}, v{d+3}")
            A(f"s_mov_b32 s19, {wt*3072 + t*1024}\nbuffer_store_dwordx4 v[{o}:{o+3}], v4, s[8:11], s19 offen {sc_st}")
```

```python
import sys
import common
from common import *
import p1, p2, p3, zrole
from p1 import *

NONCE = 62
RB64, CB = 60, 61
ZF_OFF, OF_OFF, PF_OFF, HF_OFF, Z1F_OFF = 0x0000, 0x1000, 0x2000, 0x3000, 0x0800
LAZY = 63
NONCE_LDS = 163824 - 2048
NONCE_LDS = 161792
SPIN_MAX = 1 << 17

def flag_srd(A):
    make_srd(A, 28, P_WS, FL_OFF, 0x4000)

TV = [250]
def set_flag(A, soff_sgpr):
    flag_srd(A)
    A(f"s_mov_b64 s[32:33], exec\ns_mov_b64 exec, 1\nv_mov_b32 v{TV[0]}, 0\nv_mov_b32 v{TV[0]+1}, s{NONCE}")
    A(f"buffer_store_dword v{TV[0]+1}, v{TV[0]}, s[28:31], s{soff_sgpr} offen sc1")
    A("s_mov_b64 exec, s[32:33]")

def wait_flags(A, soff_sgpr, n):
    flag_srd(A)
    lo = (1 << min(n, 32)) - 1; hi = (1 << max(n - 32, 0)) - 1
    lp = A.newlabel("Lw"); ok = A.newlabel("Lwok")
    A(f"s_mov_b64 s[32:33], exec\ns_mov_b32 exec_lo, {lo:#x}\ns_mov_b32 exec_hi, {hi:#x}\nv_lshlrev_b32 v{TV[0]}, 2, v0\ns_mov_b32 s34, 0")
    A.label(lp)
    A(f"buffer_load_dword v{TV[0]+1}, v{TV[0]}, s[28:31], s{soff_sgpr} offen sc1\ns_waitcnt vmcnt(0)")
    A(f"v_cmp_ne_u32 vcc, s{NONCE}, v{TV[0]+1}\ns_cmp_eq_u64 vcc, 0\ns_cbranch_scc1 {ok}")
    A(f"s_add_u32 s34, s34, 1\ns_cmp_gt_u32 s34, {SPIN_MAX}\ns_cbranch_scc1 {ok}\ns_sleep 1\ns_branch {lp}")
    A.label(ok)
    A("s_mov_b64 exec, s[32:33]")

def poll_issue(A, soff_sgpr, n, vreg):
    flag_srd(A)
    A(f"v_min_u32 v{TV[0]}, {n-1}, v0\nv_lshlrev_b32 v{TV[0]}, 2, v{TV[0]}\nbuffer_load_dword v{vreg}, v{TV[0]}, s[28:31], s{soff_sgpr} offen sc1")

def poll_check(A, soff_sgpr, n, vreg):
    ok = A.newlabel("Lpok")
    A(f"v_cmp_ne_u32 vcc, s{NONCE}, v{vreg}\ns_cmp_eq_u64 vcc, 0\ns_cbranch_scc1 {ok}")
    wait_flags(A, soff_sgpr, n)
    A.label(ok)

def read_nonce_lds(A):
    A(f"v_mov_b32 v250, {NONCE_LDS}\nds_read_b32 v251, v250\ns_waitcnt lgkmcnt(0)\nv_readfirstlane_b32 s{NONCE}, v251")

def touch_bulk(A, which=3):
    A("s_lshr_b32 s26, s2, 3\ns_lshl_b32 s26, s26, 2\ns_add_u32 s26, s26, s3\ns_lshl_b32 s26, s26, 6")
    A("v_add_u32 v240, s26, v0")
    A("s_and_b32 s27, s2, 7\ns_lshr_b32 s32, s27, 1\ns_and_b32 s32, s32, 1\ns_and_b32 s33, s27, 1")
    make_srd(A, 8, P_AX, 0, 2048 * 1280)
    A("s_lshl_b32 s34, s32, 10\ns_movk_i32 s35, 1280")
    A("v_and_b32 v241, 1023, v240\nv_add_u32 v241, s34, v241\nv_mul_u32_u24 v241, s35, v241\nv_lshrrev_b32 v242, 10, v240\nv_lshl_add_u32 v241, v242, 7, v241")
    if which & 1: A("buffer_load_dword v254, v241, s[8:11], 0 offen offset:256")
    if not (which & 2): return
    wq = A.newlabel("Ltq"); wj = A.newlabel("Ltj")
    A(f"s_cmp_eq_u32 s6, 1\ns_cbranch_scc1 {wq}")
    def wpart(nl, per_seg, rs, segstride, colhalf_bytes, ptr, size, total):
        make_srd(A, 12, ptr, 0, size)
        A(f"s_mul_i32 s25, s33, {colhalf_bytes}\ns_add_u32 s25, s25, {128 * rs}")
        A(f"v_mov_b32 v243, v240")
        udiv_small(A, 243, 244, 246, nl, 31, 16384)
        udiv_small(A, 246, 247, 248, per_seg, 31, 16)
        A(f"s_movk_i32 s31, {rs}\nv_mul_u32_u24 v244, s31, v244\ns_movk_i32 s31, {segstride}\nv_mul_u32_u24 v247, s31, v247\nv_lshlrev_b32 v248, 7, v248\nv_add3_u32 v244, v244, v247, v248")
        A(f"v_cmp_gt_u32 vcc, {512 * nl}, v243\nv_cndmask_b32 v244, -1, v244, vcc")
        A(f"buffer_load_dword v254, v244, s[12:15], s25 offen")
    wpart(15, 5, 3840, 1280, 640, P_WQKV, 640 * 3840, 9600)
    A(f"s_branch {wj}")
    A.label(wq)
    wpart(12, 6, 3072, 1536, 768, P_WIN, 640 * 3072, 7680)
    A.label(wj)

def touch_half(A, h):
    A("s_lshr_b32 s26, s2, 3\ns_lshl_b32 s26, s26, 2\ns_add_u32 s26, s26, s3")
    A("s_and_b32 s27, s2, 7\ns_lshr_b32 s32, s27, 1\ns_and_b32 s32, s32, 1\ns_and_b32 s33, s27, 1")
    A("s_lshl_b32 s34, s26, 5\nv_add_u32 v240, s34, v0\ns_lshl_b32 s34, s32, 10\ns_movk_i32 s35, 1280")
    A(f"v_and_b32 v241, 1023, v240\nv_add_u32 v241, s34, v241\nv_mul_u32_u24 v241, s35, v241\nv_lshrrev_b32 v242, 10, v240\nv_lshl_add_u32 v241, v242, 7, v241\nv_add_u32 v241, {(2 + 4*h) * 128}, v241")
    zq = A.newlabel("Lhz"); pj = A.newlabel("Lhj")
    A(f"s_cmp_eq_u32 s6, 1\ns_cbranch_scc1 {zq}")
    def wp(nper, nl, per_seg, rs, segstride, colbytes, ptr):
        A(f"s_mul_i32 s34, s26, {nper}\ns_sub_u32 s34, s34, 32\nv_add_u32 v243, s34, v0\nv_max_i32 v243, 0, v243\nv_min_u32 v243, {128*nper-1}, v243")
        udiv_small(A, 243, 244, 246, nl, 31, 4096)
        udiv_small(A, 246, 247, 248, per_seg, 31, 16)
        A(f"s_movk_i32 s31, {rs}\nv_mul_u32_u24 v244, s31, v244\ns_movk_i32 s31, {segstride}\nv_mul_u32_u24 v247, s31, v247\nv_lshlrev_b32 v248, 7, v248\nv_add3_u32 v244, v244, v247, v248")
        A(f"s_mul_i32 s25, s33, {colbytes}\ns_add_u32 s25, s25, {(128 + 256*h) * rs}\nv_add_u32 v244, s25, v244")
        A(f"s_mov_b32 s30, s{ptr}\ns_mov_b32 s31, s{ptr+1}\ns_movk_i32 s35, {32+nper}")
    wp(30, 15, 5, 3840, 1280, 640, P_WQKV)
    A(f"s_branch {pj}")
    A.label(zq)
    wp(24, 12, 6, 3072, 1536, 768, P_WIN)
    A.label(pj)
    A("v_cmp_gt_u32 vcc, 32, v0")
    A(f"v_cndmask_b32 v241, v244, v241, vcc")
    A(f"v_mov_b32 v243, s30\nv_mov_b32 v244, s{P_AX}\nv_cndmask_b32 v243, v243, v244, vcc")
    A(f"v_mov_b32 v245, s31\nv_mov_b32 v244, s{P_AX+1}\nv_cndmask_b32 v245, v245, v244, vcc")
    A(f"v_add_co_u32 v246, vcc, v243, v241\nv_addc_co_u32 v247, vcc, 0, v245, vcc")
    A("v_cmp_gt_u32 vcc, s35, v0\ns_and_saveexec_b64 s[34:35], vcc")
    A("global_load_dword v254, v[246:247], off\ns_mov_b64 exec, s[34:35]")

PLEAD = 3
TA_ = 236
def ptouch_setup(A):
    A("s_lshr_b32 s16, s2, 3\ns_and_b32 s17, s2, 7\ns_lshr_b32 s18, s17, 1\ns_and_b32 s18, s18, 1\ns_and_b32 s19, s17, 1")
    A("s_lshl_b32 s20, s18, 10\ns_lshl_b32 s21, s16, 5\ns_add_u32 s20, s20, s21\nv_add_u32 v230, s20, v0\ns_movk_i32 s21, 1280\nv_mul_u32_u24 v230, s21, v230")
    zq = A.newlabel("Lpz"); pj = A.newlabel("Lpj")
    A(f"s_cmp_eq_u32 s6, 1\ns_cbranch_scc1 {zq}")
    def wp(nper, nl, per_seg, rs, segstride, colbytes, ptr, inc):
        A(f"s_mul_i32 s20, s16, {nper}\ns_sub_u32 s20, s20, 32\nv_add_u32 v231, s20, v0")
        A(f"v_max_i32 v231, 0, v231\nv_min_u32 v231, {32*nper-1}, v231")
        udiv_small(A, 231, 232, 233, nl, 23, 1024)
        udiv_small(A, 233, 234, 235, per_seg, 23, 16)
        A(f"s_movk_i32 s23, {rs}\nv_mul_u32_u24 v232, s23, v232\ns_movk_i32 s23, {segstride}\nv_mul_u32_u24 v234, s23, v234\nv_lshlrev_b32 v235, 7, v235\nv_add3_u32 v232, v232, v234, v235")
        A(f"s_mul_i32 s22, s19, {colbytes}\nv_add_u32 v232, s22, v232")
        A(f"s_mov_b32 s24, s{ptr}\ns_mov_b32 s25, s{ptr+1}\ns_mov_b32 s26, {inc}\ns_movk_i32 s27, {32+nper}")
    wp(30, 15, 5, 3840, 1280, 640, P_WQKV, 64 * 3840)
    A(f"s_branch {pj}")
    A.label(zq)
    wp(24, 12, 6, 3072, 1536, 768, P_WIN, 64 * 3072)
    A.label(pj)
    A("v_cmp_gt_u32 vcc, 32, v0")
    A(f"v_cndmask_b32 v230, v232, v230, vcc")
    A(f"v_mov_b32 v231, s24\nv_mov_b32 v232, s{P_AX}\nv_cndmask_b32 v231, v231, v232, vcc")
    A(f"v_mov_b32 v233, s25\nv_mov_b32 v232, s{P_AX+1}\nv_cndmask_b32 v233, v233, v232, vcc")
    A(f"v_mov_b32 v238, s26\nv_mov_b32 v232, 128\nv_cndmask_b32 v238, v238, v232, vcc")
    A(f"v_add_co_u32 v{TA_}, vcc, v231, v230\nv_addc_co_u32 v{TA_+1}, vcc, 0, v233, vcc")
    A("v_cmp_gt_u32 s[90:91], s27, v0")

def ptouch(A):
    A(f"s_mov_b64 s[88:89], exec\ns_mov_b64 exec, s[90:91]")
    A(f"global_load_dword v254, v[{TA_}:{TA_+1}], off")
    A(f"v_add_co_u32 v{TA_}, vcc, v238, v{TA_}\nv_addc_co_u32 v{TA_+1}, vcc, 0, v{TA_+1}, vcc")
    A("s_mov_b64 exec, s[88:89]")

def ptouch_skip(A):
    A(f"v_add_co_u32 v{TA_}, vcc, v238, v{TA_}\nv_addc_co_u32 v{TA_+1}, vcc, 0, v{TA_+1}, vcc")

def touch_wsp(A):
    A(f"s_lshl_b32 s26, s{RB64}, 18\ns_lshl_b32 s27, s{CB}, 15\ns_add_u32 s26, s26, s27\ns_lshl_b32 s27, s3, 13\ns_add_u32 s26, s26, s27")
    make_srd(A, 28, P_WSP, 0, 2048 * 4096)
    A("v_lshlrev_b32 v240, 7, v0\nbuffer_load_dword v254, v240, s[28:31], s26 offen")

def touch_wsp_l2(A):
    A(f"s_lshl_b32 s24, s{RB64}, 18\ns_and_b32 s25, s{CB}, 3\ns_lshl_b32 s25, s25, 16\ns_add_u32 s24, s24, s25")
    make_srd(A, 92, P_WSP, 0, 2048 * 4096)
    A("s_sub_u32 s25, s3, 4\ns_lshl_b32 s25, s25, 7\nv_add_u32 v230, s25, v0")
    for j in range(2):
        A(f"v_add_u32 v231, {64*j}, v230\nv_and_b32 v232, 15, v231\nv_lshrrev_b32 v231, 4, v231\nv_lshlrev_b32 v231, 7, v231\nv_lshl_add_u32 v231, v232, 12, v231")
        A(f"buffer_load_dword v{233+j}, v231, s[92:95], s24 offen")

def touch_z(A, sc):
    A(f"s_mul_i32 s24, s5, 393216")
    make_srd(A, 92, P_WS, ZN_OFF, 393216, off_sgpr=24)
    A("s_and_b32 s24, s4, 7\ns_mul_i32 s24, s24, 768")
    A("s_sub_u32 s25, s3, 4\ns_lshl_b32 s25, s25, 6\nv_add_u32 v24, s25, v0")
    for j in range(2):
        A(f"v_add_u32 v25, {256*j}, v24")
        udiv_small(A, 25, 26, 27, 12, 25, 512)
        udiv_small(A, 27, 28, 29, 6, 25, 12)
        A("v_lshl_add_u32 v26, v28, 5, v26\ns_movk_i32 s25, 6144\nv_mul_u32_u24 v26, s25, v26\nv_lshl_add_u32 v26, v29, 7, v26")
        if j == 1: A("v_cmp_gt_u32 vcc, 384, v25\nv_cndmask_b32 v26, -1, v26, vcc")
        A(f"buffer_load_dword v{30+j}, v26, s[92:95], s24 offen {sc}")

def touch_wp(A, sc):
    A(f"s_mul_i32 s24, s5, {WP_CB}")
    make_srd(A, 92, P_WS, WP_OFF, WP_CB, off_sgpr=24)
    A("s_sub_u32 s25, s3, 4\ns_lshl_b32 s25, s25, 6\nv_add_u32 v230, s25, v0\nv_lshlrev_b32 v231, 3, v230\ns_and_b32 s24, s4, 7\nv_add_u32 v231, s24, v231\nv_lshlrev_b32 v231, 7, v231")
    A(f"buffer_load_dword v238, v231, s[92:95], 0 offen {sc}")

def touch_a3(A, sc, blk0, nblk):
    total = 4 * nblk * 8
    A(f"s_mul_i32 s24, s4, {4*44*1024}")
    make_srd(A, 92, P_WS, A3_OFF, 4 * 44 * 1024, off_sgpr=24)
    A("s_and_b32 s24, s5, 3")
    n = -(-total // 4 // 64)
    for j in range(n):
        A(f"v_add_u32 v230, {64*j}, v0\nv_lshlrev_b32 v230, 2, v230\nv_add_u32 v230, s24, v230")
        A(f"v_lshrrev_b32 v231, 5, v230\nv_bfe_u32 v232, v230, 3, 2\nv_and_b32 v233, 7, v230\nv_mul_u32_u24 v232, 44, v232\nv_add3_u32 v231, v231, v232, {blk0}\nv_lshlrev_b32 v231, 10, v231\nv_lshl_add_u32 v231, v233, 7, v231")
        A(f"v_cmp_gt_u32 vcc, {total}, v230\nv_cndmask_b32 v231, -1, v231, vcc")
        A(f"buffer_load_dword v{239+j}, v231, s[92:95], 0 offen {sc}")

def poison_h(A):
    A(f"s_lshl_b32 s26, s{RB64}, 2\ns_add_u32 s26, s26, s3\ns_sub_u32 s26, s26, 4\ns_mul_i32 s26, s26, 44\ns_mul_i32 s25, s{CB}, 3\ns_add_u32 s26, s26, s25\ns_add_u32 s26, s26, 20\ns_lshl_b32 s26, s26, 10")
    make_srd(A, 28, P_WS, A3_OFF, A3_SIZE)
    A("v_mov_b32 v20, -1\nv_mov_b32 v21, -1\nv_mov_b32 v22, -1\nv_mov_b32 v23, -1\nv_lshlrev_b32 v19, 4, v0")
    for j in range(3): A(f"buffer_store_dwordx4 v[20:23], v19, s[28:31], s26 offen offset:{j*1024} sc1")

def poison_z(A):
    A(f"s_mul_i32 s26, s5, 393216\ns_lshl_b32 s25, s4, 2\ns_sub_u32 s24, s3, 6\ns_lshl_b32 s24, s24, 1\ns_add_u32 s25, s25, s24\ns_mul_i32 s25, s25, 6144\ns_add_u32 s26, s26, s25")
    make_srd(A, 28, P_WS, ZN_OFF, 8 * 393216)
    A("v_mov_b32 v44, -1\nv_mov_b32 v45, -1\nv_mov_b32 v46, -1\nv_mov_b32 v47, -1\nv_lshlrev_b32 v43, 4, v0")
    for q in range(3):
        for j in range(4): A(f"buffer_store_dwordx4 v[44:47], v43, s[28:31], s26 offen offset:{j*1024} sc1")
        A("s_add_u32 s26, s26, 4096")

NV = [243]
def early_w(A, Q):
    p2.park_setup(A, RB64)
    A("s_sub_u32 s25, s3, 4\ns_lshl_b32 s25, s25, 11")
    for blk in (0, 4):
        slot = p2.W_SLOT_OF[blk]
        p2.blk_off(A, 26, blk)
        for part in range(4):
            for e in range(2):
                A(f"s_add_u32 m0, s25, {slot * p2.W_SLOT + (16 * part + 2 * e) * 512}\ns_add_u32 s24, s26, {part * 16 * 4096}")
                A(f"buffer_load_dwordx4 v{p2.PARK_VO+e}, s[40:43], s24 offen lds")
    Q.issue(("ew", 0), 16)

def nonce_issue(A):
    make_srd(A, 28, P_DBG, 0, 256)
    A(f"v_mov_b32 v{NV[0]}, 0\nbuffer_load_dword v{NV[0]+1}, v{NV[0]}, s[28:31], 0 offen sc1")

def nonce_take(A):
    ok = A.newlabel("Lnok")
    A(f"s_waitcnt vmcnt(0)\nv_readfirstlane_b32 s{NONCE}, v{NV[0]+1}\ns_cmp_lg_u32 s{NONCE}, 0\ns_cbranch_scc1 {ok}")
    get_nonce(A, NONCE)
    A.label(ok)

def code_prefetch(A, nbytes):
    lines = -(-nbytes // 128)
    per = -(-lines // 32)
    assert per <= 64
    pc = A.newlabel("Lpc")
    A("s_getpc_b64 s[16:17]")
    A.label(pc)
    A(f"s_sub_u32 s16, s16, {pc}-{NAME}_kernel\ns_subb_u32 s17, s17, 0")
    A(f"s_lshr_b32 s18, s2, 3\ns_mul_i32 s18, s18, {per*128}\nv_lshlrev_b32 v240, 7, v0\nv_add_u32 v240, s18, v240")
    A(f"v_cmp_gt_u32 vcc, {per}, v0\ns_and_saveexec_b64 s[18:19], vcc")
    A(f"v_min_u32 v240, {nbytes - 4}, v240\nglobal_load_dword v255, v240, s[16:17]\ns_mov_b64 exec, s[18:19]")

DBGT = "dbgt" in sys.argv
def dbg_time(A, idx, neg=False):
    if not DBGT or neg: return
    l = A.newlabel("Ldt")
    A(f"s_cmp_lg_u32 s3, 0\ns_cbranch_scc1 {l}\ns_and_b32 s32, s2, 0xfffffffb\ns_cmp_lg_u32 s32, 0\ns_cbranch_scc1 {l}")
    make_srd(A, 28, P_DBG, 0, 256)
    A(f"s_mul_i32 s34, s2, 7\ns_add_u32 s34, s34, {idx*4}")
    A("s_memrealtime s[32:33]\ns_waitcnt lgkmcnt(0)")
    A(f"s_mov_b64 vcc, exec\ns_mov_b64 exec, 1\nv_mov_b32 v252, 0\nv_mov_b32 v253, s32\nbuffer_store_dword v253, v252, s[28:31], s34 offen\ns_mov_b64 exec, vcc")
    A.label(l)

def gen(opts):
    A = Asm()
    kstart = A.newlabel("Lkstart")
    end = prologue(A, codepf=opts.get('codepf', 0) if opts.get('earlycode', True) else 0, kname=NAME + '_kernel')
    stamp(A, 0); stamp(A, 5, cyc=True)
    dbg_time(A, 1)
    p2.wg_map_p23(A)
    A(f"s_mov_b32 s{RB64}, s4\ns_mov_b32 s{CB}, s5")
    wg_map_p1(A)
    p1.rot_setup(A)
    p2.rot2_setup(A, ('rot2' in sys.argv) and not opts.get('park', True))
    def T0():
        pass
    def preb0(A):
        if opts.get("touch") == "bulk" and opts.get("half"): touch_half(A, 0); return
        if opts.get("touch") == "bulk" and opts.get("latetouch"): touch_bulk(A, 2 if opts.get("split") else 3)
    PK = opts.get("park", True)
    def park_each_q(A, Q, u):
        if not PK: return
        if u == 7: p2.park_setup(A, RB64)
        if u >= 8:
            for j in range(2): p2.park_load(A, 2 * (u - 8) + j)
            Q.issue(("pk", u), 2)
    def park_tail(n0):
        if not PK: return
        for i in range(n0, 40): p2.park_load(A, i)
    def park_each_z(A, Q, st):
        if not PK: return
        if st == 5: p2.park_setup(A, RB64)
        if st >= 6:
            lo = 3 * (st - 6); hi = min(40, lo + 3)
            for i in range(lo, hi): p2.park_load(A, i)
            if hi > lo: Q.issue(("pk", st), hi - lo)
    def iter_hook(A):
        if opts.get("touch") == "bulk" and opts.get("half"):
            l = A.newlabel("Lsp"); A(f"s_cmp_lg_u32 s24, 1\ns_cbranch_scc1 {l}"); touch_half(A, 1); A.label(l)
            return
        if opts.get("touch") == "bulk" and opts.get("split"):
            l = A.newlabel("Lsp"); A(f"s_cmp_lg_u32 s24, 0\ns_cbranch_scc1 {l}"); touch_bulk(A, 1); A.label(l)
        if opts.get("touch") != "paced": return
        l = A.newlabel("Lit")
        A(f"s_cmp_lg_u32 s3, 0\ns_cbranch_scc1 {l}\ns_cmp_ge_u32 s24, {9 - PLEAD}\ns_cbranch_scc1 {l}")
        ptouch(A)
        A.label(l)
    def mid_hook(A):
        if opts.get("touch", True): touch_wsp(A)
        nonce_issue(A)
    P1EXIT = A.newlabel("Lp1exit")
    P2 = A.newlabel("LP2")
    zrole_l = A.newlabel("Lz_role")
    SC = "sc1"
    notc = A.newlabel("Lnotc")
    A(f"s_cmp_ge_u32 s3, 4\ns_cbranch_scc1 {notc}")
    pub = A.newlabel("Lpub")
    A(f"s_lshl_b32 s16, s2, 3\ns_add_u32 s16, s16, s3\ns_cmp_lg_u32 s16, 3\ns_cbranch_scc1 {pub}")
    publish_nonce(A)
    A.label(pub)
    if opts.get("touch") == "bulk" and not opts.get("latetouch"): touch_bulk(A)
    if opts.get("touch") == "paced":
        w0 = A.newlabel("Lw0")
        A(f"v_mov_b32 v{TA_}, s{P_AX}\nv_mov_b32 v{TA_+1}, s{P_AX+1}\nv_mov_b32 v238, 0\ns_mov_b64 s[90:91], 1")
        A(f"s_cmp_lg_u32 s3, 0\ns_cbranch_scc1 {w0}")
        ptouch_setup(A)
        ptouch_skip(A)
        for _ in range(PLEAD): ptouch(A)
        A.label(w0)
    w3 = A.newlabel("Lw3")
    A(f"s_cmp_lg_u32 s3, 3\ns_cbranch_scc1 {w3}")
    if opts.get("codepf", 0) and not opts.get("earlycode", True): code_prefetch(A, opts["codepf"])
    A.label(w3)
    A.label(notc)
    A(f"s_cmp_eq_u32 s6, 1\ns_cbranch_scc1 {zrole_l}")
    lw = A.newlabel("Lq_w"); lx = A.newlabel("Lq_x"); att = A.newlabel("Lq_att"); ldj = A.newlabel("Lq_ldj")
    A(f"s_cmp_eq_u32 s3, 7\ns_cbranch_scc1 {lx}\ns_cmp_ge_u32 s3, 4\ns_cbranch_scc1 {lw}")
    qkv_consumer(A)
    wg3 = A.newlabel("Lq_c3")
    A(f"s_cmp_eq_u32 s3, 3\ns_cbranch_scc1 {wg3}")
    for gate in (False, True):
        if gate: A.label(wg3)
        qkv_main(A, gate, mid=mid_hook, it_hook=iter_hook, b0hook=lambda A: dbg_time(A, 2), preb0=preb0)
        dbg_time(A, 3)
        stamp(A, 3)
        nonce_take(A)
        qkv_epilogue_store(A, gate)
        A(f"s_waitcnt lgkmcnt(0)\ns_barrier\ns_branch {att}")
    A.label(lw)
    TV[0] = 12; NV[0] = 14
    w_loader(A, QKV, late=nonce_issue, pre=T0, early=lambda: pack_issue(A), each=park_each_q)
    nonce_take(A)
    pack_finish(A, SC, lazy=True)
    A(f"s_branch {ldj}")
    A.label(lx)
    A("s_mov_b32 s27, 999")
    x_loader(A, QKV, late=nonce_issue, pre=T0, each=park_each_q)
    nonce_take(A)
    A.label(ldj)
    A("s_barrier")
    p2.p2l_setup(A, RB64)
    p2.p2l_issue(A, 0); p2.p2l_issue(A, 4)
    park_tail(24)
    TV[0] = 250; NV[0] = 243
    A.label(att)
    stamp(A, 7)
    attention(A, SC)
    A("s_barrier")
    A(f"s_lshl_b32 s16, s4, 7\ns_lshl_b32 s17, s5, 2\ns_add_u32 s16, s16, s17\ns_add_u32 s{LAZY}, s16, {OF_OFF}")
    A(f"s_branch {P2}")
    A.label(zrole_l)
    zld = A.newlabel("Lz_ld")
    A(f"s_cmp_ge_u32 s3, 4\ns_cbranch_scc1 {zld}")
    def between(A):
        zrole.z_epi_stats(A)
        A("s_barrier")
    zrole.z_consumer(A, mid=mid_hook, between=between, it_hook=iter_hook, b0hook=lambda A: dbg_time(A, 2), preb0=preb0)
    dbg_time(A, 3)
    stamp(A, 7)
    nonce_take(A)
    A("s_barrier")
    zrole.z_epi_norm(A, SC)
    A("s_barrier")
    zrole.z_epi_z1(A, SC)
    A(f"s_branch {P2}")
    A.label(zld)
    TV[0] = 12; NV[0] = 14
    pk = A.newlabel("Lzpk")
    A("s_mov_b32 s27, 999")
    def st4(A, Q):
        nonce_issue(A); Q.issue(("n", 0), 1)
    def after_z1(A, Q):
        n = Q.wait_for({("n", 0)})
        ok = A.newlabel("Lnok")
        A(f"s_waitcnt vmcnt({n})\nv_readfirstlane_b32 s{NONCE}, v{NV[0]+1}\ns_cmp_lg_u32 s{NONCE}, 0\ns_cbranch_scc1 {ok}")
        get_nonce(A, NONCE)
        A.label(ok)
        Q.retire(n)
        zrole.z_publish_stats(A, NONCE); Q.issue(("s", 0), 1)
        pack_finish(A, SC, lazy=True); Q.issue(("p", 0), 5)
    def pre_last(A, Q):
        zrole.z_gather_issue(A); Q.issue(("g", 0), 8)
    zrole.z_loader(A, late=None, hooks={"st4": st4, "after_z1": after_z1, "pre_last": pre_last, "st13": early_w, "each": park_each_z, "early": lambda A, Q: pack_issue(A)}, pre=T0, xhooks={"each": park_each_z, "st13": early_w, "st2": lambda A, Q: (poison_z(A), Q.issue(("pz", 0), 12))})
    xw = A.newlabel("Lzxw"); xj = A.newlabel("Lzxj")
    A(f"s_cmp_ge_u32 s3, 6\ns_cbranch_scc1 {xw}")
    zrole.z_gather_finish(A, NONCE, SPIN_MAX)
    A(f"s_branch {xj}")
    A.label(xw)
    nonce_issue(A); nonce_take(A)
    A.label(xj)
    A("s_barrier")
    A("s_barrier")
    A(f"s_lshl_b32 s16, s4, 5\ns_lshl_b32 s17, s5, 2\ns_add_u32 s16, s16, s17\ns_add_u32 s{LAZY}, s16, {Z1F_OFF}")
    TV[0] = 250; NV[0] = 243
    A.label(P2)
    dbg_time(A, 4)
    if not p1.FINE: stamp(A, 8)
    if opts.get("p1only"):
        A(f"s_waitcnt vmcnt(0)\ns_branch {P1EXIT}")
    A(f"s_mov_b32 s4, s{RB64}\ns_mov_b32 s5, s{CB}")
    if "small2" in sys.argv: A(f"s_and_b32 s4, s4, 1\ns_and_b32 s5, s5, 1\ns_and_b32 s{RB64}, s{RB64}, 1")
    ld2 = A.newlabel("Lp2ld"); fin = A.newlabel("Lfin")
    A(f"s_cmp_ge_u32 s3, 4\ns_cbranch_scc1 {ld2}")
    stamp(A, 9)
    p2.p2_consumer(A, sc_st=SC, sc_ld=opts.get('scld', SC), lazy_z1=True, last_hook=lambda: p3.p3_early(A, 4, opts.get('scld', SC)), last_n=10, poison=True)
    stamp(A, 10)
    dbg_time(A, 5)
    def hflag_c():
        A(f"s_lshl_b32 s26, s4, 7\ns_lshl_b32 s27, s5, 4\ns_add_u32 s26, s26, s27\ns_lshl_b32 s27, s3, 2\ns_add_u32 s26, s26, s27\ns_add_u32 s26, s26, {HF_OFF}")
        set_flag(A, 26)
    p3.p3_consumer(A, sc_ld=opts.get('scld', SC), drain0=True, early_done=True, poison=True)
    A("s_waitcnt vmcnt(0)")
    A(f"s_branch {fin}")
    A.label(ld2)
    TV[0] = 12; NV[0] = 14
    def pf_wait():
        A(f"s_lshl_b32 s21, s5, 8\ns_add_u32 s21, s21, {PF_OFF}")
        wait_flags(A, 21, 44)
    def only(wave, fn):
        l = A.newlabel("Lonly"); A(f"s_cmp_lg_u32 s3, {wave}\ns_cbranch_scc1 {l}"); fn(); A.label(l)
    def lazy(): set_flag(A, LAZY)
    T2 = opts.get("touch2", True)
    def z1off(): A(f"s_lshr_b32 s21, s4, 1\ns_lshl_b32 s21, s21, 5\ns_lshl_b32 s19, s5, 2\ns_add_u32 s21, s21, s19\ns_add_u32 s21, s21, {Z1F_OFF}")
    def ooff(): A(f"s_lshr_b32 s21, s4, 1\ns_lshl_b32 s21, s21, 7\ns_add_u32 s21, s21, {OF_OFF}")
    def hoff(): A(f"s_lshl_b32 s21, s4, 7\ns_add_u32 s21, s21, {HF_OFF}")
    def start2():
        pk = A.newlabel("Lpkf")
        A(f"s_cmp_ge_u32 s27, 352\ns_cbranch_scc1 {pk}")
        pack_flag(A)
        A.label(pk)
        if T2:
            touch_z(A, opts.get('sctouch', SC))
        poison_h(A)
    def post_b1():
        only(4, lazy)
    def post_b2():
        only(5, lambda: (z1off(), poll_issue(A, 21, 1, 16)))
        only(6, lambda: (ooff(), poll_issue(A, 21, 8, 16)))
        A(f"s_lshl_b32 s21, s5, 8\ns_add_u32 s21, s21, {PF_OFF}")
        poll_issue(A, 21, 44, 17)
    def pre_b3():
        A("s_waitcnt vmcnt(0)")
        only(5, lambda: (z1off(), poll_check(A, 21, 1, 16)))
        only(6, lambda: (ooff(), poll_check(A, 21, 8, 16)))
        A(f"s_lshl_b32 s21, s5, 8\ns_add_u32 s21, s21, {PF_OFF}")
        poll_check(A, 21, 44, 17)
    def hflag():
        A(f"s_lshl_b32 s21, s4, 7\ns_lshl_b32 s19, s5, 2\ns_add_u32 s21, s21, s19\ns_add_u32 s21, s21, {HF_OFF}")
        set_flag(A, 21)
    hooks = {"park": PK, "start": start2, "post_b1": post_b1, "post_b2": post_b2, "before_b3": pre_b3}
    hooks3 = {}
    p2.p2_loader_rest(A, RB64, opts.get('scld', SC), hooks, hooks3)
    A.label(fin)
    A.label(P1EXIT)
    dbg_time(A, 6)
    stamp(A, 4); stamp(A, 6, cyc=True)
    dump_stamps(A, 14)
    A.label(end)
    A("s_endpgm")
    txt = A.text(verbose=True)
    return txt.replace("SC_ST", SC)

def pack_flag_factory(A):
    pass

def pack_flag(A):
    A(f"s_and_b32 s16, s27, 7\ns_lshl_b32 s16, s16, 8\ns_lshr_b32 s17, s27, 3\ns_lshl_b32 s17, s17, 2\ns_add_u32 s16, s16, s17\ns_add_u32 s16, s16, {PF_OFF}")
    set_flag(A, 16)

if __name__ == "__main__":
    common.set_profile("prof" in sys.argv)
    opts = {"touch": (False if "notouch" in sys.argv else "paced" if "paced" in sys.argv else "bulk" if "bulk" in sys.argv else "none1"), "p1only": "p1only" in sys.argv, "touch2": "touch2" in sys.argv, "park": "park" in sys.argv}
    if "plainld" in sys.argv: opts["scld"] = ""
    opts["delay2"] = "delay2" in sys.argv
    opts["earlycode"] = "earlycode" in sys.argv
    opts["half"] = "half" in sys.argv
    opts["split"] = "split" in sys.argv
    opts["latetouch"] = "earlytouch" not in sys.argv
    if "plaintouch" in sys.argv: opts["sctouch"] = ""
    body = gen(opts)
    if "nocodepf" not in sys.argv:
        import subprocess
        tmp = build_file([(NAME + "_kernel", body, 256, 102, 256)], [(NAME + "_kernel", 256, 512, LDS_MAX)])
        open("_tmp.s", "w").write(tmp)
        subprocess.run(["clang", "-x", "assembler", "-target", "amdgcn-amd-amdhsa", "-mcpu=gfx950", "-c", "_tmp.s", "-o", "_tmp.o"], check=True)
        out = subprocess.run(["llvm-readelf", "-S", "_tmp.o"], capture_output=True, text=True).stdout
        size = [int(l.split("PROGBITS")[1].split()[2], 16) for l in out.splitlines() if ".text" in l][0]
        opts["codepf"] = size - 256
        body = gen(opts)
        print("code bytes", size)
    txt = build_file([(NAME + "_kernel", body, 256, 102, 256)], [(NAME + "_kernel", 256, 512, LDS_MAX)])
    open(sys.argv[1], "w").write(txt)
```

```python
from common import *

W_SLOT = 32768; NWS = 5
WIN = int([a for a in sys.argv if a.startswith('win=')][0][4:]) if any(a.startswith('win=') for a in sys.argv) else 0
S_R0, S_Q0 = 100, 101
def rot2_setup(A, on):
    if not on:
        A(f's_mov_b32 s{S_R0}, 0\ns_mov_b32 s{S_Q0}, 0'); return
    A(f's_lshr_b32 s16, s2, 5\ns_and_b32 s{S_Q0}, s16, 7\ns_mov_b32 s{S_R0}, 0')


def wg_map_p23(A):
    A("""
    s_and_b32 s6, s2, 7
    s_lshr_b32 s7, s2, 3
    s_lshr_b32 s4, s6, 1
    s_lshl_b32 s4, s4, 3
    s_lshr_b32 s5, s7, 2
    s_add_u32 s4, s4, s5
    s_and_b32 s5, s6, 1
    s_lshl_b32 s5, s5, 2
    s_and_b32 s7, s7, 3
    s_add_u32 s5, s5, s7
    """)

W_ORDER = [0, 4, 1, 5, 2, 6, 3, 7]
W_SLOT_OF = {0: 3, 4: 4, 1: 0, 5: 1, 2: 2, 6: 3, 3: 4, 7: 0}

def p2l_setup(A, rb):
    A(f"s_sub_u32 s16, s{S_WAVE}, 4")
    A(f"s_lshl_b32 s17, s{rb}, 18")
    make_srd(A, 8, P_WSP, 0, 262144, off_sgpr=17)
    A(f"""
    v_lshrrev_b32 v4, 5, v0
    s_lshl_b32 s17, s16, 2
    v_add_u32 v4, s17, v4
    v_and_b32 v5, 31, v0
    v_xor_b32 v6, v5, v4
    v_lshlrev_b32 v6, 4, v6
    v_lshl_add_u32 v2, v4, 12, v6
    v_add_u32 v4, 2, v4
    v_xor_b32 v6, v5, v4
    v_lshlrev_b32 v6, 4, v6
    v_lshl_add_u32 v3, v4, 12, v6
    s_lshl_b32 s18, s16, 11
    """)

def blk_off(A, dst, blk):
    A(f"s_add_u32 s{dst}, s{S_R0}, {blk & 3}\ns_and_b32 s{dst}, s{dst}, 3\ns_lshl_b32 s{dst}, s{dst}, 9")
    if blk >= 4: A(f"s_add_u32 s{dst}, s{dst}, 2048")

def p2l_issue(A, blk, Q=None):
    slot = W_SLOT_OF[blk]
    blk_off(A, 19, blk)
    for part in range(4):
        for e in range(2):
            A(f"s_add_u32 m0, s18, {slot * W_SLOT + (16 * part + 2 * e) * 512}")
            A(f"s_add_u32 s20, s19, {part * 16 * 4096}")
            if WIN and Q is not None: A(f"s_waitcnt vmcnt({WIN-1})")
            A(f"buffer_load_dwordx4 v{2+e}, s[8:11], s20 offen {'nt' if 'wnt' in sys.argv else ''} lds")
    if Q is not None: Q.issue(("w", blk), 8)

PARK_BLOCKS = [1, 5, 2] if 'park3' in sys.argv else [1, 5, 2, 6, 3]
PARK0 = 96
PARK_VO = 92
def park_setup(A, rb):
    A(f"s_lshl_b32 s24, s{rb}, 18")
    make_srd(A, 40, P_WSP, 0, 262144, off_sgpr=24)
    A(f"""
    v_lshrrev_b32 v90, 5, v0
    s_sub_u32 s24, s3, 4
    s_lshl_b32 s24, s24, 2
    v_add_u32 v90, s24, v90
    v_and_b32 v91, 31, v0
    v_xor_b32 v{PARK_VO}, v91, v90
    v_lshlrev_b32 v{PARK_VO}, 4, v{PARK_VO}
    v_lshl_add_u32 v{PARK_VO}, v90, 12, v{PARK_VO}
    v_add_u32 v90, 2, v90
    v_xor_b32 v{PARK_VO+1}, v91, v90
    v_lshlrev_b32 v{PARK_VO+1}, 4, v{PARK_VO+1}
    v_lshl_add_u32 v{PARK_VO+1}, v90, 12, v{PARK_VO+1}
    """)

def park_load(A, i):
    blk = PARK_BLOCKS[i // 8]; part, e = (i % 8) // 2, i % 2
    d = PARK0 + 4 * i
    A(f"s_mov_b32 s24, {blk * 512 + part * 16 * 4096}")
    A(f"buffer_load_dwordx4 v[{d}:{d+3}], v{PARK_VO+e}, s[40:43], s24 offen")

def park_store(A, blk):
    bi = PARK_BLOCKS.index(blk); slot = W_SLOT_OF[blk]
    A(f"v_lshlrev_b32 v94, 4, v0\nv_add_u32 v94, s18, v94\nv_add_u32 v94, {slot * W_SLOT}, v94")
    for j in range(8):
        part, e = j // 2, j % 2
        d = PARK0 + 4 * (bi * 8 + j)
        A(f"ds_write_b128 v94, v[{d}:{d+3}] offset:{(16 * part + 2 * e) * 512}")

def p2_loader(A):
    p2l_setup(A, 4)
    p2l_issue(A, 0); p2l_issue(A, 4)
    Q = VmQueue(); Q.issue(("w", 0), 8); Q.issue(("w", 4), 8)
    p2l_main(A, Q)
    A("s_barrier")

def p2l_main(A, Q, hooks=None):
    hooks = hooks or {}
    H = lambda k: hooks[k]() if k in hooks else None
    def wait_blocks(bl):
        if not any(t in Q.q for t in {("w", b) for b in bl}): return
        n = Q.wait_for({("w", b) for b in bl})
        A(f"s_waitcnt vmcnt({n})"); Q.retire(n)
    park = hooks.get("park", False)
    H("start")
    if park:
        for b in (1, 5, 2): park_store(A, b)
    A("s_waitcnt vmcnt(3)")
    stamp(A, 1, f2=True); A("s_barrier"); stamp(A, 2, f2=True)
    if not park: p2l_issue(A, 1, Q); p2l_issue(A, 5, Q); p2l_issue(A, 2, Q)
    stamp(A, 10, f2=True)
    if park: A("s_waitcnt lgkmcnt(0)")
    wait_blocks([1, 5]); stamp(A, 3, f2=True); A("s_barrier"); stamp(A, 4, f2=True)
    H("post_b1")
    if park and 6 in PARK_BLOCKS:
        park_store(A, 6); park_store(A, 3); A("s_waitcnt lgkmcnt(0)")
    else:
        p2l_issue(A, 6, Q); p2l_issue(A, 3, Q)
    stamp(A, 11, f2=True)
    wait_blocks([2, 6]); stamp(A, 12, f2=True); H("before_b2"); stamp(A, 5, f2=True); A("s_barrier"); stamp(A, 6, f2=True)
    H("post_b2")
    p2l_issue(A, 7, Q)
    wait_blocks([3, 7]); stamp(A, 13, f2=True); H("before_b3"); stamp(A, 7, f2=True); A("s_barrier"); stamp(A, 8, f2=True)

def p2_loader_rest(A, rb, sc, hooks=None, hooks3=None):
    import p3
    hooks = hooks or {}
    A("s_waitcnt vmcnt(0)")
    p2l_setup(A, rb)
    Q = VmQueue()
    p2l_main(A, Q, hooks)
    p3.p3l_setup(A)
    Q3 = VmQueue()
    for st in range(3): p3.p3l_issue(A, st, Q3, sc)
    A("s_barrier")
    p3.p3l_main(A, Q3, 3, sc, hooks3)
    A("s_barrier")

def p2_consumer(A, sc_st="", sc_ld="", lazy_z1=False, last_hook=None, last_n=0, poison=False):
    ACC = 8
    ZR = 56
    WF = [152, 168]
    VWL = 184
    VWB = 185
    VWA = [186, 187]
    VZ = 188
    Z1 = 192
    VB = 204
    T = 100
    A("s_lshr_b32 s16, s3, 1\ns_and_b32 s17, s3, 1")
    A(f"s_mul_i32 s18, s5, 393216")
    make_srd(A, 8, P_WS, ZN_OFF, 393216, off_sgpr=18)
    A(f"s_mul_i32 s32, s16, {32*6144}\ns_mul_i32 s18, s17, 3072\ns_add_u32 s32, s32, s18")
    A(f"v_lshlrev_b32 v{VZ}, 4, v0")
    CP, NP = 46, 52
    def round_base(dp, n_sgpr=None, n=None):
        if n is not None: A(f"s_add_u32 s{dp}, s{S_R0}, {n}")
        else: A(f"s_add_u32 s{dp}, s{S_R0}, s{n_sgpr}")
        A(f"s_and_b32 s{dp}, s{dp}, 3\ns_mul_i32 s{dp}, s{dp}, 49152\ns_add_u32 s{dp}, s{dp}, s32")
    def zoff(q, nxt, dst=19):
        A(f"s_add_u32 s33, s{S_Q0}, {q}\ns_and_b32 s33, s33, 7\ns_mul_i32 s33, s33, 6144\ns_add_u32 s{dst}, s33, s{NP if nxt else CP}")
    def zload(q, nxt=False):
        zoff(q, nxt)
        for t in range(3):
            d = ZR + 12 * q + 4 * t
            A(f"buffer_load_dwordx4 v[{d}:{d+3}], v{VZ}, s[8:11], s19 offen offset:{t*1024} {sc_ld}")
    round_base(CP, n=0)
    def z1_loads():
        A(f"s_lshl_b32 s26, s4, 3\ns_add_u32 s26, s26, s5\ns_lshl_b32 s26, s26, 2\ns_lshl_b32 s27, s17, 1\ns_add_u32 s26, s26, s27\ns_add_u32 s26, s26, s16\ns_mul_i32 s26, s26, 3072")
        make_srd(A, 12, P_WS, Z1_OFF, 3072, off_sgpr=26)
        for u in range(3):
            A(f"buffer_load_dwordx4 v[{Z1+4*u}:{Z1+4*u+3}], v{VZ}, s[12:15], 0 offen offset:{u*1024} {sc_ld}")
        A(f"s_lshl_b32 s26, s4, 7\ns_lshl_b32 s27, s16, 6\ns_add_u32 s26, s26, s27")
        make_srd(A, 28, P_BSP, 0, 64, off_sgpr=26)
        A(f"v_and_b32 v1, 15, v0\nv_lshlrev_b32 v2, 1, v1")
        A(f"buffer_load_ushort v{VB}, v2, s[28:31], 0 offen")
        A(f"buffer_load_ushort v{VB+1}, v2, s[28:31], 0 offen offset:32")

    if not lazy_z1: z1_loads()
    for q in range(3): zload(q)
    A(f"""
    v_and_b32 v1, 15, v0
    v_lshrrev_b32 v3, 4, v0
    v_xor_b32 v3, v3, v1
    v_lshlrev_b32 v3, 4, v3
    v_lshl_add_u32 v{VWL}, v1, 9, v3
    """)
    for i in range(48): A(f"v_mov_b32 v{ACC+i}, 0")
    def wreads(buf, q):
        a = VWA[buf]
        A(f"s_add_u32 s47, s{S_Q0}, {q}\ns_and_b32 s47, s47, 7\ns_lshl_b32 s47, s47, 6\nv_xor_b32 v{a}, s47, v{VWB}")
        for tt in range(4):
            d = WF[buf] + 4 * tt
            A(f"ds_read_b128 v[{d}:{d+3}], v{a} offset:{tt*8192}")
    def mfmas(buf, q):
        if "nomfma" in sys.argv: return
        for t in range(3):
            z = ZR + 12 * q + 4 * t
            for tt in range(4):
                d = ACC + (t * 4 + tt) * 4
                w = WF[buf] + 4 * tt
                A(f"v_mfma_f32_16x16x32_bf16 v[{d}:{d+3}], v[{z}:{z+3}], v[{w}:{w+3}], v[{d}:{d+3}]")
    A(f"s_cmp_eq_u32 s16, 0")
    sl0 = [W_SLOT_OF[n] for n in range(4)]; sl1 = [W_SLOT_OF[4 + n] for n in range(4)]
    for n in range(4): A(f"s_cselect_b32 s{20+n}, {sl0[n]}, {sl1[n]}")
    for n in range(4): A(f"s_lshl_b32 s{20+n}, s{20+n}, 15")
    A("s_mov_b32 s24, 0")
    loop = A.newlabel("Lp2")
    def st2(base):
        import common
        if not (common.FINE2 and common.PROFILE): return
        for n in range(4):
            l = A.newlabel("Lf2"); A(f"s_cmp_lg_u32 s24, {n}\ns_cbranch_scc1 {l}"); stamp(A, base + 2 * n, f2=True); A.label(l)
    def check_z(q, last):
        z = ZR + 12 * q
        ok = A.newlabel("Lzok"); rl = A.newlabel("Lzrl")
        def test():
            A(f"v_max3_u32 v2, v{z}, v{z+2}, v{z+4}\nv_max3_u32 v3, v{z+6}, v{z+8}, v{z+10}\nv_max_u32 v2, v2, v3\nv_cmp_eq_u32 vcc, -1, v2\ns_cmp_eq_u64 vcc, 0")
        test()
        A(f"s_cbranch_scc1 {ok}")
        A(f"s_mov_b32 s35, 0")
        A.label(rl)
        zoff(q, False, 34)
        for t in range(3):
            A(f"buffer_load_dwordx4 v[{z+4*t}:{z+4*t+3}], v{VZ}, s[8:11], s34 offen offset:{t*1024} {sc_ld}")
        A("s_waitcnt vmcnt(0)")
        test()
        A(f"s_cbranch_scc1 {ok}\ns_add_u32 s35, s35, 1\ns_cmp_gt_u32 s35, s99\ns_cbranch_scc0 {rl}\ns_mov_b32 s99, 0")
        A.label(ok)
    def round_(last):
        A(f"v_add_u32 v{VWB}, s20, v{VWL}")
        if not last:
            A("s_add_u32 s35, s24, 1"); round_base(NP, n_sgpr=35)
        st2(1)
        A("s_barrier")
        st2(2)
        if not last:
            fl = A.newlabel("Lzf"); A(f"s_cmp_lg_u32 s24, 0\ns_cbranch_scc1 {fl}")
            for q in range(3, 8): zload(q)
            A.label(fl)
        if last and lazy_z1: z1_loads()
        if last and last_hook: last_hook()
        wreads(0, 0)
        for q in range(8):
            if not last: vm = 21
            else: vm = 3 * (7 - q) + (5 if lazy_z1 else 0) + last_n
            A(f"s_waitcnt vmcnt({vm}) lgkmcnt(0)")
            if poison: check_z(q, last)
            buf = q & 1
            nb = buf ^ 1
            if q < 7: A(f"s_add_u32 s47, s{S_Q0}, {q+1}\ns_and_b32 s47, s47, 7\ns_lshl_b32 s47, s47, 6\nv_xor_b32 v{VWA[nb]}, s47, v{VWB}")
            if not last: zoff(q, True)
            for t in range(3):
                z = ZR + 12 * q + 4 * t
                for tt in range(4):
                    d = ACC + (t * 4 + tt) * 4
                    w = WF[buf] + 4 * tt
                    if not ("nomfma" in sys.argv):
                        A(f"v_mfma_f32_16x16x32_bf16 v[{d}:{d+3}], v[{z}:{z+3}], v[{w}:{w+3}], v[{d}:{d+3}]")
                    if t == 0 and q < 7:
                        dn = WF[nb] + 4 * tt
                        A(f"ds_read_b128 v[{dn}:{dn+3}], v{VWA[nb]} offset:{tt*8192}")
                    if tt == 3 and not last:
                        A(f"buffer_load_dwordx4 v[{z}:{z+3}], v{VZ}, s[8:11], s19 offen offset:{t*1024} {sc_ld}")
    A.label(loop)
    round_(False)
    A(f"s_mov_b32 s20, s21\ns_mov_b32 s21, s22\ns_mov_b32 s22, s23\ns_mov_b32 s{CP}, s{NP}")
    A("s_add_u32 s24, s24, 1\ns_cmp_lt_u32 s24, 3")
    A(f"s_cbranch_scc1 {loop}")
    round_(True)
    stamp(A, 13); stamp(A, 9, f2=True); stamp(A, 13, f3=True)
    RED = 98304
    A(f"s_mul_i32 s18, s3, 6144\ns_add_u32 s18, s18, {RED}")
    A(f"v_add_u32 v3, s18, v{VZ}")
    A(f"s_xor_b32 s25, s3, 2\ns_mul_i32 s25, s25, 6144\ns_add_u32 s25, s25, {RED}")
    A(f"v_add_u32 v4, s25, v{VZ}")
    snd = A.newlabel("Lsnd1"); snd_e = A.newlabel("Lsnde")
    A(f"s_cmp_eq_u32 s16, 0\ns_cbranch_scc0 {snd}")
    for t in range(3):
        for j in range(2):
            d = ACC + (t * 4 + 2 + j) * 4
            A(f"ds_write_b128 v3, v[{d}:{d+3}] offset:{(t*2+j)*1024}")
    A(f"s_branch {snd_e}")
    A.label(snd)
    for t in range(3):
        for j in range(2):
            d = ACC + (t * 4 + j) * 4
            A(f"ds_write_b128 v3, v[{d}:{d+3}] offset:{(t*2+j)*1024}")
            d2 = ACC + (t * 4 + 2 + j) * 4
    for t in range(3):
        for j in range(2):
            d = ACC + (t * 4 + j) * 4; d2 = ACC + (t * 4 + 2 + j) * 4
            for r in range(4): A(f"v_mov_b32 v{d+r}, v{d2+r}")
    A.label(snd_e)
    A("s_waitcnt lgkmcnt(0)\ns_barrier")
    RB = ZR
    for t in range(3):
        for j in range(2):
            d = RB + (t * 2 + j) * 4
            A(f"ds_read_b128 v[{d}:{d+3}], v4 offset:{(t*2+j)*1024}")
    A("s_waitcnt vmcnt(0) lgkmcnt(0)")
    A(f"v_lshlrev_b32 v{VB}, 16, v{VB}\nv_lshlrev_b32 v{VB+1}, 16, v{VB+1}")
    A(f"s_mul_i32 s18, s4, {4*44*1024}")
    make_srd(A, 8, P_WS, A3_OFF, 4*44*1024, off_sgpr=18)
    A(f"s_mul_i32 s18, s16, {2*44*1024}\ns_mul_i32 s19, s5, 3072\ns_add_u32 s18, s18, s19\ns_add_u32 s18, s18, {20*1024}")
    HO = T + 4
    for t in range(3):
        for j in range(2):
            d = ACC + (t * 4 + j) * 4
            p = RB + (t * 2 + j) * 4
            z = Z1 + 4 * t + 2 * j
            for r in range(4): A(f"v_add_f32 v{d+r}, v{d+r}, v{p+r}")
            for r in range(4): A(f"v_add_f32 v{d+r}, v{d+r}, v{VB+j}")
            A(f"v_lshlrev_b32 v{T}, 16, v{z}\nv_and_b32 v{T+1}, 0xffff0000, v{z}\nv_lshlrev_b32 v{T+2}, 16, v{z+1}\nv_and_b32 v{T+3}, 0xffff0000, v{z+1}")
            for r in range(4): A(f"v_mul_f32 v{d+r}, v{d+r}, v{T+r}")
            o = HO + j * 6 + t * 2
            A(f"v_cvt_pk_bf16_f32 v{o}, v{d}, v{d+1}\nv_cvt_pk_bf16_f32 v{o+1}, v{d+2}, v{d+3}")
    f1 = A.newlabel("Lh1"); fe = A.newlabel("Lhe")
    A(f"s_add_u32 s26, s18, {44*1024}")
    A(f"s_cmp_eq_u32 s17, 0\ns_cbranch_scc0 {f1}")
    for j, so in ((0, 18), (1, 26)):
        o = HO + j * 6
        A(f"buffer_store_dwordx4 v[{o}:{o+3}], v{VZ}, s[8:11], s{so} offen {sc_st}")
        A(f"buffer_store_dwordx2 v[{o+4}:{o+5}], v{VZ}, s[8:11], s{so} offen offset:1024 {sc_st}")
    A(f"s_branch {fe}")
    A.label(f1)
    for j, so in ((0, 18), (1, 26)):
        o = HO + j * 6
        A(f"buffer_store_dwordx2 v[{o}:{o+1}], v{VZ}, s[8:11], s{so} offen offset:{1024+8} {sc_st}")
        A(f"buffer_store_dwordx4 v[{o+2}:{o+5}], v{VZ}, s[8:11], s{so} offen offset:2048 {sc_st}")
    A.label(fe)

def gen_p2_kernel():
    A = Asm()
    end = prologue(A)
    stamp(A, 0)
    stamp(A, 5, cyc=True)
    wg_map_p23(A)
    if "small" in sys.argv: A("s_and_b32 s4, s4, 1\ns_and_b32 s5, s5, 1")
    ld = A.newlabel("Lp2ld")
    A(f"s_cmp_ge_u32 s3, 4\ns_cbranch_scc1 {ld}")
    p2_consumer(A)
    A("s_waitcnt vmcnt(0)")
    stamp(A, 2); stamp(A, 4); stamp(A, 6, cyc=True)
    dump_stamps(A, 7)
    A("s_endpgm")
    A.label(ld)
    p2_loader(A)
    stamp(A, 4); stamp(A, 6, cyc=True)
    dump_stamps(A, 7)
    A("s_endpgm")
    A.label(end)
    A("s_endpgm")
    return A.text(verbose=True)

if __name__ == "__main__":
    import common
    common.set_profile("prof" in sys.argv)
    txt = build_file([("p2_kernel", gen_p2_kernel(), 256, 102, 256)], [("p2_kernel", 256, 512, LDS_MAX)])
    open("p2%s.s" % ("small" if "small" in sys.argv else "nomfma" if "nomfma" in sys.argv else ""), "w").write(txt)
```

```python
from common import *
from p1 import udiv_small, DsQ, gelu_regs, GELU_C1, GELU_C2, fbits
import zrole
from zrole import Z_PART, Z_STAT

S_SLOT = 40960; S_N = 3; S_BASE = 4096; S_X = 0; S_W = 16384
NST = 10
ZA2 = zrole.ZA2; ZA1 = zrole.ZA1
WF = [112, 136]; XF = [160, 176]
VX = [224, 225]; VXC = [226, 227]; VW = [228, 229, 230, 231]; VWC = [232, 233, 234, 235]

def loader(A, hooks_w=None, hooks_x=None):
    lx = A.newlabel("Lz1_x"); join = A.newlabel("Lz1_j")
    A(f"s_cmp_ge_u32 s3, 6\ns_cbranch_scc1 {lx}")
    make_srd(A, 8, P_WIN, 0, 640 * 3072)
    A("s_sub_u32 s16, s3, 4\ns_mul_i32 s17, s5, 192")
    for e in range(12):
        A(f"s_mul_i32 s18, s16, 768\ns_add_u32 s18, s18, {64 * e}\nv_add_u32 v16, s18, v0")
        udiv_small(A, 16, 17, 18, 24, 19, 1536)
        A("v_and_b32 v19, 2, v17\nv_lshrrev_b32 v20, 1, v17\nv_and_b32 v20, 4, v20\nv_or_b32 v19, v19, v20\nv_xor_b32 v18, v18, v19")
        udiv_small(A, 18, 19, 20, 12, 19, 24)
        A(f"s_movk_i32 s19, 1536\nv_mul_u32_u24 v19, s19, v19\nv_lshl_add_u32 v19, v20, 4, v19\ns_movk_i32 s19, 3072\nv_mul_u32_u24 v17, s19, v17\nv_add3_u32 v{2+e}, v17, v19, s17")
    A("s_mul_i32 s18, s16, 12288\ns_mov_b32 s22, s7")
    Q = VmQueue()
    def issue_w(st):
        A(f"s_mul_i32 s20, s22, {64 * 3072}\ns_add_u32 s22, s22, 1\ns_cmp_eq_u32 s22, 10\ns_cselect_b32 s22, 0, s22")
        for e in range(12):
            A(f"s_add_u32 m0, s18, {S_BASE + (st % S_N) * S_SLOT + S_W + e * 1024}")
            A(f"buffer_load_dwordx4 v{2+e}, s[8:11], s20 offen lds")
        Q.issue(("d", st), 12)
    run(A, Q, issue_w, hooks_w or {})
    A(f"s_branch {join}")
    A.label(lx)
    make_srd(A, 8, P_AX, 0, 2048 * 1280)
    A("""
    s_sub_u32 s16, s3, 6
    v_lshrrev_b32 v4, 3, v0
    v_and_b32 v5, 7, v0
    v_lshrrev_b32 v6, 1, v4
    v_xor_b32 v7, v5, v6
    s_movk_i32 s19, 1280
    v_mul_u32_u24 v8, s19, v4
    v_lshl_add_u32 v2, v7, 4, v8
    v_xor_b32 v7, 4, v7
    v_lshl_add_u32 v3, v7, 4, v8
    v_add_u32 v3, 10240, v3
    s_lshl_b32 s17, s4, 7
    s_lshl_b32 s18, s16, 6
    s_add_u32 s17, s17, s18
    s_mul_i32 s17, s17, 1280
    s_lshl_b32 s18, s16, 13
    s_mov_b32 s22, s7
    """)
    Q = VmQueue()
    def issue_x(st):
        A("s_lshl_b32 s23, s22, 7\ns_add_u32 s23, s23, s17\ns_add_u32 s22, s22, 1\ns_cmp_eq_u32 s22, 10\ns_cselect_b32 s22, 0, s22")
        for e in range(8):
            A(f"s_add_u32 m0, s18, {S_BASE + (st % S_N) * S_SLOT + S_X + e * 1024}")
            A(f"s_add_u32 s20, s23, {(e >> 1) * 16 * 1280}")
            A(f"buffer_load_dwordx4 v{2 + (e & 1)}, s[8:11], s20 offen lds")
        Q.issue(("d", st), 8)
    run(A, Q, issue_x, hooks_x or {})
    A.label(join)

def run(A, Q, issue, hooks):
    issue(0); issue(1)
    if "early" in hooks: hooks["early"](A, Q)
    stamp(A, 1)
    nxt = 2
    for st in range(NST):
        if ("d", st) in Q.q:
            n = Q.wait_for({("d", st)}); A(f"s_waitcnt vmcnt({min(n, 63)})"); Q.retire(min(n, 63))
        A("s_barrier")
        if st == 0: stamp(A, 2)
        lim = min(NST, st + S_N); c = 0
        while nxt < lim and c < 2:
            issue(nxt); nxt += 1; c += 1
        if st in hooks: hooks[st](A, Q)

def consumer(A, mid=None, b0hook=None):
    A("v_and_b32 v1, 15, v0\nv_lshrrev_b32 v2, 4, v0\ns_lshr_b32 s16, s3, 1\ns_and_b32 s17, s3, 1")
    A(f"""
    v_lshrrev_b32 v3, 1, v1
    v_xor_b32 v3, v3, v2
    v_lshlrev_b32 v3, 4, v3
    v_lshl_add_u32 v{VXC[0]}, v1, 7, v3
    s_lshl_b32 s18, s16, 13
    v_add_u32 v{VXC[0]}, s18, v{VXC[0]}
    v_xor_b32 v{VXC[1]}, 64, v{VXC[0]}
    """)
    A(f"""
    v_lshrrev_b32 v3, 2, v1
    v_lshl_add_u32 v4, v2, 3, v3
    s_movk_i32 s19, 384
    v_mul_u32_u24 v4, s19, v4
    v_and_b32 v5, 3, v1
    v_lshl_add_u32 v4, v5, 3, v4
    v_add_u32 v4, {S_W}, v4
    v_lshrrev_b32 v3, 1, v3
    v_and_b32 v5, 1, v2
    v_lshl_or_b32 v3, v5, 1, v3
    s_mul_i32 s18, s17, 3
    """)
    for k in range(4):
        A(f"s_add_u32 s19, s18, {k}\nv_xor_b32 v5, s19, v3\nv_lshl_add_u32 v{VWC[k]}, v5, 5, v4")
    JMAP = {0: (0, 0), 1: (1, 0), 2: (2, 0), 6: (2, 128), 7: (3, 128), 8: (0, 256)}
    D = DsQ()
    def setaddr():
        for j in range(2): A(f"v_add_u32 v{VX[j]}, s22, v{VXC[j]}")
        for k in range(4): A(f"v_add_u32 v{VW[k]}, s22, v{VWC[k]}")
    KJ = [6, 7, 8, 0, 1, 2]
    def rd_w(buf, k, kk, tag):
        d = WF[buf] + 4 * k; r, off = JMAP[KJ[k]]
        off += kk * 32 * 384
        A(f"ds_read_b64_tr_b16 v[{d}:{d+1}], v{VW[r]} offset:{off}"); D.issue(tag)
        A(f"ds_read_b64_tr_b16 v[{d+2}:{d+3}], v{VW[r]} offset:{off + 4*384}"); D.issue(tag)
    def rd_x(buf, m, kk, tag):
        d = XF[buf] + 4 * m
        A(f"ds_read_b128 v[{d}:{d+3}], v{VX[kk]} offset:{m * 2048}"); D.issue(tag)
    ORDER = [("x", 0), ("w", 0), ("w", 1), ("w", 2), ("w", 3), ("w", 4), ("w", 5), ("x", 1), ("x", 2), ("x", 3)]
    def rd(buf, item, kk, sim):
        if item[0] == "x": rd_x(buf, item[1], kk, ("x", sim, item[1]))
        else: rd_w(buf, item[1], kk, ("w", sim, item[1]))
    def half(kk, has_next, sim, first):
        pend = list(ORDER) if has_next else []
        cnt = 0
        if kk == 1 and has_next:
            A(f"s_add_u32 s22, s22, {S_SLOT}\ns_cmp_eq_u32 s22, {S_BASE + S_N*S_SLOT}\ns_cselect_b32 s22, {S_BASE}, s22")
        for m in range(4):
            for k in range(6):
                n = D.wait({("x", sim, m), ("w", sim, k)})
                if n is not None: A(f"s_waitcnt lgkmcnt({min(n, 15)})")
                wf = WF[kk] + 4 * k; xf = XF[kk] + 4 * m
                if k < 3:
                    d = ZA2 + (m * 3 + k) * 4; c = "0" if first else f"v[{d}:{d+3}]"
                    A(f"v_mfma_f32_16x16x32_bf16 v[{d}:{d+3}], v[{xf}:{xf+3}], v[{wf}:{wf+3}], {c}")
                else:
                    d = ZA1 + ((k - 3) * 4 + m) * 4; c = "0" if first else f"v[{d}:{d+3}]"
                    A(f"v_mfma_f32_16x16x32_bf16 v[{d}:{d+3}], v[{wf}:{wf+3}], v[{xf}:{xf+3}], {c}")
                cnt += 1
                if kk == 1 and has_next:
                    if cnt <= 2: A(f"v_add_u32 v{VX[cnt-1]}, s22, v{VXC[cnt-1]}")
                    if 3 <= cnt <= 6: A(f"v_add_u32 v{VW[cnt-3]}, s22, v{VWC[cnt-3]}")
                    if cnt == 6:
                        A("s_waitcnt lgkmcnt(0)"); D.q.clear()
                        A("s_barrier")
                start = 6 if kk == 1 else 1
                if pend and cnt >= start: rd(kk ^ 1, pend.pop(0), kk ^ 1, sim + 1)
    A(f"s_mov_b32 s22, {S_BASE}")
    setaddr()
    stamp(A, 1)
    A("s_barrier")
    stamp(A, 2)
    if b0hook: b0hook(A)
    for it in ORDER: rd(0, it, 0, 0)
    half(0, True, 0, True); half(1, True, 1, False)
    loop = A.newlabel("Lz1p")
    A("s_mov_b32 s24, 0")
    A.label(loop)
    if mid:
        lm = A.newlabel("Lmid"); A(f"s_cmp_lg_u32 s24, 2\ns_cbranch_scc1 {lm}"); mid(A); A.label(lm)
    half(0, True, 2, False); half(1, True, 3, False)
    A("s_add_u32 s24, s24, 1\ns_cmp_lt_u32 s24, 8")
    A(f"s_cbranch_scc1 {loop}")
    half(0, True, 4, False); half(1, False, 5, False)
```

```python
from common import *
from p1 import udiv_small, DsQ, gelu_regs, GELU_C1, GELU_C2, fbits, barrier_plan_loader

ZS_SLOT = 28672; ZS_N = 3; ZS_BASE = 4096; ZS_X = 0; ZS_W = 16384
ZS_NST = 20
Z_PART = 0
Z_STAT = 2048
ZA2 = 16; ZA1 = 64
ZWF = [112, 124]; ZXF = [136, 152]
ZVX = [168, 169]; ZVXC = [170, 171]; ZVE, ZVO, ZVEC, ZVOC = 172, 173, 174, 175

def z_loader(A, late=None, hooks=None, pre=None, xhooks=None):
    hooks = hooks or {}
    lx = A.newlabel("Lzl_x"); join = A.newlabel("Lzl_j")
    A(f"s_cmp_ge_u32 s3, 6\ns_cbranch_scc1 {lx}")
    make_srd(A, 8, P_WIN, 0, 640 * 3072)
    A("s_sub_u32 s16, s3, 4\ns_mul_i32 s17, s5, 192")
    for e in range(6):
        A(f"s_mul_i32 s18, s16, 384\ns_add_u32 s18, s18, {64 * e}\nv_add_u32 v12, s18, v0")
        udiv_small(A, 12, 13, 14, 12, 19, 768)
        A("v_lshrrev_b32 v15, 2, v13\nv_and_b32 v15, 2, v15\nv_xor_b32 v14, v14, v15")
        A(f"s_movk_i32 s19, 3072\nv_mul_u32_u24 v13, s19, v13\nv_lshl_add_u32 v13, v14, 4, v13\nv_add_u32 v{2+e}, s17, v13")
    A("s_mul_i32 s18, s16, 6144")
    Q = VmQueue()
    A("s_mov_b32 s22, s7")
    def issue_w(st):
        col = 1536 if st < 10 else 0
        A(f"s_mul_i32 s20, s22, {64 * 3072}\ns_add_u32 s20, s20, {col}\ns_add_u32 s22, s22, 1\ns_cmp_eq_u32 s22, 10\ns_cselect_b32 s22, 0, s22")
        for e in range(6):
            A(f"s_add_u32 m0, s18, {ZS_BASE + (st % ZS_N) * ZS_SLOT + ZS_W + e * 1024}")
            A(f"buffer_load_dwordx4 v{2+e}, s[8:11], s20 offen lds")
        Q.issue(("d", st), 6)
    run_loader(A, Q, issue_w, late, hooks, pre)
    A(f"s_branch {join}")
    A.label(lx)
    make_srd(A, 8, P_AX, 0, 2048 * 1280)
    A("""
    s_sub_u32 s16, s3, 6
    v_lshrrev_b32 v4, 3, v0
    v_and_b32 v5, 7, v0
    v_lshrrev_b32 v6, 1, v4
    v_xor_b32 v7, v5, v6
    s_movk_i32 s19, 1280
    v_mul_u32_u24 v8, s19, v4
    v_lshl_add_u32 v2, v7, 4, v8
    v_xor_b32 v7, 4, v7
    v_lshl_add_u32 v3, v7, 4, v8
    v_add_u32 v3, 10240, v3
    s_lshl_b32 s17, s4, 7
    s_lshl_b32 s18, s16, 6
    s_add_u32 s17, s17, s18
    s_mul_i32 s17, s17, 1280
    s_lshl_b32 s18, s16, 13
    """)
    Q = VmQueue()
    A("s_mov_b32 s22, s7")
    def issue_x(st):
        A("s_lshl_b32 s23, s22, 7\ns_add_u32 s23, s23, s17\ns_add_u32 s22, s22, 1\ns_cmp_eq_u32 s22, 10\ns_cselect_b32 s22, 0, s22")
        for e in range(8):
            A(f"s_add_u32 m0, s18, {ZS_BASE + (st % ZS_N) * ZS_SLOT + ZS_X + e * 1024}")
            A(f"s_add_u32 s20, s23, {(e >> 1) * 16 * 1280}")
            A(f"buffer_load_dwordx4 v{2 + (e & 1)}, s[8:11], s20 offen lds")
        Q.issue(("d", st), 8)
    run_loader(A, Q, issue_x, late, xhooks or {}, pre)
    A.label(join)

def run_loader(A, Q, issue, late, hooks, pre=None):
    if pre: pre()
    if 'st0' in sys.argv: A("s_memrealtime s[70:71]")
    issue(0); issue(1)
    if "early" in hooks: hooks["early"](A, Q)
    stamp(A, 1)
    nxt = 2
    for st in range(ZS_NST):
        if ("d", st) in Q.q:
            n = Q.wait_for({("d", st)})
            A(f"s_waitcnt vmcnt({min(n, 63)})"); Q.retire(min(n, 63))
        A("s_barrier")
        if st == 0: stamp(A, 2)
        if st == 0 and 'st0' in sys.argv: A("s_memrealtime s[72:73]")
        lim = min(ZS_NST, st + ZS_N); c = 0
        while nxt < lim and c < 2:
            issue(nxt); nxt += 1; c += 1
        if "each" in hooks: hooks["each"](A, Q, st)
        if st == 4 and "st4" in hooks: hooks["st4"](A, Q)
        if st == 2 and "st2" in hooks: hooks["st2"](A, Q)
        if st == 9:
            A("s_barrier")
            if "after_z1" in hooks: hooks["after_z1"](A, Q)
        if st == 13 and "st13" in hooks: hooks["st13"](A, Q)
        if ("st", st) in hooks: hooks[("st", st)](A, Q)
        if st == ZS_NST - 2 and "pre_last" in hooks: hooks["pre_last"](A, Q)
        if st == ZS_NST - 1 and late: late(A)

def z_consumer(A, mid=None, between=None, it_hook=None, b0hook=None, preb0=None, p2hook=None, p2iter=6):
    A("v_and_b32 v1, 15, v0\nv_lshrrev_b32 v2, 4, v0\ns_lshr_b32 s16, s3, 1\ns_and_b32 s17, s3, 1")
    A(f"""
    v_lshrrev_b32 v3, 1, v1
    v_xor_b32 v3, v3, v2
    v_lshlrev_b32 v3, 4, v3
    v_lshl_add_u32 v{ZVXC[0]}, v1, 7, v3
    s_lshl_b32 s18, s16, 13
    v_add_u32 v{ZVXC[0]}, s18, v{ZVXC[0]}
    v_xor_b32 v{ZVXC[1]}, 64, v{ZVXC[0]}
    """)
    A(f"""
    v_lshrrev_b32 v3, 2, v1
    v_lshl_add_u32 v3, v2, 3, v3
    v_mul_u32_u24 v3, 192, v3
    v_and_b32 v4, 3, v1
    v_lshl_add_u32 v3, v4, 3, v3
    s_mul_i32 s18, s17, 96
    s_add_u32 s18, s18, {ZS_W}
    v_add_u32 v3, s18, v3
    v_and_b32 v4, 1, v2
    v_lshlrev_b32 v4, 5, v4
    v_add_u32 v5, v3, v4
    v_sub_u32 v3, v3, v4
    s_cmp_eq_u32 s17, 0
    s_cselect_b64 vcc, -1, 0
    v_cndmask_b32 v{ZVEC}, v3, v5, vcc
    v_cndmask_b32 v{ZVOC}, v5, v3, vcc
    """)
    for i in range(96): A(f"v_mov_b32 v{ZA2+i}, 0")
    D = DsQ()
    def setaddr():
        A(f"v_add_u32 v{ZVX[0]}, s22, v{ZVXC[0]}"); A(f"v_add_u32 v{ZVX[1]}, s22, v{ZVXC[1]}")
        A(f"v_add_u32 v{ZVE}, s22, v{ZVEC}"); A(f"v_add_u32 v{ZVO}, s22, v{ZVOC}")
    def rd_w(buf, t, kk, tag):
        d = ZWF[buf] + 4 * t; a = ZVO if t & 1 else ZVE
        off = kk * 32 * 192 + t * 32
        A(f"ds_read_b64_tr_b16 v[{d}:{d+1}], v{a} offset:{off}"); D.issue(tag)
        A(f"ds_read_b64_tr_b16 v[{d+2}:{d+3}], v{a} offset:{off + 4*192}"); D.issue(tag)
    def rd_x(buf, m, kk, tag):
        d = ZXF[buf] + 4 * m
        A(f"ds_read_b128 v[{d}:{d+3}], v{ZVX[kk]} offset:{m * 2048}"); D.issue(tag)
    ORDER = [("x", 0), ("w", 0), ("w", 1), ("w", 2), ("x", 1), ("x", 2), ("x", 3)]
    def rd(buf, item, kk, sim):
        if item[0] == "x": rd_x(buf, item[1], kk, ("x", sim, item[1]))
        else: rd_w(buf, item[1], kk, ("w", sim, item[1]))
    def half(kk, z2, has_next, sim):
        pend = list(ORDER) if has_next else []
        cnt = 0
        if kk == 1 and has_next:
            A(f"s_add_u32 s22, s22, {ZS_SLOT}"); A(f"s_cmp_eq_u32 s22, {ZS_BASE + ZS_N*ZS_SLOT}"); A(f"s_cselect_b32 s22, {ZS_BASE}, s22")
        for m in range(4):
            for t in range(3):
                n = D.wait({("x", sim, m), ("w", sim, t)})
                if n is not None: A(f"s_waitcnt lgkmcnt({min(n, 15)})")
                wf = ZWF[kk] + 4 * t; xf = ZXF[kk] + 4 * m
                if z2:
                    d = ZA2 + (m * 3 + t) * 4
                    A(f"v_mfma_f32_16x16x32_bf16 v[{d}:{d+3}], v[{xf}:{xf+3}], v[{wf}:{wf+3}], v[{d}:{d+3}]")
                else:
                    d = ZA1 + (t * 4 + m) * 4
                    A(f"v_mfma_f32_16x16x32_bf16 v[{d}:{d+3}], v[{wf}:{wf+3}], v[{xf}:{xf+3}], v[{d}:{d+3}]")
                cnt += 1
                if kk == 1 and has_next and cnt == 1:
                    setaddr()
                    A("s_waitcnt lgkmcnt(0)"); D.q.clear()
                    A("s_barrier")
                if pend and cnt >= 1:
                    rd(kk ^ 1, pend.pop(0), kk ^ 1, sim + 1)
    def gemm_pass(z2, first):
        for it in ORDER: rd(0, it, 0, 0)
        loop = A.newlabel("Lzp")
        A("s_mov_b32 s24, 0")
        A.label(loop)
        if it_hook and first: it_hook(A)
        if p2hook and not first:
            lh = A.newlabel("Lp2h"); A(f"s_cmp_lg_u32 s24, {p2iter}\ns_cbranch_scc1 {lh}")
            A("s_waitcnt lgkmcnt(0)"); p2hook(A); A.label(lh)
        if mid and first:
            lm = A.newlabel("Lmid"); A(f"s_cmp_lg_u32 s24, 3\ns_cbranch_scc1 {lm}"); mid(A); A.label(lm)
        half(0, z2, True, 0)
        half(1, z2, True, 1)
        A("s_add_u32 s24, s24, 1\ns_cmp_lt_u32 s24, 9")
        A(f"s_cbranch_scc1 {loop}")
        half(0, z2, True, 2)
        half(1, z2, False, 3)
        D.q.clear()
    A(f"s_mov_b32 s22, {ZS_BASE}")
    setaddr()
    if preb0: preb0(A)
    stamp(A, 1)
    A("s_barrier")
    stamp(A, 2)
    if b0hook: b0hook(A)
    gemm_pass(True, True)
    stamp(A, 3)
    between(A)
    A(f"s_add_u32 s22, s22, {ZS_SLOT}\ns_cmp_eq_u32 s22, {ZS_BASE + ZS_N*ZS_SLOT}\ns_cselect_b32 s22, {ZS_BASE}, s22")
    setaddr()
    A("s_barrier")
    gemm_pass(False, False)

def z_epi_stats(A):
    C1, C2, T = 176, 178, 180
    A(f"v_mov_b32 v{C1}, {fbits(GELU_C1):#x}\nv_mov_b32 v{C1+1}, {fbits(GELU_C1):#x}\nv_mov_b32 v{C2}, {fbits(GELU_C2):#x}\nv_mov_b32 v{C2+1}, {fbits(GELU_C2):#x}")
    gelu_regs(A, ZA2, 48, C1, C2, T)
    SU = 192; SQ = 208
    for m in range(4):
        for r in range(4):
            a, b, c = [ZA2 + (m * 3 + t) * 4 + r for t in range(3)]
            s_, q_ = SU + m * 4 + r, SQ + m * 4 + r
            A(f"v_add_f32 v{s_}, v{a}, v{b}\nv_mul_f32 v{q_}, v{a}, v{a}\nv_add_f32 v{s_}, v{s_}, v{c}\nv_fmac_f32 v{q_}, v{b}, v{b}\nv_fmac_f32 v{q_}, v{c}, v{c}")
    for base in (SU, SQ):
        for j in range(8): A(f"v_add_f32_dpp v{base+j}, v{base+j}, v{base+j} row_ror:8 row_mask:0xf bank_mask:0x3")
    for base in (SU, SQ):
        for j in range(8): A(f"v_add_f32_dpp v{base+j}, v{base+j+8}, v{base+j+8} row_ror:8 row_mask:0xf bank_mask:0xc")
    for base in (SU, SQ):
        for j in range(4): A(f"v_add_f32_dpp v{base+j}, v{base+j}, v{base+j} row_half_mirror row_mask:0xf bank_mask:0x5")
    for base in (SU, SQ):
        for j in range(4): A(f"v_add_f32_dpp v{base+j}, v{base+j+4}, v{base+j+4} row_half_mirror row_mask:0xf bank_mask:0xa")
    for base in (SU, SQ):
        for j in range(4):
            A(f"v_add_f32_dpp v{base+j}, v{base+j}, v{base+j} quad_perm:[2,3,0,1] row_mask:0xf bank_mask:0xf")
    for base in (SU, SQ):
        for j in range(4):
            A(f"v_add_f32_dpp v{base+j}, v{base+j}, v{base+j} quad_perm:[1,0,3,2] row_mask:0xf bank_mask:0xf")
    A(f"""
    s_lshl_b32 s18, s17, 10
    s_lshl_b32 s19, s16, 9
    s_add_u32 s18, s18, s19
    s_add_u32 s18, s18, {Z_PART}
    v_lshrrev_b32 v3, 2, v1
    v_lshlrev_b32 v3, 7, v3
    v_lshl_add_u32 v3, v2, 5, v3
    v_add_u32 v3, s18, v3
    s_mov_b64 s[12:13], exec
    s_mov_b32 s20, 0x11111111
    s_mov_b32 s21, 0x11111111
    s_mov_b64 exec, s[20:21]
    """)
    T = 180
    A(f"v_mov_b32 v{T}, v{SU}\nv_mov_b32 v{T+1}, v{SQ}\nv_mov_b32 v{T+2}, v{SU+1}\nv_mov_b32 v{T+3}, v{SQ+1}")
    A(f"v_mov_b32 v{T+4}, v{SU+2}\nv_mov_b32 v{T+5}, v{SQ+2}\nv_mov_b32 v{T+6}, v{SU+3}\nv_mov_b32 v{T+7}, v{SQ+3}")
    A(f"ds_write_b128 v3, v[{T}:{T+3}]\nds_write_b128 v3, v[{T+4}:{T+7}] offset:16")
    A("s_mov_b64 exec, s[12:13]\ns_waitcnt lgkmcnt(0)")

def z_publish_stats(A, NONCE):
    A(f"s_sub_u32 s21, s3, 4\ns_lshl_b32 s21, s21, 9\nv_lshlrev_b32 v20, 3, v0\nv_add_u32 v20, s21, v20")
    A(f"v_add_u32 v88, {Z_PART}, v20")
    A(f"ds_read_b64 v[22:23], v88\nds_read_b64 v[24:25], v88 offset:1024\ns_waitcnt lgkmcnt(0)")
    A(f"v_add_f32 v28, v22, v24\nv_add_f32 v30, v23, v25\nv_mov_b32 v29, s{NONCE}\nv_mov_b32 v31, s{NONCE}")
    A("s_lshl_b32 s21, s4, 14")
    make_srd(A, 92, P_WS, ST_OFF, 16384, off_sgpr=21)
    A("v_lshlrev_b32 v89, 1, v20\ns_lshl_b32 s21, s5, 11")
    A("buffer_store_dwordx4 v[28:31], v89, s[92:95], s21 offen sc1")

def z_gather_issue(A):
    for c in range(8):
        A(f"s_mov_b32 s21, {c*2048}\nbuffer_load_dwordx4 v[{56+4*c}:{59+4*c}], v89, s[92:95], s21 offen sc1")

def z_gather_finish(A, NONCE, spin_max):
    lp = A.newlabel("Lst"); ok = A.newlabel("Lstok")
    A("s_mov_b32 s20, 0")
    A.label(lp)
    A("s_waitcnt vmcnt(0)")
    A(f"v_mov_b32 v12, 0")
    for c in range(8):
        A(f"v_xor_b32 v13, s{NONCE}, v{57+4*c}\nv_or_b32 v12, v12, v13\nv_xor_b32 v13, s{NONCE}, v{59+4*c}\nv_or_b32 v12, v12, v13")
    A(f"v_cmp_ne_u32 vcc, 0, v12\ns_cmp_eq_u64 vcc, 0\ns_cbranch_scc1 {ok}")
    A(f"s_add_u32 s20, s20, 1\ns_cmp_gt_u32 s20, {spin_max}\ns_cbranch_scc1 {ok}\ns_sleep 1")
    z_gather_issue(A)
    A(f"s_branch {lp}")
    A.label(ok)
    A("v_add_f32 v40, v56, v60\nv_add_f32 v41, v58, v62")
    for c in range(2, 8): A(f"v_add_f32 v40, v40, v{56+4*c}\nv_add_f32 v41, v41, v{58+4*c}")
    inv = fbits(1.0 / 768.0)
    A(f"""
    v_mul_f32 v40, {inv:#x}, v40
    v_mul_f32 v41, {inv:#x}, v41
    v_fma_f32 v41, -v40, v40, v41
    v_max_f32 v41, 0, v41
    v_add_f32 v41, {fbits(1e-5):#x}, v41
    v_rsq_f32 v42, v41
    s_nop 0
    v_mul_f32 v43, -v40, v42
    """)
    A(f"ds_write_b64 v88, v[42:43] offset:{Z_STAT - Z_PART}\ns_waitcnt lgkmcnt(0)")

def z_epi_norm(A, sc_st="", ST=112, OB=144):
    A(f"s_lshl_b32 s19, s16, 9\ns_add_u32 s19, s19, {Z_STAT}\nv_lshlrev_b32 v3, 5, v2\nv_add_u32 v3, s19, v3")
    for m in range(4):
        A(f"ds_read_b128 v[{ST+8*m}:{ST+8*m+3}], v3 offset:{m*128}\nds_read_b128 v[{ST+8*m+4}:{ST+8*m+7}], v3 offset:{m*128+16}")
    A(f"s_mul_i32 s18, s5, 393216\ns_lshl_b32 s19, s4, 2\ns_lshl_b32 s20, s16, 1\ns_add_u32 s19, s19, s20\ns_mul_i32 s19, s19, 6144\ns_add_u32 s18, s18, s19\ns_mul_i32 s19, s17, 3072\ns_add_u32 s18, s18, s19")
    make_srd(A, 8, P_WS, ZN_OFF, 6144 + 3072, off_sgpr=18)
    A("v_lshlrev_b32 v4, 4, v0\ns_waitcnt lgkmcnt(0)")
    for P in range(2):
        for t in range(3):
            o = OB + 4 * (P * 3 + t)
            for j in range(2):
                m = 2 * P + j
                d = ZA2 + (m * 3 + t) * 4
                for r in range(4):
                    A(f"v_fma_f32 v{d+r}, v{d+r}, v{ST+8*m+2*r}, v{ST+8*m+2*r+1}")
                A(f"v_cvt_pk_bf16_f32 v{o+2*j}, v{d}, v{d+1}\nv_cvt_pk_bf16_f32 v{o+2*j+1}, v{d+2}, v{d+3}")
            A(f"v_permlane32_swap_b32 v{o}, v{o+2}\nv_permlane32_swap_b32 v{o+1}, v{o+3}")
            A(f"v_permlane16_swap_b32 v{o}, v{o+2}\nv_permlane16_swap_b32 v{o+1}, v{o+3}")
            A(f"s_mov_b32 s19, {P*6144 + t*1024}\nbuffer_store_dwordx4 v[{o}:{o+3}], v4, s[8:11], s19 offen {sc_st}")

def z_epi_z1(A, sc_st=""):
    C1, C2, T = 176, 178, 180
    gelu_regs(A, ZA1, 48, C1, C2, T)
    A(f"s_lshl_b32 s18, s4, 1\ns_add_u32 s18, s18, s16\ns_lshl_b32 s18, s18, 3\ns_add_u32 s18, s18, s5\ns_lshl_b32 s18, s18, 2\ns_lshl_b32 s19, s17, 1\ns_add_u32 s18, s18, s19\ns_mul_i32 s18, s18, 3072")
    make_srd(A, 8, P_WS, Z1_OFF, 6144, off_sgpr=18)
    A("v_lshlrev_b32 v4, 4, v0")
    for wt in range(2):
        for t in range(3):
            o = 192 + 4 * (wt * 3 + t)
            for j in range(2):
                d = ZA1 + (t * 4 + 2 * wt + j) * 4
                A(f"v_cvt_pk_bf16_f32 v{o+2*j}, v{d}, v{d+1}\nv_cvt_pk_bf16_f32 v{o+2*j+1}, v{d+2}, v{d+3}")
            A(f"s_mov_b32 s19, {wt*3072 + t*1024}\nbuffer_store_dwordx4 v[{o}:{o+3}], v4, s[8:11], s19 offen {sc_st}")
```

```python
import sys
import common
from common import *
import p1, p2, p3, zrole, z1p
from p1 import *

NONCE = 62
RB64, CB = 60, 61
ZF_OFF, OF_OFF, PF_OFF, HF_OFF, Z1F_OFF = 0x0000, 0x1000, 0x2000, 0x3000, 0x0800
LAZY = 63
NONCE_LDS = 163824 - 2048
NONCE_LDS = 161792
SPIN_MAX = 1 << 17

def flag_srd(A):
    make_srd(A, 28, P_WS, FL_OFF, 0x4000)

TV = [250]
def set_flag(A, soff_sgpr):
    flag_srd(A)
    A(f"s_mov_b64 s[32:33], exec\ns_mov_b64 exec, 1\nv_mov_b32 v{TV[0]}, 0\nv_mov_b32 v{TV[0]+1}, s{NONCE}")
    A(f"buffer_store_dword v{TV[0]+1}, v{TV[0]}, s[28:31], s{soff_sgpr} offen sc1")
    A("s_mov_b64 exec, s[32:33]")

def wait_flags(A, soff_sgpr, n):
    flag_srd(A)
    lo = (1 << min(n, 32)) - 1; hi = (1 << max(n - 32, 0)) - 1
    lp = A.newlabel("Lw"); ok = A.newlabel("Lwok")
    A(f"s_mov_b64 s[32:33], exec\ns_mov_b32 exec_lo, {lo:#x}\ns_mov_b32 exec_hi, {hi:#x}\nv_lshlrev_b32 v{TV[0]}, 2, v0\ns_mov_b32 s34, 0")
    A.label(lp)
    A(f"buffer_load_dword v{TV[0]+1}, v{TV[0]}, s[28:31], s{soff_sgpr} offen sc1\ns_waitcnt vmcnt(0)")
    A(f"v_cmp_ne_u32 vcc, s{NONCE}, v{TV[0]+1}\ns_cmp_eq_u64 vcc, 0\ns_cbranch_scc1 {ok}")
    A(f"s_add_u32 s34, s34, 1\ns_cmp_gt_u32 s34, {SPIN_MAX}\ns_cbranch_scc1 {ok}\ns_sleep 1\ns_branch {lp}")
    A.label(ok)
    A("s_mov_b64 exec, s[32:33]")

def poll_issue(A, soff_sgpr, n, vreg):
    flag_srd(A)
    A(f"v_min_u32 v{TV[0]}, {n-1}, v0\nv_lshlrev_b32 v{TV[0]}, 2, v{TV[0]}\nbuffer_load_dword v{vreg}, v{TV[0]}, s[28:31], s{soff_sgpr} offen sc1")

def poll_check(A, soff_sgpr, n, vreg):
    ok = A.newlabel("Lpok")
    A(f"v_cmp_ne_u32 vcc, s{NONCE}, v{vreg}\ns_cmp_eq_u64 vcc, 0\ns_cbranch_scc1 {ok}")
    wait_flags(A, soff_sgpr, n)
    A.label(ok)

def read_nonce_lds(A):
    A(f"v_mov_b32 v250, {NONCE_LDS}\nds_read_b32 v251, v250\ns_waitcnt lgkmcnt(0)\nv_readfirstlane_b32 s{NONCE}, v251")

def touch_bulk(A, which=3):
    A("s_lshr_b32 s26, s2, 3\ns_lshl_b32 s26, s26, 2\ns_add_u32 s26, s26, s3\ns_lshl_b32 s26, s26, 6")
    A("v_add_u32 v240, s26, v0")
    A("s_and_b32 s27, s2, 7\ns_lshr_b32 s32, s27, 1\ns_and_b32 s32, s32, 1\ns_and_b32 s33, s27, 1")
    make_srd(A, 8, P_AX, 0, 2048 * 1280)
    A("s_lshl_b32 s34, s32, 10\ns_movk_i32 s35, 1280")
    A("v_and_b32 v241, 1023, v240\nv_add_u32 v241, s34, v241\nv_mul_u32_u24 v241, s35, v241\nv_lshrrev_b32 v242, 10, v240\nv_lshl_add_u32 v241, v242, 7, v241")
    if which & 1: A("buffer_load_dword v254, v241, s[8:11], 0 offen offset:256")
    if not (which & 2): return
    wq = A.newlabel("Ltq"); wj = A.newlabel("Ltj")
    A(f"s_cmp_eq_u32 s6, 1\ns_cbranch_scc1 {wq}")
    def wpart(nl, per_seg, rs, segstride, colhalf_bytes, ptr, size, total):
        make_srd(A, 12, ptr, 0, size)
        A(f"s_mul_i32 s25, s33, {colhalf_bytes}\ns_add_u32 s25, s25, {128 * rs}")
        A(f"v_mov_b32 v243, v240")
        udiv_small(A, 243, 244, 246, nl, 31, 16384)
        udiv_small(A, 246, 247, 248, per_seg, 31, 16)
        A(f"s_movk_i32 s31, {rs}\nv_mul_u32_u24 v244, s31, v244\ns_movk_i32 s31, {segstride}\nv_mul_u32_u24 v247, s31, v247\nv_lshlrev_b32 v248, 7, v248\nv_add3_u32 v244, v244, v247, v248")
        A(f"v_cmp_gt_u32 vcc, {512 * nl}, v243\nv_cndmask_b32 v244, -1, v244, vcc")
        A(f"buffer_load_dword v254, v244, s[12:15], s25 offen")
    wpart(15, 5, 3840, 1280, 640, P_WQKV, 640 * 3840, 9600)
    A(f"s_branch {wj}")
    A.label(wq)
    wpart(12, 6, 3072, 1536, 768, P_WIN, 640 * 3072, 7680)
    A.label(wj)

def touch_half(A, h):
    A("s_lshr_b32 s26, s2, 3\ns_lshl_b32 s26, s26, 2\ns_add_u32 s26, s26, s3")
    A("s_and_b32 s27, s2, 7\ns_lshr_b32 s32, s27, 1\ns_and_b32 s32, s32, 1\ns_and_b32 s33, s27, 1")
    A("s_lshl_b32 s34, s26, 5\nv_add_u32 v240, s34, v0\ns_lshl_b32 s34, s32, 10\ns_movk_i32 s35, 1280")
    A(f"v_and_b32 v241, 1023, v240\nv_add_u32 v241, s34, v241\nv_mul_u32_u24 v241, s35, v241\nv_lshrrev_b32 v242, 10, v240\nv_lshl_add_u32 v241, v242, 7, v241\nv_add_u32 v241, {(2 + 4*h) * 128}, v241")
    zq = A.newlabel("Lhz"); pj = A.newlabel("Lhj")
    A(f"s_cmp_eq_u32 s6, 1\ns_cbranch_scc1 {zq}")
    def wp(nper, nl, per_seg, rs, segstride, colbytes, ptr):
        A(f"s_mul_i32 s34, s26, {nper}\ns_sub_u32 s34, s34, 32\nv_add_u32 v243, s34, v0\nv_max_i32 v243, 0, v243\nv_min_u32 v243, {128*nper-1}, v243")
        udiv_small(A, 243, 244, 246, nl, 31, 4096)
        udiv_small(A, 246, 247, 248, per_seg, 31, 16)
        A(f"s_movk_i32 s31, {rs}\nv_mul_u32_u24 v244, s31, v244\ns_movk_i32 s31, {segstride}\nv_mul_u32_u24 v247, s31, v247\nv_lshlrev_b32 v248, 7, v248\nv_add3_u32 v244, v244, v247, v248")
        A(f"s_mul_i32 s25, s33, {colbytes}\ns_add_u32 s25, s25, {(128 + 256*h) * rs}\nv_add_u32 v244, s25, v244")
        A(f"s_mov_b32 s30, s{ptr}\ns_mov_b32 s31, s{ptr+1}\ns_movk_i32 s35, {32+nper}")
    wp(30, 15, 5, 3840, 1280, 640, P_WQKV)
    A(f"s_branch {pj}")
    A.label(zq)
    wp(24, 12, 6, 3072, 1536, 768, P_WIN)
    A.label(pj)
    A("v_cmp_gt_u32 vcc, 32, v0")
    A(f"v_cndmask_b32 v241, v244, v241, vcc")
    A(f"v_mov_b32 v243, s30\nv_mov_b32 v244, s{P_AX}\nv_cndmask_b32 v243, v243, v244, vcc")
    A(f"v_mov_b32 v245, s31\nv_mov_b32 v244, s{P_AX+1}\nv_cndmask_b32 v245, v245, v244, vcc")
    A(f"v_add_co_u32 v246, vcc, v243, v241\nv_addc_co_u32 v247, vcc, 0, v245, vcc")
    A("v_cmp_gt_u32 vcc, s35, v0\ns_and_saveexec_b64 s[34:35], vcc")
    A("global_load_dword v254, v[246:247], off\ns_mov_b64 exec, s[34:35]")

PLEAD = 3
TA_ = 236
def ptouch_setup(A):
    A("s_lshr_b32 s16, s2, 3\ns_and_b32 s17, s2, 7\ns_lshr_b32 s18, s17, 1\ns_and_b32 s18, s18, 1\ns_and_b32 s19, s17, 1")
    A("s_lshl_b32 s20, s18, 10\ns_lshl_b32 s21, s16, 5\ns_add_u32 s20, s20, s21\nv_add_u32 v230, s20, v0\ns_movk_i32 s21, 1280\nv_mul_u32_u24 v230, s21, v230")
    zq = A.newlabel("Lpz"); pj = A.newlabel("Lpj")
    A(f"s_cmp_eq_u32 s6, 1\ns_cbranch_scc1 {zq}")
    def wp(nper, nl, per_seg, rs, segstride, colbytes, ptr, inc):
        A(f"s_mul_i32 s20, s16, {nper}\ns_sub_u32 s20, s20, 32\nv_add_u32 v231, s20, v0")
        A(f"v_max_i32 v231, 0, v231\nv_min_u32 v231, {32*nper-1}, v231")
        udiv_small(A, 231, 232, 233, nl, 23, 1024)
        udiv_small(A, 233, 234, 235, per_seg, 23, 16)
        A(f"s_movk_i32 s23, {rs}\nv_mul_u32_u24 v232, s23, v232\ns_movk_i32 s23, {segstride}\nv_mul_u32_u24 v234, s23, v234\nv_lshlrev_b32 v235, 7, v235\nv_add3_u32 v232, v232, v234, v235")
        A(f"s_mul_i32 s22, s19, {colbytes}\nv_add_u32 v232, s22, v232")
        A(f"s_mov_b32 s24, s{ptr}\ns_mov_b32 s25, s{ptr+1}\ns_mov_b32 s26, {inc}\ns_movk_i32 s27, {32+nper}")
    wp(30, 15, 5, 3840, 1280, 640, P_WQKV, 64 * 3840)
    A(f"s_branch {pj}")
    A.label(zq)
    wp(24, 12, 6, 3072, 1536, 768, P_WIN, 64 * 3072)
    A.label(pj)
    A("v_cmp_gt_u32 vcc, 32, v0")
    A(f"v_cndmask_b32 v230, v232, v230, vcc")
    A(f"v_mov_b32 v231, s24\nv_mov_b32 v232, s{P_AX}\nv_cndmask_b32 v231, v231, v232, vcc")
    A(f"v_mov_b32 v233, s25\nv_mov_b32 v232, s{P_AX+1}\nv_cndmask_b32 v233, v233, v232, vcc")
    A(f"v_mov_b32 v238, s26\nv_mov_b32 v232, 128\nv_cndmask_b32 v238, v238, v232, vcc")
    A(f"v_add_co_u32 v{TA_}, vcc, v231, v230\nv_addc_co_u32 v{TA_+1}, vcc, 0, v233, vcc")
    A("v_cmp_gt_u32 s[90:91], s27, v0")

def ptouch(A):
    A(f"s_mov_b64 s[88:89], exec\ns_mov_b64 exec, s[90:91]")
    A(f"global_load_dword v254, v[{TA_}:{TA_+1}], off")
    A(f"v_add_co_u32 v{TA_}, vcc, v238, v{TA_}\nv_addc_co_u32 v{TA_+1}, vcc, 0, v{TA_+1}, vcc")
    A("s_mov_b64 exec, s[88:89]")

def ptouch_skip(A):
    A(f"v_add_co_u32 v{TA_}, vcc, v238, v{TA_}\nv_addc_co_u32 v{TA_+1}, vcc, 0, v{TA_+1}, vcc")

def touch_wsp(A):
    A(f"s_lshl_b32 s26, s{RB64}, 18\ns_lshl_b32 s27, s{CB}, 15\ns_add_u32 s26, s26, s27\ns_lshl_b32 s27, s3, 13\ns_add_u32 s26, s26, s27")
    make_srd(A, 28, P_WSP, 0, 2048 * 4096)
    A("v_lshlrev_b32 v240, 7, v0\nbuffer_load_dword v254, v240, s[28:31], s26 offen")

def touch_wsp_l2(A):
    A(f"s_lshl_b32 s24, s{RB64}, 18\ns_and_b32 s25, s{CB}, 3\ns_lshl_b32 s25, s25, 16\ns_add_u32 s24, s24, s25")
    make_srd(A, 92, P_WSP, 0, 2048 * 4096)
    A("s_sub_u32 s25, s3, 4\ns_lshl_b32 s25, s25, 7\nv_add_u32 v230, s25, v0")
    for j in range(2):
        A(f"v_add_u32 v231, {64*j}, v230\nv_and_b32 v232, 15, v231\nv_lshrrev_b32 v231, 4, v231\nv_lshlrev_b32 v231, 7, v231\nv_lshl_add_u32 v231, v232, 12, v231")
        A(f"buffer_load_dword v{233+j}, v231, s[92:95], s24 offen")

def touch_z(A, sc):
    A(f"s_mul_i32 s24, s5, 393216")
    make_srd(A, 92, P_WS, ZN_OFF, 393216, off_sgpr=24)
    A("s_and_b32 s24, s4, 7\ns_mul_i32 s24, s24, 768")
    A("s_sub_u32 s25, s3, 4\ns_lshl_b32 s25, s25, 6\nv_add_u32 v24, s25, v0")
    for j in range(2):
        A(f"v_add_u32 v25, {256*j}, v24")
        udiv_small(A, 25, 26, 27, 12, 25, 512)
        udiv_small(A, 27, 28, 29, 6, 25, 12)
        A("v_lshl_add_u32 v26, v28, 5, v26\ns_movk_i32 s25, 6144\nv_mul_u32_u24 v26, s25, v26\nv_lshl_add_u32 v26, v29, 7, v26")
        if j == 1: A("v_cmp_gt_u32 vcc, 384, v25\nv_cndmask_b32 v26, -1, v26, vcc")
        A(f"buffer_load_dword v{30+j}, v26, s[92:95], s24 offen {sc}")

def touch_wp(A, sc):
    A(f"s_mul_i32 s24, s5, {WP_CB}")
    make_srd(A, 92, P_WS, WP_OFF, WP_CB, off_sgpr=24)
    A("s_sub_u32 s25, s3, 4\ns_lshl_b32 s25, s25, 6\nv_add_u32 v230, s25, v0\nv_lshlrev_b32 v231, 3, v230\ns_and_b32 s24, s4, 7\nv_add_u32 v231, s24, v231\nv_lshlrev_b32 v231, 7, v231")
    A(f"buffer_load_dword v238, v231, s[92:95], 0 offen {sc}")

def touch_a3(A, sc, blk0, nblk):
    total = 4 * nblk * 8
    A(f"s_mul_i32 s24, s4, {4*44*1024}")
    make_srd(A, 92, P_WS, A3_OFF, 4 * 44 * 1024, off_sgpr=24)
    A("s_and_b32 s24, s5, 3")
    n = -(-total // 4 // 64)
    for j in range(n):
        A(f"v_add_u32 v230, {64*j}, v0\nv_lshlrev_b32 v230, 2, v230\nv_add_u32 v230, s24, v230")
        A(f"v_lshrrev_b32 v231, 5, v230\nv_bfe_u32 v232, v230, 3, 2\nv_and_b32 v233, 7, v230\nv_mul_u32_u24 v232, 44, v232\nv_add3_u32 v231, v231, v232, {blk0}\nv_lshlrev_b32 v231, 10, v231\nv_lshl_add_u32 v231, v233, 7, v231")
        A(f"v_cmp_gt_u32 vcc, {total}, v230\nv_cndmask_b32 v231, -1, v231, vcc")
        A(f"buffer_load_dword v{239+j}, v231, s[92:95], 0 offen {sc}")

def poison_h(A):
    A(f"s_lshl_b32 s26, s{RB64}, 2\ns_add_u32 s26, s26, s3\ns_sub_u32 s26, s26, 4\ns_mul_i32 s26, s26, 44\ns_mul_i32 s25, s{CB}, 3\ns_add_u32 s26, s26, s25\ns_add_u32 s26, s26, 20\ns_lshl_b32 s26, s26, 10")
    make_srd(A, 28, P_WS, A3_OFF, A3_SIZE)
    A("v_mov_b32 v20, -1\nv_mov_b32 v21, -1\nv_mov_b32 v22, -1\nv_mov_b32 v23, -1\nv_lshlrev_b32 v19, 4, v0")
    for j in range(3): A(f"buffer_store_dwordx4 v[20:23], v19, s[28:31], s26 offen offset:{j*1024} sc1")

def poison_z(A):
    A(f"s_mul_i32 s26, s5, 393216\ns_lshl_b32 s25, s4, 2\ns_sub_u32 s24, s3, 6\ns_lshl_b32 s24, s24, 1\ns_add_u32 s25, s25, s24\ns_mul_i32 s25, s25, 6144\ns_add_u32 s26, s26, s25")
    make_srd(A, 28, P_WS, ZN_OFF, 8 * 393216)
    A("v_mov_b32 v44, -1\nv_mov_b32 v45, -1\nv_mov_b32 v46, -1\nv_mov_b32 v47, -1\nv_lshlrev_b32 v43, 4, v0")
    for q in range(3):
        for j in range(4): A(f"buffer_store_dwordx4 v[44:47], v43, s[28:31], s26 offen offset:{j*1024} sc1")
        A("s_add_u32 s26, s26, 4096")

NV = [243]
def early_w(A, Q):
    p2.park_setup(A, RB64)
    A("s_sub_u32 s25, s3, 4\ns_lshl_b32 s25, s25, 11")
    for blk in (0, 4):
        slot = p2.W_SLOT_OF[blk]
        p2.blk_off(A, 26, blk)
        for part in range(4):
            for e in range(2):
                A(f"s_add_u32 m0, s25, {slot * p2.W_SLOT + (16 * part + 2 * e) * 512}\ns_add_u32 s24, s26, {part * 16 * 4096}")
                A(f"buffer_load_dwordx4 v{p2.PARK_VO+e}, s[40:43], s24 offen lds")
    Q.issue(("ew", 0), 16)

def tlb_warm(A, shift=16):
    jobs = [(P_WS, 0xF00000 + 0x100000, 0), (P_WS, 0xF00000 + 0x100000, 1), (P_WS, 0xF00000 + 0x100000, 2), (P_WS, 0xF00000 + 0x100000, 3),
            (P_WSP, 2048 * 4096, 0), (P_WSP, 2048 * 4096, 1), (P_OUT, 2048 * 1280, 0), (P_WO, 640 * 1280, 0), (P_WOUT, 768 * 1280, 0),
            (P_AX, 2048 * 1280, 0), (P_WQKV, 640 * 3840, 0), (P_WIN, 640 * 3072, 0)]
    end = A.newlabel("Ltlbe")
    A(f"s_lshr_b32 s26, s2, 3\nv_lshlrev_b32 v240, {shift}, v0")
    for j, (ptr, size, part) in enumerate(jobs):
        nx = A.newlabel("Ltlb")
        A(f"s_cmp_lg_u32 s26, {j}\ns_cbranch_scc1 {nx}")
        make_srd(A, 8, ptr, 0, size)
        A(f"s_mov_b32 s27, {part * 64 << shift}\nbuffer_load_dword v254, v240, s[8:11], s27 offen\ns_branch {end}")
        A.label(nx)
    A.label(end)

def nonce_issue(A):
    make_srd(A, 28, P_DBG, 0, 256)
    A(f"v_mov_b32 v{NV[0]}, 0\nbuffer_load_dword v{NV[0]+1}, v{NV[0]}, s[28:31], 0 offen sc1")

def nonce_take(A):
    ok = A.newlabel("Lnok")
    A(f"s_waitcnt vmcnt(0)\nv_readfirstlane_b32 s{NONCE}, v{NV[0]+1}\ns_cmp_lg_u32 s{NONCE}, 0\ns_cbranch_scc1 {ok}")
    get_nonce(A, NONCE)
    A.label(ok)

def code_prefetch(A, nbytes):
    lines = -(-nbytes // 128)
    per = -(-lines // 32)
    assert per <= 64
    pc = A.newlabel("Lpc")
    A("s_getpc_b64 s[16:17]")
    A.label(pc)
    A(f"s_sub_u32 s16, s16, {pc}-{NAME}_kernel\ns_subb_u32 s17, s17, 0")
    A(f"s_lshr_b32 s18, s2, 3\ns_mul_i32 s18, s18, {per*128}\nv_lshlrev_b32 v240, 7, v0\nv_add_u32 v240, s18, v240")
    A(f"v_cmp_gt_u32 vcc, {per}, v0\ns_and_saveexec_b64 s[18:19], vcc")
    A(f"v_min_u32 v240, {nbytes - 4}, v240\nglobal_load_dword v255, v240, s[16:17]\ns_mov_b64 exec, s[18:19]")

DBGT = "dbgt" in sys.argv
def dbg_time(A, idx, neg=False):
    if not DBGT or neg: return
    l = A.newlabel("Ldt")
    A(f"s_cmp_lg_u32 s3, 0\ns_cbranch_scc1 {l}\ns_and_b32 s32, s2, 0xfffffffb\ns_cmp_lg_u32 s32, 0\ns_cbranch_scc1 {l}")
    make_srd(A, 28, P_DBG, 0, 256)
    A(f"s_mul_i32 s34, s2, 7\ns_add_u32 s34, s34, {idx*4}")
    A("s_memrealtime s[32:33]\ns_waitcnt lgkmcnt(0)")
    A(f"s_mov_b64 vcc, exec\ns_mov_b64 exec, 1\nv_mov_b32 v252, 0\nv_mov_b32 v253, s32\nbuffer_store_dword v253, v252, s[28:31], s34 offen\ns_mov_b64 exec, vcc")
    A.label(l)

ST0 = "st0" in sys.argv
def st0(A, i):
    if ST0: A(f"s_memrealtime s[{64+2*i}:{65+2*i}]")
def st0_dump(A):
    if not ST0: return
    l = A.newlabel("Lst0")
    A(f"s_and_b32 s32, s2, 0xfffffffb\ns_cmp_lg_u32 s32, 0\ns_cbranch_scc1 {l}\ns_cmp_lg_u32 s3, 4\ns_cbranch_scc1 {l}")
    make_srd(A, 28, P_DBG, 0, 256)
    A("s_waitcnt lgkmcnt(0)\ns_mul_i32 s34, s2, 7\ns_add_u32 s34, s34, 4\nv_mov_b32 v252, 0\ns_mov_b64 exec, 1")
    for i in range(6): A(f"v_mov_b32 v253, s{64+2*i}\nbuffer_store_dword v253, v252, s[28:31], s34 offen offset:{4*i}")
    A("s_waitcnt vmcnt(0)")
    A.label(l)

def gen(opts):
    A = Asm()
    kstart = A.newlabel("Lkstart")
    st0(A, 0)
    end = prologue(A, codepf=opts.get('codepf', 0) if opts.get('earlycode', True) else 0, kname=NAME + '_kernel')
    st0(A, 1)
    stamp(A, 0); stamp(A, 5, cyc=True)
    dbg_time(A, 1)
    A("s_mov_b32 s99, 4096")
    p2.wg_map_p23(A)
    A(f"s_mov_b32 s{RB64}, s4\ns_mov_b32 s{CB}, s5")
    wg_map_p1(A)
    p1.rot_setup(A)
    p2.rot2_setup(A, ('rot2' in sys.argv) and not opts.get('park', True))
    def T0():
        pass
    def preb0(A):
        if opts.get("touch") == "bulk" and opts.get("half"): touch_half(A, 0); return
        if opts.get("touch") == "bulk" and opts.get("latetouch"): touch_bulk(A, 2 if opts.get("split") else 3)
    PK = opts.get("park", True)
    def park_each_q(A, Q, u):
        if not PK: return
        if u == 7: p2.park_setup(A, RB64)
        if u >= 8:
            for j in range(2): p2.park_load(A, 2 * (u - 8) + j)
            Q.issue(("pk", u), 2)
    def park_tail(n0):
        if not PK: return
        for i in range(n0, 40): p2.park_load(A, i)
    def park_each_z(A, Q, st):
        if not PK: return
        if st == 5: p2.park_setup(A, RB64)
        if st >= 6:
            lo = 3 * (st - 6); hi = min(40, lo + 3)
            for i in range(lo, hi): p2.park_load(A, i)
            if hi > lo: Q.issue(("pk", st), hi - lo)
    def iter_hook(A):
        if opts.get("touch") == "bulk" and opts.get("half"):
            l = A.newlabel("Lsp"); A(f"s_cmp_lg_u32 s24, 1\ns_cbranch_scc1 {l}"); touch_half(A, 1); A.label(l)
            return
        if opts.get("touch") == "bulk" and opts.get("split"):
            l = A.newlabel("Lsp"); A(f"s_cmp_lg_u32 s24, 0\ns_cbranch_scc1 {l}"); touch_bulk(A, 1); A.label(l)
        if opts.get("touch") != "paced": return
        l = A.newlabel("Lit")
        A(f"s_cmp_lg_u32 s3, 0\ns_cbranch_scc1 {l}\ns_cmp_ge_u32 s24, {9 - PLEAD}\ns_cbranch_scc1 {l}")
        ptouch(A)
        A.label(l)
    def mid_hook(A):
        if opts.get("touch", True): touch_wsp(A)
        nonce_issue(A)
    P1EXIT = A.newlabel("Lp1exit")
    P2 = A.newlabel("LP2")
    zrole_l = A.newlabel("Lz_role")
    SC = "sc1"
    notc = A.newlabel("Lnotc")
    A(f"s_cmp_ge_u32 s3, 4\ns_cbranch_scc1 {notc}")
    pub = A.newlabel("Lpub")
    A(f"s_lshl_b32 s16, s2, 3\ns_add_u32 s16, s16, s3\ns_cmp_lg_u32 s16, 3\ns_cbranch_scc1 {pub}")
    publish_nonce(A)
    A.label(pub)
    if opts.get("touch") == "bulk" and not opts.get("latetouch"): touch_bulk(A)
    if opts.get("touch") == "paced":
        w0 = A.newlabel("Lw0")
        A(f"v_mov_b32 v{TA_}, s{P_AX}\nv_mov_b32 v{TA_+1}, s{P_AX+1}\nv_mov_b32 v238, 0\ns_mov_b64 s[90:91], 1")
        A(f"s_cmp_lg_u32 s3, 0\ns_cbranch_scc1 {w0}")
        ptouch_setup(A)
        ptouch_skip(A)
        for _ in range(PLEAD): ptouch(A)
        A.label(w0)
    if opts.get("tlb"):
        w2 = A.newlabel("Lw2"); A(f"s_cmp_lg_u32 s3, 2\ns_cbranch_scc1 {w2}"); tlb_warm(A); A.label(w2)
    w3 = A.newlabel("Lw3")
    A(f"s_cmp_lg_u32 s3, 3\ns_cbranch_scc1 {w3}")
    if opts.get("codepf", 0) and not opts.get("earlycode", True): code_prefetch(A, opts["codepf"])
    A.label(w3)
    A.label(notc)
    A(f"s_cmp_eq_u32 s6, 1\ns_cbranch_scc1 {zrole_l}")
    lw = A.newlabel("Lq_w"); lx = A.newlabel("Lq_x"); att = A.newlabel("Lq_att"); ldj = A.newlabel("Lq_ldj")
    A(f"s_cmp_eq_u32 s3, 7\ns_cbranch_scc1 {lx}\ns_cmp_ge_u32 s3, 4\ns_cbranch_scc1 {lw}")
    qkv_consumer(A)
    wg3 = A.newlabel("Lq_c3")
    A(f"s_cmp_eq_u32 s3, 3\ns_cbranch_scc1 {wg3}")
    for gate in (False, True):
        if gate: A.label(wg3)
        qkv_main(A, gate, mid=mid_hook, it_hook=iter_hook, b0hook=lambda A: dbg_time(A, 2), preb0=preb0)
        dbg_time(A, 3)
        stamp(A, 3)
        nonce_take(A)
        qkv_epilogue_store(A, gate)
        A(f"s_waitcnt lgkmcnt(0)\ns_barrier\ns_branch {att}")
    A.label(lw)
    st0(A, 2)
    TV[0] = 12; NV[0] = 14
    w_loader(A, QKV, late=nonce_issue, pre=T0, early=lambda: pack_issue(A), each=park_each_q)
    nonce_take(A)
    pack_finish(A, SC, lazy=True)
    A(f"s_branch {ldj}")
    A.label(lx)
    A("s_mov_b32 s27, 999")
    x_loader(A, QKV, late=nonce_issue, pre=T0, each=park_each_q)
    nonce_take(A)
    A.label(ldj)
    A("s_barrier")
    if not opts.get("latew"):
        p2.p2l_setup(A, RB64)
        p2.p2l_issue(A, 0); p2.p2l_issue(A, 4)
    park_tail(24)
    TV[0] = 250; NV[0] = 243
    A.label(att)
    stamp(A, 7)
    attention(A, SC)
    A("s_barrier")
    A(f"s_lshl_b32 s16, s4, 7\ns_lshl_b32 s17, s5, 2\ns_add_u32 s16, s16, s17\ns_add_u32 s{LAZY}, s16, {OF_OFF}")
    A(f"s_branch {P2}")
    def gen_z_onepass():
        A.label(zrole_l)
        zld = A.newlabel("Lz_ld")
        A(f"s_cmp_ge_u32 s3, 4\ns_cbranch_scc1 {zld}")
        z1p.consumer(A, mid=mid_hook, b0hook=lambda A: dbg_time(A, 2))
        stamp(A, 3)
        nonce_take(A)
        zrole.z_epi_stats(A)
        A("s_barrier")
        zrole.z_epi_z1(A, SC)
        stamp(A, 7)
        A("s_barrier")
        zrole.z_epi_norm(A, SC)
        A("s_barrier")
        A(f"s_branch {P2}")
        A.label(zld)
        TV[0] = 12; NV[0] = 22
        A("s_mov_b32 s27, 999")
        def st4(A, Q):
            nonce_issue(A); Q.issue(("n", 0), 1)
        z1p.loader(A, hooks_w={"early": lambda A, Q: pack_issue(A), 4: st4},
                   hooks_x={2: lambda A, Q: (poison_z(A), Q.issue(("pz", 0), 12)), 4: st4})
        nonce_take(A)
        A("s_barrier")
        xw = A.newlabel("Lzxw")
        A(f"s_cmp_ge_u32 s3, 6\ns_cbranch_scc1 {xw}")
        zrole.z_publish_stats(A, NONCE)
        zrole.z_gather_issue(A)
        pack_finish(A, SC, lazy=True)
        zrole.z_gather_finish(A, NONCE, SPIN_MAX)
        A.label(xw)
        A("s_barrier")
        A("s_barrier")
        p2.p2l_setup(A, RB64)
        p2.p2l_issue(A, 0); p2.p2l_issue(A, 4)
        A(f"s_lshl_b32 s16, s4, 5\ns_lshl_b32 s17, s5, 2\ns_add_u32 s16, s16, s17\ns_add_u32 s{LAZY}, s16, {Z1F_OFF}")

    def gen_z_twopass():
        A.label(zrole_l)
        EN = opts.get('earlynorm', True)
        def nonce_take_noop(A): pass
        zld = A.newlabel("Lz_ld")
        A(f"s_cmp_ge_u32 s3, 4\ns_cbranch_scc1 {zld}")
        def between(A):
            zrole.z_epi_stats(A)
            A("s_barrier")
        zrole.z_consumer(A, mid=mid_hook, between=between, it_hook=iter_hook, b0hook=lambda A: dbg_time(A, 2), preb0=preb0,
                         p2hook=(lambda A: (nonce_take_noop(A), zrole.z_epi_norm(A, SC, ST=192, OB=224))) if EN else None, p2iter=6)
        dbg_time(A, 3)
        stamp(A, 7)
        nonce_take(A)
        A("s_barrier")
        if not EN: zrole.z_epi_norm(A, SC)
        A("s_barrier")
        zrole.z_epi_z1(A, SC)
        A(f"s_branch {P2}")
        A.label(zld)
        st0(A, 2)
        TV[0] = 12; NV[0] = 14
        pk = A.newlabel("Lzpk")
        A("s_mov_b32 s27, 999")
        def st4(A, Q):
            nonce_issue(A); Q.issue(("n", 0), 1)
        def after_z1(A, Q):
            n = Q.wait_for({("n", 0)})
            ok = A.newlabel("Lnok")
            A(f"s_waitcnt vmcnt({n})\nv_readfirstlane_b32 s{NONCE}, v{NV[0]+1}\ns_cmp_lg_u32 s{NONCE}, 0\ns_cbranch_scc1 {ok}")
            get_nonce(A, NONCE)
            A.label(ok)
            Q.retire(n)
            zrole.z_publish_stats(A, NONCE); Q.issue(("s", 0), 1)
            pack_finish(A, SC, lazy=True)
        def pre_last(A, Q):
            if not EN: zrole.z_gather_issue(A); Q.issue(("g", 0), 8)
        def g_issue(A, Q):
            if EN: zrole.z_gather_issue(A); Q.issue(("g", 0), 8)
        def g_finish(A, Q):
            if EN: zrole.z_gather_finish(A, NONCE, SPIN_MAX); Q.q.clear()
        zrole.z_loader(A, late=None, hooks={"st4": st4, "after_z1": after_z1, "pre_last": pre_last, ("st", 12): g_issue, ("st", 14): g_finish, "st13": early_w, "each": park_each_z, "early": lambda A, Q: pack_issue(A)}, pre=T0, xhooks={"each": park_each_z, "st13": early_w, "st2": lambda A, Q: (poison_z(A), Q.issue(("pz", 0), 12))})
        xw = A.newlabel("Lzxw"); xj = A.newlabel("Lzxj")
        A(f"s_cmp_ge_u32 s3, 6\ns_cbranch_scc1 {xw}")
        if not EN: zrole.z_gather_finish(A, NONCE, SPIN_MAX)
        A(f"s_branch {xj}")
        A.label(xw)
        nonce_issue(A); nonce_take(A)
        A.label(xj)
        A("s_barrier")
        A("s_barrier")
        A(f"s_lshl_b32 s16, s4, 5\ns_lshl_b32 s17, s5, 2\ns_add_u32 s16, s16, s17\ns_add_u32 s{LAZY}, s16, {Z1F_OFF}")

    if opts.get('onepass'):
        gen_z_onepass()
    else:
        gen_z_twopass()
    TV[0] = 250; NV[0] = 243
    A.label(P2)
    dbg_time(A, 4)
    if not p1.FINE: stamp(A, 8)
    if opts.get("p1only"):
        A(f"s_waitcnt vmcnt(0)\ns_branch {P1EXIT}")
    A(f"s_mov_b32 s4, s{RB64}\ns_mov_b32 s5, s{CB}")
    if "small2" in sys.argv: A(f"s_and_b32 s4, s4, 1\ns_and_b32 s5, s5, 1\ns_and_b32 s{RB64}, s{RB64}, 1")
    ld2 = A.newlabel("Lp2ld"); fin = A.newlabel("Lfin")
    A(f"s_cmp_ge_u32 s3, 4\ns_cbranch_scc1 {ld2}")
    stamp(A, 9)
    p2.p2_consumer(A, sc_st=SC, sc_ld=opts.get('scld', SC), lazy_z1=True, last_hook=lambda: p3.p3_early(A, 4, opts.get('scld', SC)), last_n=10, poison=True)
    stamp(A, 10)
    dbg_time(A, 5)
    def hflag_c():
        A(f"s_lshl_b32 s26, s4, 7\ns_lshl_b32 s27, s5, 4\ns_add_u32 s26, s26, s27\ns_lshl_b32 s27, s3, 2\ns_add_u32 s26, s26, s27\ns_add_u32 s26, s26, {HF_OFF}")
        set_flag(A, 26)
    p3.p3_consumer(A, sc_ld=opts.get('scld', SC), drain0=True, early_done=True, poison=True)
    A("s_waitcnt vmcnt(0)")
    A(f"s_branch {fin}")
    A.label(ld2)
    TV[0] = 12; NV[0] = 14
    def pf_wait():
        A(f"s_lshl_b32 s21, s5, 8\ns_add_u32 s21, s21, {PF_OFF}")
        wait_flags(A, 21, 44)
    def only(wave, fn):
        l = A.newlabel("Lonly"); A(f"s_cmp_lg_u32 s3, {wave}\ns_cbranch_scc1 {l}"); fn(); A.label(l)
    def lazy(): set_flag(A, LAZY)
    T2 = opts.get("touch2", True)
    def z1off(): A(f"s_lshr_b32 s21, s4, 1\ns_lshl_b32 s21, s21, 5\ns_lshl_b32 s19, s5, 2\ns_add_u32 s21, s21, s19\ns_add_u32 s21, s21, {Z1F_OFF}")
    def ooff(): A(f"s_lshr_b32 s21, s4, 1\ns_lshl_b32 s21, s21, 7\ns_add_u32 s21, s21, {OF_OFF}")
    def hoff(): A(f"s_lshl_b32 s21, s4, 7\ns_add_u32 s21, s21, {HF_OFF}")
    def start2():
        if opts.get("latew"):
            lq = A.newlabel("Llw"); A(f"s_cmp_lg_u32 s6, 0\ns_cbranch_scc1 {lq}")
            p2.p2l_issue(A, 0); p2.p2l_issue(A, 4)
            A.label(lq)
        pk = A.newlabel("Lpkf")
        A(f"s_cmp_ge_u32 s27, 352\ns_cbranch_scc1 {pk}")
        pack_flag(A)
        A.label(pk)
        if T2:
            touch_z(A, opts.get('sctouch', SC))
        poison_h(A)
    def post_b1():
        only(4, lazy)
    def post_b2():
        only(5, lambda: (z1off(), poll_issue(A, 21, 1, 16)))
        only(6, lambda: (ooff(), poll_issue(A, 21, 8, 16)))
        A(f"s_lshl_b32 s21, s5, 8\ns_add_u32 s21, s21, {PF_OFF}")
        poll_issue(A, 21, 44, 17)
    def pre_b3():
        A("s_waitcnt vmcnt(0)")
        only(5, lambda: (z1off(), poll_check(A, 21, 1, 16)))
        only(6, lambda: (ooff(), poll_check(A, 21, 8, 16)))
        A(f"s_lshl_b32 s21, s5, 8\ns_add_u32 s21, s21, {PF_OFF}")
        poll_check(A, 21, 44, 17)
    def hflag():
        A(f"s_lshl_b32 s21, s4, 7\ns_lshl_b32 s19, s5, 2\ns_add_u32 s21, s21, s19\ns_add_u32 s21, s21, {HF_OFF}")
        set_flag(A, 21)
    hooks = {"park": PK, "start": start2, "post_b1": post_b1, "post_b2": post_b2, "before_b3": pre_b3}
    hooks3 = {}
    p2.p2_loader_rest(A, RB64, opts.get('scld', SC), hooks, hooks3)
    A.label(fin)
    A.label(P1EXIT)
    st0(A, 5); st0_dump(A)
    dbg_time(A, 6)
    stamp(A, 4); stamp(A, 6, cyc=True)
    dump_stamps(A, 14)
    A.label(end)
    A("s_endpgm")
    txt = A.text(verbose=True)
    return txt.replace("SC_ST", SC)

def pack_flag_factory(A):
    pass

def pack_flag(A):
    A(f"s_and_b32 s16, s27, 7\ns_lshl_b32 s16, s16, 8\ns_lshr_b32 s17, s27, 3\ns_lshl_b32 s17, s17, 2\ns_add_u32 s16, s16, s17\ns_add_u32 s16, s16, {PF_OFF}")
    set_flag(A, 16)

if __name__ == "__main__":
    common.set_profile("prof" in sys.argv)
    opts = {"touch": (False if "notouch" in sys.argv else "paced" if "paced" in sys.argv else "bulk" if "bulk" in sys.argv else "none1"), "p1only": "p1only" in sys.argv, "touch2": "touch2" in sys.argv, "park": "park" in sys.argv}
    if "plainld" in sys.argv: opts["scld"] = ""
    opts["delay2"] = "delay2" in sys.argv
    opts["earlycode"] = "earlycode" in sys.argv
    opts["latew"] = "latew" in sys.argv
    opts["onepass"] = "onepass" in sys.argv
    opts["earlynorm"] = "earlynorm" in sys.argv
    opts["tlb"] = "tlb" in sys.argv
    opts["half"] = "half" in sys.argv
    opts["split"] = "split" in sys.argv
    opts["latetouch"] = "earlytouch" not in sys.argv
    if "plaintouch" in sys.argv: opts["sctouch"] = ""
    body = gen(opts)
    if "nocodepf" not in sys.argv:
        import subprocess
        tmp = build_file([(NAME + "_kernel", body, 256, 102, 256)], [(NAME + "_kernel", 256, 512, LDS_MAX)])
        open("_tmp.s", "w").write(tmp)
        subprocess.run(["clang", "-x", "assembler", "-target", "amdgcn-amd-amdhsa", "-mcpu=gfx950", "-c", "_tmp.s", "-o", "_tmp.o"], check=True)
        out = subprocess.run(["llvm-readelf", "-S", "_tmp.o"], capture_output=True, text=True).stdout
        size = [int(l.split("PROGBITS")[1].split()[2], 16) for l in out.splitlines() if ".text" in l][0]
        opts["codepf"] = size - 256
        body = gen(opts)
        print("code bytes", size)
    txt = build_file([(NAME + "_kernel", body, 256, 102, 256)], [(NAME + "_kernel", 256, 512, LDS_MAX)])
    open(sys.argv[1], "w").write(txt)
```

```python
from common import *

FINE = 'fine' in sys.argv
NOLOAD = 'noload' in sys.argv
NOBAR = 'nobar' in sys.argv
NSUB = 20
MIXED = 'mixed' in sys.argv
ROT = 'norot' not in sys.argv
S_V0 = 7
def rot_setup(A):
    if not ROT:
        A('s_mov_b32 s7, 0'); return
    A('s_lshr_b32 s7, s2, 5\ns_and_b32 s7, s7, 7\ns_lshr_b32 s16, s2, 3\ns_and_b32 s16, s16, 3\ns_mul_i32 s16, s16, 3\ns_add_u32 s7, s7, s16\ns_cmp_ge_u32 s7, 10\ns_cselect_b32 s16, 10, 0\ns_sub_u32 s7, s7, s16')

def wg_map_p1(A):
    if MIXED:
        A("""
        s_and_b32 s6, s2, 7
        s_lshr_b32 s7, s2, 3
        s_lshr_b32 s4, s6, 1
        s_lshl_b32 s4, s4, 2
        s_lshr_b32 s5, s7, 2
        s_and_b32 s5, s5, 3
        s_add_u32 s4, s4, s5
        s_and_b32 s5, s6, 1
        s_lshl_b32 s5, s5, 2
        s_and_b32 s6, s7, 3
        s_add_u32 s5, s5, s6
        s_lshr_b32 s6, s7, 4
        """)
        return
    A("""
    s_and_b32 s6, s2, 7
    s_lshr_b32 s7, s2, 3
    s_and_b32 s4, s6, 2
    s_lshl_b32 s4, s4, 2
    s_lshr_b32 s5, s7, 2
    s_add_u32 s4, s4, s5
    s_and_b32 s5, s6, 1
    s_lshl_b32 s5, s5, 2
    s_and_b32 s7, s7, 3
    s_add_u32 s5, s5, s7
    s_lshr_b32 s6, s6, 2
    """)

def udiv_small(A, q, d, r, n, tmp_s, qmax):
    for sh in range(10, 24):
        m = -(-(1 << sh) // n)
        if all((x * m) >> sh == x // n for x in range(qmax)) and m * qmax < (1 << 32) and m < (1 << 24): break
    else: raise ValueError
    A(f"s_mov_b32 s{tmp_s}, {m}")
    A(f"v_mul_u32_u24 v{d}, s{tmp_s}, v{q}")
    A(f"v_lshrrev_b32 v{d}, {sh}, v{d}")
    A(f"v_mul_u32_u24 v{r}, {n}, v{d}")
    A(f"v_sub_u32 v{r}, v{q}, v{r}")

class Role:
    pass
QKV = Role(); QKV.name = "qkv"
QKV.W_SLOT = 18432; QKV.NW = 5; QKV.W_RING = 0
QKV.X_SLOT = 18432; QKV.NX = 3; QKV.X_RING = 92160; QKV.MT = 9
QKV.WI = 6
QKV.GATE = 147456
Z = Role(); Z.name = "z"
Z.W_SLOT = 12288; Z.NW = 6; Z.W_RING = 0
Z.X_SLOT = 16384; Z.NX = 3; Z.X_RING = 73728; Z.MT = 8
Z.WI = 4

def barrier_plan_loader(R, A, issue, Q, tags_needed, late=None, each=None):
    for u in range(NSUB):
        n = Q.wait_for(tags_needed(u))
        if FINE and u in (9, 10): stamp(A, 8 + 3 * (u - 9), cyc=True)
        A(f"s_waitcnt vmcnt({min(n, 63)})"); Q.retire(min(n, 63))
        if FINE and u in (9, 10): stamp(A, 9 + 3 * (u - 9), cyc=True)
        if not (NOBAR and R is QKV and u > 0): A("s_barrier")
        if FINE and u in (9, 10): stamp(A, 10 + 3 * (u - 9), cyc=True)
        if u == 0: stamp(A, 2)
        if u == 0 and 'st0' in sys.argv: A("s_memrealtime s[72:73]")
        issue(u)
        if each: each(A, Q, u)
        if late and u == NSUB - 1: late(A)

def w_loader(A, R, late=None, pre=None, early=None, each=None):
    SRD = 8
    A("s_sub_u32 s16, s3, 4")
    if R is QKV:
        make_srd(A, SRD, P_WQKV, 0, 640 * 3840)
        A("s_mul_i32 s17, s5, 160\ns_and_b32 s18, s5, 1\ns_lshl_b32 s18, s18, 5\ns_sub_u32 s17, s17, s18")
        rowc, rs_src = 36, 3840
    else:
        make_srd(A, SRD, P_WIN, 0, 640 * 3072)
        A("s_mul_i32 s17, s5, 192")
        rowc, rs_src = 24, 3072
    VO = 2
    A(f"s_mul_i32 s18, s16, {R.WI * 1024}\ns_lshl_b32 s21, s7, 1\ns_mul_i32 s20, s21, {32 * rs_src}\ns_add_u32 s21, s21, 1\ns_cmp_eq_u32 s21, 20\ns_cselect_b32 s21, 0, s21")
    A(f"s_mul_i32 s23, s16, {64 * R.WI}")
    for e in range(R.WI):
        A(f"s_add_u32 s22, s23, {64 * e}\nv_add_u32 v12, s22, v0")
        udiv_small(A, 12, 13, 14, rowc, 19, 64 * R.WI * 3)
        if R is QKV:
            A("v_lshrrev_b32 v15, 2, v13\nv_and_b32 v15, 2, v15\nv_xor_b32 v14, v14, v15")
            udiv_small(A, 14, 15, 16, 12, 19, 36)
            A(f"s_movk_i32 s19, 1280\nv_mul_u32_u24 v15, s19, v15\nv_lshl_add_u32 v15, v16, 4, v15")
        else:
            A("""
            v_and_b32 v15, 2, v13
            v_lshrrev_b32 v16, 1, v13
            v_and_b32 v16, 4, v16
            v_or_b32 v15, v15, v16
            v_xor_b32 v14, v14, v15
            """)
            udiv_small(A, 14, 15, 16, 12, 19, 24)
            A(f"s_movk_i32 s19, 1536\nv_mul_u32_u24 v15, s19, v15\nv_lshl_add_u32 v15, v16, 4, v15")
        A(f"s_movk_i32 s19, {rs_src}\nv_mul_u32_u24 v13, s19, v13\nv_add3_u32 v{VO+e}, v13, v15, s17")
        A(f"s_add_u32 m0, s18, {R.W_RING + e * 1024}\nbuffer_load_dwordx4 v{VO+e}, s[{SRD}:{SRD+3}], s20 offen lds")
    Q = VmQueue()
    Q.issue(("w", 0), R.WI)
    def issue_w(u):
        A(f"s_mul_i32 s20, s21, {32 * rs_src}\ns_add_u32 s21, s21, 1\ns_cmp_eq_u32 s21, 20\ns_cselect_b32 s21, 0, s21")
        for e in range(R.WI):
            A(f"s_add_u32 m0, s18, {R.W_RING + (u % R.NW) * R.W_SLOT + e * 1024}")
            if not NOLOAD or u < 5: A(f"buffer_load_dwordx4 v{VO+e}, s[{SRD}:{SRD+3}], s20 offen lds")
        Q.issue(("w", u), R.WI)
    if pre: pre()
    if 'st0' in sys.argv: A("s_memrealtime s[70:71]")
    issue_w(1)
    if early: early()
    stamp(A, 1)
    st = {"n": 2}
    def issue(u):
        lim = min(NSUB, max(R.NW, u - 1 + R.NW)); c = 0
        while st["n"] < lim and c < 2:
            issue_w(st["n"]); st["n"] += 1; c += 1
    barrier_plan_loader(R, A, issue, Q, lambda u: {("w", u)}, late, each)

PACK_LDS = 149504
def pack_issue(A):
    skip = A.newlabel("Lpk")
    A("s_sub_u32 s27, s3, 4\ns_lshl_b32 s27, s27, 8\ns_add_u32 s27, s27, s2")
    A(f"s_cmp_ge_u32 s27, 352\ns_cbranch_scc1 {skip}")
    A("s_and_b32 s32, s27, 7\ns_lshr_b32 s33, s27, 3")
    A(f"s_cmp_lt_u32 s33, 20\ns_cselect_b32 s28, s{P_WO}, s{P_WOUT}\ns_cselect_b32 s29, s{P_WO+1}, s{P_WOUT+1}\ns_cselect_b32 s34, 0, 20")
    A(f"s_mov_b32 s30, {768*1280}\ns_cselect_b32 s30, {640*1280}, s30\ns_mov_b32 s31, 0x00020000")
    A("s_sub_u32 s34, s33, s34\ns_mul_i32 s34, s34, 40960")
    A("s_mul_i32 s35, s32, 160\ns_and_b32 s32, s32, 1\ns_lshl_b32 s32, s32, 5\ns_sub_u32 s35, s35, s32\ns_add_u32 s34, s34, s35")
    A(f"s_sub_u32 s35, s3, 4\ns_mul_i32 s35, s35, 6144\ns_add_u32 s35, s35, {PACK_LDS}")
    for e in range(6):
        A(f"v_add_u32 v17, {64*e}, v0")
        udiv_small(A, 17, 18, 19, 12, 32, 384)
        A(f"s_movk_i32 s32, 1280\nv_mul_u32_u24 v18, s32, v18\nv_lshl_add_u32 v18, v19, 4, v18")
        A(f"s_add_u32 m0, s35, {e*1024}\nbuffer_load_dwordx4 v18, s[28:31], s34 offen lds")
    A.label(skip)

def pack_finish(A, sc_st="", flag=None, lazy=False):
    skip = A.newlabel("Lpf")
    A(f"s_cmp_ge_u32 s27, 352\ns_cbranch_scc1 {skip}")
    if not lazy: A("s_waitcnt vmcnt(0)")
    A("s_and_b32 s32, s27, 7\ns_lshr_b32 s33, s27, 3")
    A("""
    v_and_b32 v17, 15, v0
    v_lshrrev_b32 v18, 4, v0
    v_lshrrev_b32 v19, 2, v17
    v_and_b32 v20, 3, v17
    s_cmp_lt_u32 s33, 20
    s_cselect_b32 s34, 3, 2
    s_cselect_b32 s35, 4, 16
    v_lshlrev_b32 v18, s34, v18
    v_add_u32 v18, v18, v19
    v_mul_u32_u24 v18, 192, v18
    v_lshl_add_u32 v18, v20, 3, v18
    s_and_b32 s32, s27, 1
    s_lshl_b32 s32, s32, 5
    """)
    A(f"s_sub_u32 s34, s3, 4\ns_mul_i32 s34, s34, 6144\ns_add_u32 s34, s34, {PACK_LDS}\ns_add_u32 s34, s34, s32")
    A("v_add_u32 v18, s34, v18\ns_mul_i32 s35, s35, 192\nv_add_u32 v19, s35, v18")
    for nu in range(5):
        A(f"ds_read_b64_tr_b16 v[{24+4*nu}:{25+4*nu}], v18 offset:{nu*32}\nds_read_b64_tr_b16 v[{26+4*nu}:{27+4*nu}], v19 offset:{nu*32}")
    A("s_and_b32 s32, s27, 7\ns_mul_i32 s32, s32, 44\ns_add_u32 s32, s32, s33\ns_mul_i32 s32, s32, 5120")
    make_srd(A, 28, P_WS, WP_OFF, 8 * WP_CB)
    A("v_lshlrev_b32 v20, 4, v0\ns_waitcnt lgkmcnt(0)")
    for nu in range(5):
        A(f"s_add_u32 s33, s32, {nu*1024}\nbuffer_store_dwordx4 v[{24+4*nu}:{27+4*nu}], v20, s[28:31], s33 offen {sc_st}")
    if not lazy: A("s_waitcnt vmcnt(0)")
    if flag: flag()
    A.label(skip)

def x_loader(A, R, late=None, pre=None, each=None):
    SRD = 8
    make_srd(A, SRD, P_AX, 0, 2048 * 1280)
    NI = 2 * R.MT
    A("""
    v_lshrrev_b32 v4, 3, v0
    v_and_b32 v5, 7, v0
    v_lshrrev_b32 v6, 1, v4
    v_xor_b32 v7, v5, v6
    s_movk_i32 s19, 1280
    v_mul_u32_u24 v8, s19, v4
    v_lshl_add_u32 v2, v7, 4, v8
    v_xor_b32 v7, 4, v7
    v_lshl_add_u32 v3, v7, 4, v8
    v_add_u32 v3, 10240, v3
    """)
    if R is QKV:
        A("s_lshl_b32 s17, s4, 7\ns_sub_u32 s17, s17, 16")
        A("""
        v_add_u32 v11, s17, v4
        v_max_i32 v11, 0, v11
        v_mul_u32_u24 v11, s19, v11
        v_xor_b32 v7, v5, v6
        v_lshl_add_u32 v9, v7, 4, v11
        v_add_u32 v11, s17, v4
        v_add_u32 v11, 8, v11
        v_max_i32 v11, 0, v11
        v_mul_u32_u24 v11, s19, v11
        v_xor_b32 v7, 4, v7
        v_lshl_add_u32 v10, v7, 4, v11
        """)
        A("s_mul_i32 s17, s17, 1280")
        if pre: pre()
        make_srd(A, 12, P_GATE, 0, 1280)
        A(f"v_lshlrev_b32 v12, 4, v0\ns_mov_b32 m0, {R.GATE}\ns_nop 0\nbuffer_load_dwordx4 v12, s[12:15], 0 offen lds\nbuffer_load_dwordx4 v12, s[12:15], 0 offen offset:1024 lds")
    else:
        A("s_lshl_b32 s17, s4, 7\ns_mul_i32 s17, s17, 1280")
    Q = VmQueue()
    if R is QKV: Q.issue(("g", 0), 2)
    A("s_mov_b32 s22, s7")
    def issue_x(vs, e0, e1):
        if e0 == 0:
            A("s_lshl_b32 s23, s22, 7\ns_add_u32 s22, s22, 1\ns_cmp_eq_u32 s22, 10\ns_cselect_b32 s22, 0, s22")
        for e in range(e0, e1):
            A(f"s_add_u32 m0, s21, {e * 1024}" if False else f"s_mov_b32 m0, {R.X_RING + (vs % R.NX) * R.X_SLOT + e * 1024}")
            if R is QKV and e < 2:
                A(f"buffer_load_dwordx4 v{9+e}, s[{SRD}:{SRD+3}], s23 offen lds")
            else:
                A(f"s_add_u32 s20, s17, {(e >> 1) * 16 * 1280}\ns_add_u32 s20, s20, s23")
                if not NOLOAD or vs < 3: A(f"buffer_load_dwordx4 v{2 + (e & 1)}, s[{SRD}:{SRD+3}], s20 offen lds")
        Q.issue(("x", vs), e1 - e0)
    issue_x(0, 0, NI)
    stamp(A, 1)
    half = NI // 2
    plan = {}
    plan[0] = [(1, 0, NI)]
    plan[1] = [(2, 0, NI)]
    for vs in range(3, 10):
        u = 2 * (vs - 3) + 3
        plan.setdefault(u, []).append((vs, 0, half))
        plan.setdefault(u + 1, []).append((vs, half, NI))
    def issue(u):
        for (vs, e0, e1) in plan.get(u, []): issue_x(vs, e0, e1)
    need = lambda u: ({("x", u >> 1), ("g", 0)})
    barrier_plan_loader(R, A, issue, Q, need, late, each)

class DsQ:
    def __init__(self): self.q = []
    def issue(self, tag): self.q.append(tag)
    def wait(self, tags):
        last = -1
        for i, t in enumerate(self.q):
            if t in tags: last = i
        n = len(self.q) - 1 - last
        if last < 0: return None
        self.q = self.q[last + 1:]
        return n

Q_ACC = 16; Q_WF = [160, 176]; Q_XF = [192 + 4 * i for i in range(6)]
Q_VW = [216, 217, 218, 219]; Q_VWC = [220, 221, 222, 223]; Q_VXA = [224, 225]; Q_VXC = [226, 227]; Q_VG = 228

def tile_info(T):
    seg, t = T // 5, T % 5
    return (6 * seg + t) * 32, t & 1

def qkv_consumer(A):
    A("v_and_b32 v1, 15, v0\nv_lshrrev_b32 v2, 4, v0")
    A(f"""
    v_lshrrev_b32 v3, 1, v1
    v_xor_b32 v3, v3, v2
    v_lshlrev_b32 v3, 4, v3
    v_lshl_add_u32 v{Q_VXC[0]}, v1, 7, v3
    v_xor_b32 v{Q_VXC[1]}, 64, v{Q_VXC[0]}
    """)
    A(f"""
    v_lshrrev_b32 v3, 2, v1
    v_lshl_add_u32 v3, v2, 3, v3
    s_movk_i32 s19, 576
    v_mul_u32_u24 v3, s19, v3
    v_and_b32 v4, 3, v1
    v_lshl_add_u32 v3, v4, 3, v3
    s_and_b32 s20, s5, 1
    s_lshl_b32 s21, s20, 5
    v_add_u32 v3, s21, v3
    v_and_b32 v4, 1, v2
    v_lshlrev_b32 v4, 5, v4
    """)
    for k in range(4):
        A(f"""
        s_lshl_b32 s21, s3, 2
        s_add_u32 s21, s21, {k}
        s_mul_i32 s22, s21, 52
        s_lshr_b32 s22, s22, 8
        s_mul_i32 s23, s22, 5
        s_sub_u32 s23, s21, s23
        s_mul_i32 s22, s22, 6
        s_add_u32 s22, s22, s23
        s_lshl_b32 s22, s22, 5
        s_add_u32 s23, s23, s20
        s_and_b32 s23, s23, 1
        v_add_u32 v5, v3, v4
        v_sub_u32 v6, v3, v4
        s_cmp_eq_u32 s23, 0
        s_cselect_b64 vcc, -1, 0
        v_cndmask_b32 v5, v6, v5, vcc
        v_add_u32 v{Q_VWC[k]}, s22, v5
        """)
    for T in range(16): assert (T * 52) >> 8 == T // 5

def qkv_main(A, gate, mid=None, it_hook=None, b0hook=None, preb0=None):
    R = QKV
    for i in range(144): A(f"v_mov_b32 v{Q_ACC+i}, 0")
    if gate:
        A(f"v_lshlrev_b32 v{Q_VG+1}, 4, v2\nv_add_u32 v{Q_VG+1}, {R.GATE}, v{Q_VG+1}\ns_lshl_b32 s18, s7, 7\nv_add_u32 v{Q_VG}, s18, v{Q_VG+1}")
    D = DsQ()
    def rd_w(buf, k, half, tag):
        d = Q_WF[buf] + 4 * k
        if gate and k == 3:
            if half == 0:
                A(f"ds_read_b128 v[{d}:{d+3}], v{Q_VG}"); D.issue(tag)
            else:
                A(f"s_add_u32 s18, s18, 64\ns_cmp_eq_u32 s18, 1280\ns_cselect_b32 s18, 0, s18\nv_add_u32 v{Q_VG}, s18, v{Q_VG+1}")
            return
        A(f"ds_read_b64_tr_b16 v[{d+2*half}:{d+2*half+1}], v{Q_VW[k]} offset:{half*4*576}"); D.issue(tag)
    def rd_x(slot, m, kk, tag):
        d = Q_XF[slot]
        A(f"ds_read_b128 v[{d}:{d+3}], v{Q_VXA[kk]} offset:{m * 2048}"); D.issue(tag)
    A(f"s_mov_b32 s22, {R.W_RING}\ns_mov_b32 s23, {R.X_RING}\ns_mov_b32 s24, 0")
    for k in range(4): A(f"v_add_u32 v{Q_VW[k]}, s22, v{Q_VWC[k]}")
    for j in range(2): A(f"v_add_u32 v{Q_VXA[j]}, s23, v{Q_VXC[j]}")
    if preb0: preb0(A)
    stamp(A, 1)
    A("s_barrier")
    stamp(A, 2)
    if b0hook: b0hook(A)
    for k in range(4):
        rd_w(0, k, 0, ("w", 0, k)); rd_w(0, k, 1, ("w", 0, k))
    for m in range(4): rd_x(m % 6, m, 0, ("x", 0, m))
    def substage(kk, has_next, sim):
        base = 9 * kk
        fill = {}
        def add(m, k, fn): fill.setdefault((m, k), []).append(fn)
        for m in range(9):
            if m + 4 < 9: add(m, 0, lambda m=m: rd_x((base + m + 4) % 6, m + 4, kk, ("x", sim, m + 4)))
            elif has_next: add(m, 0, lambda m=m: rd_x((base + m + 4) % 6, m + 4 - 9, kk ^ 1, ("x", sim + 1, m + 4 - 9)))
        if has_next:
            add(0, 1, lambda: A(f"s_add_u32 s22, s22, {R.W_SLOT}"))
            add(0, 2, lambda: A(f"s_cmp_eq_u32 s22, {R.W_RING + R.NW*R.W_SLOT}\ns_cselect_b32 s22, {R.W_RING}, s22"))
            for k in range(4): add(1, k, lambda k=k: A(f"v_add_u32 v{Q_VW[k]}, s22, v{Q_VWC[k]}"))
            def bar():
                if FINE and sim < 2:
                    l1 = A.newlabel("Lf"); A(f"s_cmp_lg_u32 s24, 4\ns_cbranch_scc1 {l1}"); stamp(A, 8 + 3 * sim, cyc=True); A.label(l1)
                if not NOBAR: A("s_barrier")
                if FINE and sim < 2:
                    l1 = A.newlabel("Lf"); A(f"s_cmp_lg_u32 s24, 4\ns_cbranch_scc1 {l1}"); stamp(A, 9 + 3 * sim, cyc=True); A.label(l1)
            add(2, 3, bar)
            for k in range(4):
                add(3 + k, 1, lambda k=k: rd_w(kk ^ 1, k, 0, ("w", sim + 1, k)))
                add(3 + k, 2, lambda k=k: rd_w(kk ^ 1, k, 1, ("w", sim + 1, k)))
            if kk == 1:
                add(2, 1, lambda: A(f"s_add_u32 s23, s23, {R.X_SLOT}"))
                add(2, 2, lambda: A(f"s_cmp_eq_u32 s23, {R.X_RING + R.NX*R.X_SLOT}\ns_cselect_b32 s23, {R.X_RING}, s23"))
                add(4, 1, lambda: A(f"v_add_u32 v{Q_VXA[0]}, s23, v{Q_VXC[0]}"))
                add(4, 3, lambda: A(f"v_add_u32 v{Q_VXA[1]}, s23, v{Q_VXC[1]}"))
        for m in range(9):
            for k in range(4):
                n = D.wait({("x", sim, m), ("w", sim, k)})
                if n is not None: A(f"s_waitcnt lgkmcnt({min(n, 15)})")
                d = Q_ACC + (k * 9 + m) * 4; wf = Q_WF[kk] + 4 * k; xf = Q_XF[(base + m) % 6]
                A(f"v_mfma_f32_16x16x32_bf16 v[{d}:{d+3}], v[{wf}:{wf+3}], v[{xf}:{xf+3}], v[{d}:{d+3}]")
                for fn in fill.get((m, k), []): fn()
    loop = A.newlabel("Lqkv")
    A.label(loop)
    if it_hook: it_hook(A)
    if mid:
        lm = A.newlabel("Lmid"); A(f"s_cmp_lg_u32 s24, 3\ns_cbranch_scc1 {lm}"); mid(A); A.label(lm)
    substage(0, True, 0)
    substage(1, True, 1)
    A("s_add_u32 s24, s24, 1\ns_cmp_lt_u32 s24, 9")
    A(f"s_cbranch_scc1 {loop}")
    substage(0, True, 2)
    substage(1, False, 3)

def qkv_epilogue_store(A, gate):
    A(f"s_movk_i32 s19, 488\nv_mul_u32_u24 v3, s19, v1\nv_lshl_add_u32 v3, v2, 3, v3\ns_lshl_b32 s19, s3, 7\nv_add_u32 v3, s19, v3")
    ntile = 3 if gate else 4
    T = 160
    c = 0
    for k in range(ntile):
        for m in range(9):
            d = Q_ACC + (k * 9 + m) * 4
            o = T + 2 * (c % 12); c += 1
            A(f"v_cvt_pk_bf16_f32 v{o}, v{d}, v{d+1}\nv_cvt_pk_bf16_f32 v{o+1}, v{d+2}, v{d+3}")
            A(f"ds_write_b64 v3, v[{o}:{o+1}] offset:{16*m*488 + 32*k}")
    if gate:
        skip = A.newlabel("Lg")
        A(f"s_cmp_lg_u32 s5, 0\ns_cbranch_scc1 {skip}")
        A("s_lshl_b32 s18, s4, 9")
        make_srd(A, 8, P_WS, G_OFF, 512, off_sgpr=18)
        A("v_lshlrev_b32 v4, 2, v1\ns_mov_b64 s[12:13], exec\ns_mov_b64 exec, 0xffff")
        for m in range(1, 9):
            d = Q_ACC + (3 * 9 + m) * 4
            A(f"v_mul_f32 v{d}, 0xbfb8aa3b, v{d}\nv_exp_f32 v{d}, v{d}\nv_add_f32 v{d}, 1.0, v{d}\nv_rcp_f32 v{d}, v{d}")
            A(f"buffer_store_dword v{d}, v4, s[8:11], 0 offen offset:{(m-1)*64} SC_ST")
        A("s_mov_b64 exec, s[12:13]")
        A.label(skip)

def attention(A, sc_st=""):
    OST = 73728
    RS = 488
    A(f"""
    v_and_b32 v10, 3, v0
    v_lshrrev_b32 v11, 2, v0
    v_and_b32 v12, 3, v11
    v_lshrrev_b32 v13, 4, v0
    v_and_b32 v14, 1, v13
    v_lshrrev_b32 v15, 1, v13
    s_lshl_b32 s16, s3, 4
    """)
    A(f"""
    v_lshlrev_b32 v16, 3, v15
    v_add_u32 v16, v16, v14
    v_lshl_add_u32 v17, v10, 1, v16
    v_add_u32 v17, s16, v17
    s_movk_i32 s19, {RS}
    v_mul_u32_u24 v17, s19, v17
    v_mul_u32_u24 v18, 40, v12
    v_add_u32 v20, v17, v18
    """)
    A(f"""
    v_lshl_add_u32 v17, v12, 1, v16
    v_add_u32 v17, s16, v17
    v_mul_u32_u24 v17, s19, v17
    v_mul_u32_u24 v18, 40, v10
    v_add3_u32 v21, v17, v18, 0
    """)
    QF = 24
    KF = 34
    VF = 34
    S = 64
    P = 76
    PK = 24
    O = 64
    LA, LB, LC = 88, 89, 90
    for dl in range(5): A(f"ds_read_b64 v[{QF+2*dl}:{QF+2*dl+1}], v20 offset:{16*RS + 8*dl}")
    for b in range(3):
        for dl in range(5): A(f"ds_read_b64 v[{KF+2*(b*5+dl)}:{KF+2*(b*5+dl)+1}], v20 offset:{b*8*RS + 160 + 8*dl}")
    A("s_waitcnt lgkmcnt(0)")
    for dl in range(5):
        for b in range(3):
            c = f"v[{S+4*b}:{S+4*b+3}]" if dl else "0"
            A(f"v_mfma_f32_4x4x4_16b_bf16 v[{S+4*b}:{S+4*b+3}], v[{KF+2*(b*5+dl)}:{KF+2*(b*5+dl)+1}], v[{QF+2*dl}:{QF+2*dl+1}], {c}")
    for b in range(3):
        for dl in range(5): A(f"ds_read_b64_tr_b16 v[{VF+2*(b*5+dl)}:{VF+2*(b*5+dl)+1}], v21 offset:{b*8*RS + 320 + 8*dl}")
    A(f"v_cmp_eq_u32 s[20:21], 0, v10\nv_cmp_ge_u32 s[22:23], 1, v10\nv_cmp_ge_u32 s[24:25], 2, v10")
    L = [S+4, S+5, S+6, S+7, S+8, LA, LB, LC]
    A(f"v_cndmask_b32 v{LA}, v{S+9}, v{S+1}, s[20:21]\nv_cndmask_b32 v{LB}, v{S+10}, v{S+2}, s[22:23]\nv_cndmask_b32 v{LC}, v{S+11}, v{S+3}, s[24:25]")
    nomask = A.newlabel("Lnm")
    A(f"s_cmp_lg_u32 s4, 0\ns_cbranch_scc1 {nomask}\ns_cmp_gt_u32 s3, 0\ns_cbranch_scc1 {nomask}")
    A("v_lshlrev_b32 v22, 2, v15\nv_sub_u32 v22, 8, v22\nv_mov_b32 v23, 0xff800000")
    for idx, kap in enumerate([4, 5, 6, 7, 8]):
        A(f"v_cmp_gt_u32 vcc, v22, {kap}\nv_cndmask_b32 v{L[idx]}, v{L[idx]}, v23, vcc")
    for (reg, lo, hi, sm) in ((LA, 1, 9, 20), (LB, 2, 10, 22), (LC, 3, 11, 24)):
        A(f"v_cndmask_b32 v9, {hi}, {lo}, s[{sm}:{sm+1}]\nv_cmp_gt_u32 vcc, v22, v9\nv_cndmask_b32 v{reg}, v{reg}, v23, vcc")
    A.label(nomask)
    import math
    cst = math.log2(math.e) / math.sqrt(20.0)
    import struct
    cbits = struct.unpack("<I", struct.pack("<f", cst))[0]
    A(f"v_max3_f32 v8, v{L[0]}, v{L[1]}, v{L[2]}\nv_max3_f32 v8, v8, v{L[3]}, v{L[4]}\nv_max3_f32 v8, v8, v{L[5]}, v{L[6]}\nv_max_f32 v8, v8, v{L[7]}")
    A(f"s_mov_b32 s26, {cbits:#x}\nv_mul_f32 v8, s26, v8")
    for i in range(8): A(f"v_fma_f32 v{L[i]}, v{L[i]}, s26, -v8")
    for i in range(8): A(f"v_exp_f32 v{L[i]}, v{L[i]}")
    A(f"v_add_f32 v8, v{L[0]}, v{L[1]}\nv_add_f32 v9, v{L[2]}, v{L[3]}\nv_add_f32 v8, v8, v{L[4]}\nv_add_f32 v9, v9, v{L[5]}\nv_add_f32 v8, v8, v{L[6]}\nv_add_f32 v9, v9, v{L[7]}\nv_add_f32 v8, v8, v9\nv_rcp_f32 v8, v8")
    for i in range(8): A(f"v_mul_f32 v{L[i]}, v{L[i]}, v8")
    A(f"v_mov_b32 v{P}, 0")
    A(f"v_cndmask_b32 v{P+1}, 0, v{LA}, s[20:21]\nv_cndmask_b32 v{P+9}, v{LA}, 0, s[20:21]")
    A(f"v_cndmask_b32 v{P+2}, 0, v{LB}, s[22:23]\nv_cndmask_b32 v{P+10}, v{LB}, 0, s[22:23]")
    A(f"v_cndmask_b32 v{P+3}, 0, v{LC}, s[24:25]\nv_cndmask_b32 v{P+11}, v{LC}, 0, s[24:25]")
    src = {0: P, 1: P+1, 2: P+2, 3: P+3, 4: L[0], 5: L[1], 6: L[2], 7: L[3], 8: L[4], 9: P+9, 10: P+10, 11: P+11}
    for b in range(3):
        A(f"v_cvt_pk_bf16_f32 v{PK+2*b}, v{src[4*b]}, v{src[4*b+1]}\nv_cvt_pk_bf16_f32 v{PK+2*b+1}, v{src[4*b+2]}, v{src[4*b+3]}")
    A("s_waitcnt lgkmcnt(0)")
    for b in range(3):
        for dl in range(5):
            c = f"v[{O+4*dl}:{O+4*dl+3}]" if b else "0"
            A(f"v_mfma_f32_4x4x4_16b_bf16 v[{O+4*dl}:{O+4*dl+3}], v[{VF+2*(b*5+dl)}:{VF+2*(b*5+dl)+1}], v[{PK+2*b}:{PK+2*b+1}], {c}")
    A(f"""
    v_lshl_add_u32 v17, v10, 1, v16
    v_mul_u32_u24 v17, 176, v17
    v_mul_u32_u24 v18, 40, v12
    s_mul_i32 s18, s3, 2816
    s_add_u32 s18, s18, {OST}
    v_add3_u32 v17, v17, v18, s18
    """)
    for dl in range(5):
        A(f"v_cvt_pk_bf16_f32 v{PK+6}, v{O+4*dl}, v{O+4*dl+1}\nv_cvt_pk_bf16_f32 v{PK+7}, v{O+4*dl+2}, v{O+4*dl+3}")
        A(f"ds_write_b64 v17, v[{PK+6}:{PK+7}] offset:{8*dl}")
    A(f"""
    v_and_b32 v1, 15, v0
    v_lshrrev_b32 v2, 4, v0
    v_mul_u32_u24 v17, 176, v1
    v_add_u32 v17, s18, v17
    s_and_b32 s20, s5, 1
    s_lshl_b32 s21, s20, 1
    v_subrev_u32 v18, s21, v2
    """)
    A(f"s_lshl_b32 s22, s4, 3\ns_add_u32 s22, s22, s3\ns_mul_i32 s22, s22, {44*1024}\ns_mul_i32 s23, s5, 10\ns_lshr_b32 s23, s23, 2\ns_lshl_b32 s23, s23, 10\ns_add_u32 s22, s22, s23")
    make_srd(A, 8, P_WS, A3_OFF, A3_SIZE)
    A("v_lshlrev_b32 v19, 4, v0\ns_waitcnt lgkmcnt(0)")
    A("s_mov_b64 s[12:13], exec")
    for n in range(3):
        A(f"v_add_u32 v22, {4*n}, v18\nv_cmp_gt_u32 vcc, 10, v22\nv_lshl_add_u32 v23, v22, 4, v17")
        A(f"s_and_b64 exec, s[12:13], vcc")
        A(f"ds_read_b128 v[{O+4*n}:{O+4*n+3}], v23")
        A(f"s_waitcnt lgkmcnt(0)")
        A(f"buffer_store_dwordx4 v[{O+4*n}:{O+4*n+3}], v19, s[8:11], s22 offen offset:{n*1024} {sc_st}")
        A("s_mov_b64 exec, s[12:13]")

Z_ACC1 = 16; Z_ACC2 = 64
Z_WF = [112, 136]; Z_XF = [160, 176]
Z_VXA = [192, 193]; Z_VXC = [194, 195]; Z_VW = [196, 197, 198, 199, 200, 201]; Z_VWC = [202, 203, 204, 205, 206, 207]

def z_consumer(A, mid=None):
    R = Z
    A("v_and_b32 v1, 15, v0\nv_lshrrev_b32 v2, 4, v0\ns_lshr_b32 s16, s3, 1\ns_and_b32 s17, s3, 1")
    A(f"""
    v_lshrrev_b32 v3, 1, v1
    v_xor_b32 v3, v3, v2
    v_lshlrev_b32 v3, 4, v3
    v_lshl_add_u32 v{Z_VXC[0]}, v1, 7, v3
    s_lshl_b32 s18, s16, 13
    v_add_u32 v{Z_VXC[0]}, s18, v{Z_VXC[0]}
    v_xor_b32 v{Z_VXC[1]}, 64, v{Z_VXC[0]}
    """)
    A(f"""
    v_lshrrev_b32 v3, 2, v1
    v_lshl_add_u32 v4, v2, 3, v3
    s_movk_i32 s19, 384
    v_mul_u32_u24 v4, s19, v4
    v_and_b32 v5, 3, v1
    v_lshl_add_u32 v4, v5, 3, v4
    v_lshrrev_b32 v3, 1, v3
    v_and_b32 v5, 1, v2
    v_lshl_or_b32 v3, v5, 1, v3
    s_mul_i32 s18, s17, 3
    """)
    for k in range(6):
        base = k if k < 3 else 6 + (k - 3)
        A(f"s_add_u32 s19, s18, {base}\nv_xor_b32 v5, s19, v3\nv_lshl_add_u32 v{Z_VWC[k]}, v5, 5, v4")
    for i in range(96): A(f"v_mov_b32 v{Z_ACC1+i}, 0")
    D = DsQ()
    def set_w():
        for k in range(6): A(f"v_add_u32 v{Z_VW[k]}, s22, v{Z_VWC[k]}")
    def set_x():
        A(f"v_add_u32 v{Z_VXA[0]}, s23, v{Z_VXC[0]}\nv_add_u32 v{Z_VXA[1]}, s23, v{Z_VXC[1]}")
    def rd_w(buf, k, tag):
        d = Z_WF[buf] + 4 * k
        A(f"ds_read_b64_tr_b16 v[{d}:{d+1}], v{Z_VW[k]}"); D.issue(tag)
        A(f"ds_read_b64_tr_b16 v[{d+2}:{d+3}], v{Z_VW[k]} offset:{4*384}"); D.issue(tag)
    def rd_x(buf, m, kk, tag):
        d = Z_XF[buf] + 4 * m
        A(f"ds_read_b128 v[{d}:{d+3}], v{Z_VXA[kk]} offset:{m * 2048}"); D.issue(tag)
    def adv_w(): A(f"s_add_u32 s22, s22, {R.W_SLOT}\ns_cmp_eq_u32 s22, {R.W_RING + R.NW*R.W_SLOT}\ns_cselect_b32 s22, {R.W_RING}, s22")
    def adv_x(): A(f"s_add_u32 s23, s23, {R.X_SLOT}\ns_cmp_eq_u32 s23, {R.X_RING + R.NX*R.X_SLOT}\ns_cselect_b32 s23, {R.X_RING}, s23")
    A(f"s_mov_b32 s22, {R.W_RING}\ns_mov_b32 s23, {R.X_RING}\ns_mov_b32 s24, 0")
    set_w(); set_x()
    stamp(A, 1)
    A("s_barrier")
    stamp(A, 2)
    ORDER = [("x", 0), ("w", 3), ("w", 4), ("w", 5), ("w", 0), ("w", 1), ("w", 2), ("x", 1), ("x", 2), ("x", 3)]
    for (t, idx) in ORDER:
        if t == "x": rd_x(0, idx, 0, ("x", 0, idx))
        else: rd_w(0, idx, ("w", 0, idx))
    def substage(kk, has_next, sim):
        pend = list(ORDER) if has_next else []
        cnt = 0
        for m in range(4):
            for k in (3, 4, 5, 0, 1, 2):
                n = D.wait({("x", sim, m), ("w", sim, k)})
                if n is not None: A(f"s_waitcnt lgkmcnt({min(n, 15)})")
                wf = Z_WF[kk] + 4 * k; xf = Z_XF[kk] + 4 * m
                if k < 3:
                    d = Z_ACC1 + (k * 4 + m) * 4
                    A(f"v_mfma_f32_16x16x32_bf16 v[{d}:{d+3}], v[{wf}:{wf+3}], v[{xf}:{xf+3}], v[{d}:{d+3}]")
                else:
                    d = Z_ACC2 + (m * 3 + (k - 3)) * 4
                    A(f"v_mfma_f32_16x16x32_bf16 v[{d}:{d+3}], v[{xf}:{xf+3}], v[{wf}:{wf+3}], v[{d}:{d+3}]")
                cnt += 1
                if cnt == 6 and has_next:
                    adv_w(); set_w()
                    if kk == 1: adv_x(); set_x()
                    if FINE and sim < 2:
                        l1 = A.newlabel("Lf"); A(f"s_cmp_lg_u32 s24, 4\ns_cbranch_scc1 {l1}"); stamp(A, 8 + 3 * sim, cyc=True); A.label(l1)
                    A("s_barrier")
                    if FINE and sim < 2:
                        l1 = A.newlabel("Lf"); A(f"s_cmp_lg_u32 s24, 4\ns_cbranch_scc1 {l1}"); stamp(A, 9 + 3 * sim, cyc=True); A.label(l1)
                if cnt >= 6 and pend:
                    t, idx = pend.pop(0)
                    if t == "x": rd_x(kk ^ 1, idx, kk ^ 1, ("x", sim + 1, idx))
                    else: rd_w(kk ^ 1, idx, ("w", sim + 1, idx))
    loop = A.newlabel("Lz")
    A.label(loop)
    if it_hook: it_hook(A)
    if mid:
        lm = A.newlabel("Lmid"); A(f"s_cmp_lg_u32 s24, 3\ns_cbranch_scc1 {lm}"); mid(A); A.label(lm)
    substage(0, True, 0)
    substage(1, True, 1)
    A("s_add_u32 s24, s24, 1\ns_cmp_lt_u32 s24, 9")
    A(f"s_cbranch_scc1 {loop}")
    substage(0, True, 2)
    substage(1, False, 3)

GELU_C1 = -2.0 * 1.4426950408889634 * 0.7978845608028654
GELU_C2 = GELU_C1 * 0.044715
import struct
def fbits(x): return struct.unpack("<I", struct.pack("<f", x))[0]

def gelu_regs(A, regs0, n, C1, C2, T):
    for i in range(0, n, 4):
        for h in (0, 2):
            x = regs0 + i + h; t = T + 2 * h
            A(f"v_pk_mul_f32 v[{t}:{t+1}], v[{x}:{x+1}], v[{x}:{x+1}]")
        for h in (0, 2):
            t = T + 2 * h
            A(f"v_pk_fma_f32 v[{t}:{t+1}], v[{t}:{t+1}], v[{C2}:{C2+1}], v[{C1}:{C1+1}]")
        for h in (0, 2):
            x = regs0 + i + h; t = T + 2 * h
            A(f"v_pk_mul_f32 v[{t}:{t+1}], v[{t}:{t+1}], v[{x}:{x+1}]")
        for h in (0, 2):
            t = T + 2 * h
            A(f"v_exp_f32 v{t}, v{t}\nv_exp_f32 v{t+1}, v{t+1}")
        for h in (0, 2):
            t = T + 2 * h
            A(f"v_pk_add_f32 v[{t}:{t+1}], v[{t}:{t+1}], 1.0 op_sel_hi:[1,0]")
        for h in (0, 2):
            t = T + 2 * h
            A(f"v_rcp_f32 v{t}, v{t}\nv_rcp_f32 v{t+1}, v{t+1}")
        for h in (0, 2):
            x = regs0 + i + h; t = T + 2 * h
            A(f"v_pk_mul_f32 v[{x}:{x+1}], v[{x}:{x+1}], v[{t}:{t+1}]")

Z_PART = 0
Z_STAT = 2048

def z_epilogue_a(A):
    C1, C2, T = 112, 114, 116
    A(f"v_mov_b32 v{C1}, {fbits(GELU_C1):#x}\nv_mov_b32 v{C1+1}, {fbits(GELU_C1):#x}\nv_mov_b32 v{C2}, {fbits(GELU_C2):#x}\nv_mov_b32 v{C2+1}, {fbits(GELU_C2):#x}")
    gelu_regs(A, Z_ACC2, 48, C1, C2, T)
    SU = 128; SQ = 144
    for m in range(4):
        for r in range(4):
            a, b, c = [Z_ACC2 + (m * 3 + t) * 4 + r for t in range(3)]
            s_, q_ = SU + m * 4 + r, SQ + m * 4 + r
            A(f"v_add_f32 v{s_}, v{a}, v{b}\nv_mul_f32 v{q_}, v{a}, v{a}\nv_add_f32 v{s_}, v{s_}, v{c}\nv_fmac_f32 v{q_}, v{b}, v{b}\nv_fmac_f32 v{q_}, v{c}, v{c}")
    for sh in (8, 4, 2, 1):
        for i in range(32):
            A(f"v_add_f32_dpp v{SU+i}, v{SU+i}, v{SU+i} row_ror:{sh} row_mask:0xf bank_mask:0xf")
    A(f"""
    s_lshl_b32 s18, s17, 10
    s_lshl_b32 s19, s16, 9
    s_add_u32 s18, s18, s19
    s_add_u32 s18, s18, {Z_PART}
    v_lshlrev_b32 v3, 5, v2
    v_add_u32 v3, s18, v3
    s_mov_b64 s[12:13], exec
    s_mov_b32 s20, 0x00010001
    s_mov_b32 s21, 0x00010001
    s_mov_b64 exec, s[20:21]
    """)
    for m in range(4):
        for r in range(0, 4, 2):
            t = T
            A(f"v_mov_b32 v{t}, v{SU+m*4+r}\nv_mov_b32 v{t+1}, v{SQ+m*4+r}\nv_mov_b32 v{t+2}, v{SU+m*4+r+1}\nv_mov_b32 v{t+3}, v{SQ+m*4+r+1}")
            A(f"ds_write_b128 v3, v[{t}:{t+3}] offset:{m*128 + r*8}")
            T2 = T; T = 120 if T == 116 else 116
    A("s_mov_b64 exec, s[12:13]\ns_waitcnt lgkmcnt(0)")

def z_epilogue_b(A, sc_st=""):
    C1, C2, T = 112, 114, 116
    gelu_regs(A, Z_ACC1, 48, C1, C2, T)
    A(f"s_lshl_b32 s18, s4, 1\ns_add_u32 s18, s18, s16\ns_lshl_b32 s18, s18, 3\ns_add_u32 s18, s18, s5\ns_lshl_b32 s18, s18, 2\ns_lshl_b32 s19, s17, 1\ns_add_u32 s18, s18, s19\ns_mul_i32 s18, s18, 3072")
    make_srd(A, 8, P_WS, Z1_OFF, 6144, off_sgpr=18)
    A("v_lshlrev_b32 v4, 4, v0")
    for wt in range(2):
        for t in range(3):
            o = 120 + 4 * ((wt * 3 + t) % 2)
            for j in range(2):
                d = Z_ACC1 + (t * 4 + 2 * wt + j) * 4
                A(f"v_cvt_pk_bf16_f32 v{o+2*j}, v{d}, v{d+1}\nv_cvt_pk_bf16_f32 v{o+2*j+1}, v{d+2}, v{d+3}")
            A(f"s_mov_b32 s19, {wt*3072 + t*1024}\nbuffer_store_dwordx4 v[{o}:{o+3}], v4, s[8:11], s19 offen {sc_st}")

def z_epilogue_c(A, sc_st=""):
    ST = 128
    A(f"s_lshl_b32 s19, s16, 9\ns_add_u32 s19, s19, {Z_STAT}\nv_lshlrev_b32 v3, 5, v2\nv_add_u32 v3, s19, v3")
    for m in range(4):
        A(f"ds_read_b128 v[{ST+8*m}:{ST+8*m+3}], v3 offset:{m*128}\nds_read_b128 v[{ST+8*m+4}:{ST+8*m+7}], v3 offset:{m*128+16}")
    A("s_waitcnt lgkmcnt(0)")
    A(f"s_mul_i32 s18, s5, 393216\ns_lshl_b32 s19, s4, 2\ns_lshl_b32 s20, s16, 1\ns_add_u32 s19, s19, s20\ns_mul_i32 s19, s19, 6144\ns_add_u32 s18, s18, s19\ns_mul_i32 s19, s17, 3072\ns_add_u32 s18, s18, s19")
    make_srd(A, 8, P_WS, ZN_OFF, 6144 + 3072, off_sgpr=18)
    A("v_lshlrev_b32 v4, 4, v0")
    for P in range(2):
        for t in range(3):
            o = 160 + 4 * ((P * 3 + t) % 3)
            for j in range(2):
                m = 2 * P + j
                d = Z_ACC2 + (m * 3 + t) * 4
                for r in range(4):
                    A(f"v_fma_f32 v{d+r}, v{d+r}, v{ST+8*m+2*r}, v{ST+8*m+2*r+1}")
                A(f"v_cvt_pk_bf16_f32 v{o+2*j}, v{d}, v{d+1}\nv_cvt_pk_bf16_f32 v{o+2*j+1}, v{d+2}, v{d+3}")
            A(f"v_permlane32_swap_b32 v{o}, v{o+2}\nv_permlane32_swap_b32 v{o+1}, v{o+3}")
            A(f"v_permlane16_swap_b32 v{o}, v{o+2}\nv_permlane16_swap_b32 v{o+1}, v{o+3}")
            A(f"s_mov_b32 s19, {P*6144 + t*1024}\nbuffer_store_dwordx4 v[{o}:{o+3}], v4, s[8:11], s19 offen {sc_st}")

def get_nonce(A, sreg):
    make_srd(A, 28, P_DBG, 0, 256)
    lp = A.newlabel("Lnonce")
    A("v_mov_b32 v6, 0\ns_mov_b32 s32, 0")
    A.label(lp)
    A(f"buffer_load_dword v7, v6, s[28:31], 0 offen sc1\ns_waitcnt vmcnt(0)\nv_readfirstlane_b32 s{sreg}, v7")
    A(f"s_add_u32 s32, s32, 1\ns_cmp_gt_u32 s32, {1<<20}")
    out = A.newlabel("Lnonce_o")
    A(f"s_cbranch_scc1 {out}")
    A(f"s_cmp_eq_u32 s{sreg}, 0\ns_cbranch_scc1 {lp}")
    A.label(out)

def publish_nonce(A):
    make_srd(A, 28, P_DBG, 0, 256)
    A("s_memrealtime s[32:33]\ns_waitcnt lgkmcnt(0)\ns_or_b32 s32, s32, 1\nv_mov_b32 v6, 0\nv_mov_b32 v7, s32\nbuffer_store_dword v7, v6, s[28:31], 0 offen sc1")

def z_stats_exchange(A, NONCE):
    A(f"s_sub_u32 s16, s3, 4\ns_lshl_b32 s17, s16, 9\nv_lshlrev_b32 v2, 3, v0\nv_add_u32 v2, s17, v2")
    A(f"v_add_u32 v14, {Z_PART}, v2")
    A(f"ds_read_b64 v[4:5], v14\nds_read_b64 v[6:7], v14 offset:1024\ns_waitcnt lgkmcnt(0)")
    A(f"v_add_f32 v8, v4, v6\nv_add_f32 v10, v5, v7\nv_mov_b32 v9, s{NONCE}\nv_mov_b32 v11, s{NONCE}")
    A("s_lshl_b32 s18, s4, 14")
    make_srd(A, 8, P_WS, ST_OFF, 16384, off_sgpr=18)
    A("v_lshlrev_b32 v3, 1, v2\ns_lshl_b32 s19, s5, 11")
    A("buffer_store_dwordx4 v[8:11], v3, s[8:11], s19 offen sc1")
    lp = A.newlabel("Lst"); ok = A.newlabel("Lstok")
    A("s_mov_b32 s20, 0")
    A.label(lp)
    for c in range(8):
        A(f"s_mov_b32 s19, {c*2048}\nbuffer_load_dwordx4 v[{16+4*c}:{19+4*c}], v3, s[8:11], s19 offen sc1")
    A("s_waitcnt vmcnt(0)")
    A(f"v_mov_b32 v12, 0")
    for c in range(8):
        A(f"v_xor_b32 v13, s{NONCE}, v{17+4*c}\nv_or_b32 v12, v12, v13\nv_xor_b32 v13, s{NONCE}, v{19+4*c}\nv_or_b32 v12, v12, v13")
    A(f"v_cmp_ne_u32 vcc, 0, v12\ns_cmp_eq_u64 vcc, 0\ns_cbranch_scc1 {ok}")
    A(f"s_add_u32 s20, s20, 1\ns_cmp_gt_u32 s20, {1<<16}\ns_cbranch_scc1 {ok}\ns_sleep 2\ns_branch {lp}")
    A.label(ok)
    A("v_add_f32 v4, v16, v20\nv_add_f32 v5, v18, v22")
    for c in range(2, 8): A(f"v_add_f32 v4, v4, v{16+4*c}\nv_add_f32 v5, v5, v{18+4*c}")
    inv = fbits(1.0 / 768.0)
    A(f"""
    v_mul_f32 v4, {inv:#x}, v4
    v_mul_f32 v5, {inv:#x}, v5
    v_fma_f32 v5, -v4, v4, v5
    v_max_f32 v5, 0, v5
    v_add_f32 v5, {fbits(1e-5):#x}, v5
    v_rsq_f32 v6, v5
    s_nop 0
    v_mul_f32 v7, -v4, v6
    """)
    A(f"ds_write_b64 v14, v[6:7] offset:{Z_STAT - Z_PART}\ns_waitcnt lgkmcnt(0)")

def gen_p1_kernel():
    A = Asm()
    end = prologue(A)
    stamp(A, 0); stamp(A, 5, cyc=True)
    wg_map_p1(A)
    fin = A.newlabel("Lfin")
    zrole = A.newlabel("Lz_role")
    A(f"s_cmp_eq_u32 s6, 1\ns_cbranch_scc1 {zrole}")
    lw = A.newlabel("Lq_w"); lx = A.newlabel("Lq_x"); att = A.newlabel("Lq_att")
    A(f"s_cmp_eq_u32 s3, 7\ns_cbranch_scc1 {lx}\ns_cmp_ge_u32 s3, 4\ns_cbranch_scc1 {lw}")
    qkv_consumer(A, False)
    wl = [A.newlabel(f"Lq_c{w}") for w in range(4)]
    for w in range(1, 4): A(f"s_cmp_eq_u32 s3, {w}\ns_cbranch_scc1 {wl[w]}")
    for w in range(4):
        A.label(wl[w])
        qkv_main(A, w)
        stamp(A, 3)
        qkv_epilogue_store(A, w)
        A(f"s_waitcnt lgkmcnt(0)\ns_branch {att}")
    A.label(lw)
    pack_issue(A)
    w_loader(A, QKV)
    pack_finish(A)
    A(f"s_branch {att}")
    A.label(lx)
    pub = A.newlabel("Lpub")
    A(f"s_cmp_lg_u32 s2, 0\ns_cbranch_scc1 {pub}")
    publish_nonce(A)
    A.label(pub)
    x_loader(A, QKV)
    A.label(att)
    A("s_barrier")
    stamp(A, 7)
    attention(A)
    A("s_waitcnt vmcnt(0)")
    A(f"s_branch {fin}")
    A.label(zrole)
    lw = A.newlabel("Lz_w"); lx = A.newlabel("Lz_x"); ztail = A.newlabel("Lz_tail")
    A(f"s_cmp_eq_u32 s3, 7\ns_cbranch_scc1 {lx}\ns_cmp_ge_u32 s3, 4\ns_cbranch_scc1 {lw}")
    z_consumer(A)
    stamp(A, 3)
    z_epilogue_a(A)
    A("s_barrier")
    z_epilogue_b(A)
    stamp(A, 7)
    A("s_barrier")
    z_epilogue_c(A)
    A("s_waitcnt vmcnt(0)")
    A(f"s_branch {fin}")
    A.label(lw)
    pack_issue(A)
    w_loader(A, Z)
    pack_finish(A)
    noex = A.newlabel("Lnoex")
    A(f"s_cmp_ge_u32 s3, 6\ns_cbranch_scc1 {noex}")
    get_nonce(A, 26)
    A("s_barrier")
    z_stats_exchange(A, 26)
    A("s_barrier")
    A(f"s_branch {fin}")
    A.label(noex)
    A(f"s_barrier\ns_barrier\ns_branch {fin}")
    A.label(lx)
    x_loader(A, Z)
    A("s_barrier\ns_barrier")
    A.label(fin)
    stamp(A, 4); stamp(A, 6, cyc=True)
    dump_stamps(A, 14 if FINE else 8)
    A.label(end)
    A("s_endpgm")
    txt = A.text(verbose=True)
    return txt.replace("SC_ST", "")

if __name__ == "__main__":
    import common
    common.set_profile("prof" in sys.argv)
    txt = build_file([("p1_kernel", gen_p1_kernel(), 256, 102, 256)], [("p1_kernel", 256, 512, LDS_MAX)])
    open("p1.s", "w").write(txt)
```

```python
from common import *
from p1 import udiv_small, DsQ, gelu_regs, GELU_C1, GELU_C2, fbits, barrier_plan_loader

ZS_SLOT = 28672; ZS_N = 3; ZS_BASE = 4096; ZS_X = 0; ZS_W = 16384
ZS_NST = 20
Z_PART = 0
Z_STAT = 2048
ZA2 = 16; ZA1 = 64
ZWF = [112, 124]; ZXF = [136, 152]
ZVX = [168, 169]; ZVXC = [170, 171]; ZVE, ZVO, ZVEC, ZVOC = 172, 173, 174, 175

def z_loader(A, late=None, hooks=None, pre=None, xhooks=None):
    hooks = hooks or {}
    lx = A.newlabel("Lzl_x"); join = A.newlabel("Lzl_j")
    A(f"s_cmp_ge_u32 s3, 6\ns_cbranch_scc1 {lx}")
    make_srd(A, 8, P_WIN, 0, 640 * 3072)
    A("s_sub_u32 s16, s3, 4\ns_mul_i32 s17, s5, 192")
    A(f"s_mul_i32 s18, s16, 6144\ns_mul_i32 s20, s7, {64 * 3072}\ns_add_u32 s20, s20, 1536\ns_add_u32 s22, s7, 1\ns_cmp_eq_u32 s22, 10\ns_cselect_b32 s22, 0, s22\ns_mul_i32 s23, s16, 384")
    for e in range(6):
        A(f"s_add_u32 s21, s23, {64 * e}\nv_add_u32 v12, s21, v0")
        udiv_small(A, 12, 13, 14, 12, 19, 768)
        A("v_lshrrev_b32 v15, 2, v13\nv_and_b32 v15, 2, v15\nv_xor_b32 v14, v14, v15")
        A(f"s_movk_i32 s19, 3072\nv_mul_u32_u24 v13, s19, v13\nv_lshl_add_u32 v13, v14, 4, v13\nv_add_u32 v{2+e}, s17, v13")
        A(f"s_add_u32 m0, s18, {ZS_BASE + ZS_W + e * 1024}\nbuffer_load_dwordx4 v{2+e}, s[8:11], s20 offen lds")
    Q = VmQueue()
    Q.issue(("d", 0), 6)
    def issue_w(st):
        col = 1536 if st < 10 else 0
        A(f"s_mul_i32 s20, s22, {64 * 3072}\ns_add_u32 s20, s20, {col}\ns_add_u32 s22, s22, 1\ns_cmp_eq_u32 s22, 10\ns_cselect_b32 s22, 0, s22")
        for e in range(6):
            A(f"s_add_u32 m0, s18, {ZS_BASE + (st % ZS_N) * ZS_SLOT + ZS_W + e * 1024}")
            A(f"buffer_load_dwordx4 v{2+e}, s[8:11], s20 offen lds")
        Q.issue(("d", st), 6)
    run_loader(A, Q, issue_w, late, hooks, pre, first_done=True)
    A(f"s_branch {join}")
    A.label(lx)
    make_srd(A, 8, P_AX, 0, 2048 * 1280)
    A("""
    s_sub_u32 s16, s3, 6
    v_lshrrev_b32 v4, 3, v0
    v_and_b32 v5, 7, v0
    v_lshrrev_b32 v6, 1, v4
    v_xor_b32 v7, v5, v6
    s_movk_i32 s19, 1280
    v_mul_u32_u24 v8, s19, v4
    v_lshl_add_u32 v2, v7, 4, v8
    v_xor_b32 v7, 4, v7
    v_lshl_add_u32 v3, v7, 4, v8
    v_add_u32 v3, 10240, v3
    s_lshl_b32 s17, s4, 7
    s_lshl_b32 s18, s16, 6
    s_add_u32 s17, s17, s18
    s_mul_i32 s17, s17, 1280
    s_lshl_b32 s18, s16, 13
    """)
    Q = VmQueue()
    A("s_mov_b32 s22, s7")
    def issue_x(st):
        A("s_lshl_b32 s23, s22, 7\ns_add_u32 s23, s23, s17\ns_add_u32 s22, s22, 1\ns_cmp_eq_u32 s22, 10\ns_cselect_b32 s22, 0, s22")
        for e in range(8):
            A(f"s_add_u32 m0, s18, {ZS_BASE + (st % ZS_N) * ZS_SLOT + ZS_X + e * 1024}")
            A(f"s_add_u32 s20, s23, {(e >> 1) * 16 * 1280}")
            A(f"buffer_load_dwordx4 v{2 + (e & 1)}, s[8:11], s20 offen lds")
        Q.issue(("d", st), 8)
    run_loader(A, Q, issue_x, late, xhooks or {}, pre)
    A.label(join)

def run_loader(A, Q, issue, late, hooks, pre=None, first_done=False):
    if pre: pre()
    if 'st0' in sys.argv: A("s_memrealtime s[70:71]")
    if not first_done: issue(0)
    issue(1)
    if "early" in hooks: hooks["early"](A, Q)
    stamp(A, 1)
    nxt = 2
    for st in range(ZS_NST):
        if ("d", st) in Q.q:
            n = Q.wait_for({("d", st)})
            A(f"s_waitcnt vmcnt({min(n, 63)})"); Q.retire(min(n, 63))
        A("s_barrier")
        if st == 0: stamp(A, 2)
        if st == 0 and 'st0' in sys.argv: A("s_memrealtime s[72:73]")
        lim = min(ZS_NST, st + ZS_N); c = 0
        while nxt < lim and c < 2:
            issue(nxt); nxt += 1; c += 1
        if "each" in hooks: hooks["each"](A, Q, st)
        if st == 4 and "st4" in hooks: hooks["st4"](A, Q)
        if st == 2 and "st2" in hooks: hooks["st2"](A, Q)
        if st == 9:
            A("s_barrier")
            if "after_z1" in hooks: hooks["after_z1"](A, Q)
        if st == 13 and "st13" in hooks: hooks["st13"](A, Q)
        if ("st", st) in hooks: hooks[("st", st)](A, Q)
        if st == ZS_NST - 2 and "pre_last" in hooks: hooks["pre_last"](A, Q)
        if st == ZS_NST - 1 and late: late(A)

def z_consumer(A, mid=None, between=None, it_hook=None, b0hook=None, preb0=None, p2hook=None, p2iter=6):
    A("v_and_b32 v1, 15, v0\nv_lshrrev_b32 v2, 4, v0\ns_lshr_b32 s16, s3, 1\ns_and_b32 s17, s3, 1")
    A(f"""
    v_lshrrev_b32 v3, 1, v1
    v_xor_b32 v3, v3, v2
    v_lshlrev_b32 v3, 4, v3
    v_lshl_add_u32 v{ZVXC[0]}, v1, 7, v3
    s_lshl_b32 s18, s16, 13
    v_add_u32 v{ZVXC[0]}, s18, v{ZVXC[0]}
    v_xor_b32 v{ZVXC[1]}, 64, v{ZVXC[0]}
    """)
    A(f"""
    v_lshrrev_b32 v3, 2, v1
    v_lshl_add_u32 v3, v2, 3, v3
    v_mul_u32_u24 v3, 192, v3
    v_and_b32 v4, 3, v1
    v_lshl_add_u32 v3, v4, 3, v3
    s_mul_i32 s18, s17, 96
    s_add_u32 s18, s18, {ZS_W}
    v_add_u32 v3, s18, v3
    v_and_b32 v4, 1, v2
    v_lshlrev_b32 v4, 5, v4
    v_add_u32 v5, v3, v4
    v_sub_u32 v3, v3, v4
    s_cmp_eq_u32 s17, 0
    s_cselect_b64 vcc, -1, 0
    v_cndmask_b32 v{ZVEC}, v3, v5, vcc
    v_cndmask_b32 v{ZVOC}, v5, v3, vcc
    """)
    for i in range(96): A(f"v_mov_b32 v{ZA2+i}, 0")
    D = DsQ()
    def setaddr():
        A(f"v_add_u32 v{ZVX[0]}, s22, v{ZVXC[0]}"); A(f"v_add_u32 v{ZVX[1]}, s22, v{ZVXC[1]}")
        A(f"v_add_u32 v{ZVE}, s22, v{ZVEC}"); A(f"v_add_u32 v{ZVO}, s22, v{ZVOC}")
    def rd_w(buf, t, kk, tag):
        d = ZWF[buf] + 4 * t; a = ZVO if t & 1 else ZVE
        off = kk * 32 * 192 + t * 32
        A(f"ds_read_b64_tr_b16 v[{d}:{d+1}], v{a} offset:{off}"); D.issue(tag)
        A(f"ds_read_b64_tr_b16 v[{d+2}:{d+3}], v{a} offset:{off + 4*192}"); D.issue(tag)
    def rd_x(buf, m, kk, tag):
        d = ZXF[buf] + 4 * m
        A(f"ds_read_b128 v[{d}:{d+3}], v{ZVX[kk]} offset:{m * 2048}"); D.issue(tag)
    ORDER = [("x", 0), ("w", 0), ("w", 1), ("w", 2), ("x", 1), ("x", 2), ("x", 3)]
    def rd(buf, item, kk, sim):
        if item[0] == "x": rd_x(buf, item[1], kk, ("x", sim, item[1]))
        else: rd_w(buf, item[1], kk, ("w", sim, item[1]))
    def half(kk, z2, has_next, sim):
        pend = list(ORDER) if has_next else []
        cnt = 0
        if kk == 1 and has_next:
            A(f"s_add_u32 s22, s22, {ZS_SLOT}"); A(f"s_cmp_eq_u32 s22, {ZS_BASE + ZS_N*ZS_SLOT}"); A(f"s_cselect_b32 s22, {ZS_BASE}, s22")
        for m in range(4):
            for t in range(3):
                n = D.wait({("x", sim, m), ("w", sim, t)})
                if n is not None: A(f"s_waitcnt lgkmcnt({min(n, 15)})")
                wf = ZWF[kk] + 4 * t; xf = ZXF[kk] + 4 * m
                if z2:
                    d = ZA2 + (m * 3 + t) * 4
                    A(f"v_mfma_f32_16x16x32_bf16 v[{d}:{d+3}], v[{xf}:{xf+3}], v[{wf}:{wf+3}], v[{d}:{d+3}]")
                else:
                    d = ZA1 + (t * 4 + m) * 4
                    A(f"v_mfma_f32_16x16x32_bf16 v[{d}:{d+3}], v[{wf}:{wf+3}], v[{xf}:{xf+3}], v[{d}:{d+3}]")
                cnt += 1
                if kk == 1 and has_next and cnt == 1:
                    setaddr()
                    A("s_waitcnt lgkmcnt(0)"); D.q.clear()
                    A("s_barrier")
                if pend and cnt >= 1:
                    rd(kk ^ 1, pend.pop(0), kk ^ 1, sim + 1)
    def gemm_pass(z2, first):
        for it in ORDER: rd(0, it, 0, 0)
        loop = A.newlabel("Lzp")
        A("s_mov_b32 s24, 0")
        A.label(loop)
        if it_hook and first: it_hook(A)
        if p2hook and not first:
            lh = A.newlabel("Lp2h"); A(f"s_cmp_lg_u32 s24, {p2iter}\ns_cbranch_scc1 {lh}")
            A("s_waitcnt lgkmcnt(0)"); p2hook(A); A.label(lh)
        if mid and first:
            lm = A.newlabel("Lmid"); A(f"s_cmp_lg_u32 s24, 3\ns_cbranch_scc1 {lm}"); mid(A); A.label(lm)
        half(0, z2, True, 0)
        half(1, z2, True, 1)
        A("s_add_u32 s24, s24, 1\ns_cmp_lt_u32 s24, 9")
        A(f"s_cbranch_scc1 {loop}")
        half(0, z2, True, 2)
        half(1, z2, False, 3)
        D.q.clear()
    A(f"s_mov_b32 s22, {ZS_BASE}")
    setaddr()
    if preb0: preb0(A)
    stamp(A, 1)
    A("s_barrier")
    stamp(A, 2)
    if b0hook: b0hook(A)
    gemm_pass(True, True)
    stamp(A, 3)
    between(A)
    A(f"s_add_u32 s22, s22, {ZS_SLOT}\ns_cmp_eq_u32 s22, {ZS_BASE + ZS_N*ZS_SLOT}\ns_cselect_b32 s22, {ZS_BASE}, s22")
    setaddr()
    A("s_barrier")
    gemm_pass(False, False)

def z_epi_stats(A):
    C1, C2, T = 176, 178, 180
    A(f"v_mov_b32 v{C1}, {fbits(GELU_C1):#x}\nv_mov_b32 v{C1+1}, {fbits(GELU_C1):#x}\nv_mov_b32 v{C2}, {fbits(GELU_C2):#x}\nv_mov_b32 v{C2+1}, {fbits(GELU_C2):#x}")
    gelu_regs(A, ZA2, 48, C1, C2, T)
    SU = 192; SQ = 208
    for m in range(4):
        for r in range(4):
            a, b, c = [ZA2 + (m * 3 + t) * 4 + r for t in range(3)]
            s_, q_ = SU + m * 4 + r, SQ + m * 4 + r
            A(f"v_add_f32 v{s_}, v{a}, v{b}\nv_mul_f32 v{q_}, v{a}, v{a}\nv_add_f32 v{s_}, v{s_}, v{c}\nv_fmac_f32 v{q_}, v{b}, v{b}\nv_fmac_f32 v{q_}, v{c}, v{c}")
    for base in (SU, SQ):
        for j in range(8): A(f"v_add_f32_dpp v{base+j}, v{base+j}, v{base+j} row_ror:8 row_mask:0xf bank_mask:0x3")
    for base in (SU, SQ):
        for j in range(8): A(f"v_add_f32_dpp v{base+j}, v{base+j+8}, v{base+j+8} row_ror:8 row_mask:0xf bank_mask:0xc")
    for base in (SU, SQ):
        for j in range(4): A(f"v_add_f32_dpp v{base+j}, v{base+j}, v{base+j} row_half_mirror row_mask:0xf bank_mask:0x5")
    for base in (SU, SQ):
        for j in range(4): A(f"v_add_f32_dpp v{base+j}, v{base+j+4}, v{base+j+4} row_half_mirror row_mask:0xf bank_mask:0xa")
    for base in (SU, SQ):
        for j in range(4):
            A(f"v_add_f32_dpp v{base+j}, v{base+j}, v{base+j} quad_perm:[2,3,0,1] row_mask:0xf bank_mask:0xf")
    for base in (SU, SQ):
        for j in range(4):
            A(f"v_add_f32_dpp v{base+j}, v{base+j}, v{base+j} quad_perm:[1,0,3,2] row_mask:0xf bank_mask:0xf")
    A(f"""
    s_lshl_b32 s18, s17, 10
    s_lshl_b32 s19, s16, 9
    s_add_u32 s18, s18, s19
    s_add_u32 s18, s18, {Z_PART}
    v_lshrrev_b32 v3, 2, v1
    v_lshlrev_b32 v3, 7, v3
    v_lshl_add_u32 v3, v2, 5, v3
    v_add_u32 v3, s18, v3
    s_mov_b64 s[12:13], exec
    s_mov_b32 s20, 0x11111111
    s_mov_b32 s21, 0x11111111
    s_mov_b64 exec, s[20:21]
    """)
    T = 180
    A(f"v_mov_b32 v{T}, v{SU}\nv_mov_b32 v{T+1}, v{SQ}\nv_mov_b32 v{T+2}, v{SU+1}\nv_mov_b32 v{T+3}, v{SQ+1}")
    A(f"v_mov_b32 v{T+4}, v{SU+2}\nv_mov_b32 v{T+5}, v{SQ+2}\nv_mov_b32 v{T+6}, v{SU+3}\nv_mov_b32 v{T+7}, v{SQ+3}")
    A(f"ds_write_b128 v3, v[{T}:{T+3}]\nds_write_b128 v3, v[{T+4}:{T+7}] offset:16")
    A("s_mov_b64 exec, s[12:13]\ns_waitcnt lgkmcnt(0)")

def z_publish_stats(A, NONCE):
    A(f"s_sub_u32 s21, s3, 4\ns_lshl_b32 s21, s21, 9\nv_lshlrev_b32 v20, 3, v0\nv_add_u32 v20, s21, v20")
    A(f"v_add_u32 v88, {Z_PART}, v20")
    A(f"ds_read_b64 v[22:23], v88\nds_read_b64 v[24:25], v88 offset:1024\ns_waitcnt lgkmcnt(0)")
    A(f"v_add_f32 v28, v22, v24\nv_add_f32 v30, v23, v25\nv_mov_b32 v29, s{NONCE}\nv_mov_b32 v31, s{NONCE}")
    A("s_lshl_b32 s21, s4, 14")
    make_srd(A, 92, P_WS, ST_OFF, 16384, off_sgpr=21)
    A("v_lshlrev_b32 v89, 1, v20\ns_lshl_b32 s21, s5, 11")
    A("buffer_store_dwordx4 v[28:31], v89, s[92:95], s21 offen sc1")

def z_gather_issue(A):
    for c in range(8):
        A(f"s_mov_b32 s21, {c*2048}\nbuffer_load_dwordx4 v[{56+4*c}:{59+4*c}], v89, s[92:95], s21 offen sc1")

def z_gather_finish(A, NONCE, spin_max):
    lp = A.newlabel("Lst"); ok = A.newlabel("Lstok")
    A("s_mov_b32 s20, 0")
    A.label(lp)
    A("s_waitcnt vmcnt(0)")
    A(f"v_mov_b32 v12, 0")
    for c in range(8):
        A(f"v_xor_b32 v13, s{NONCE}, v{57+4*c}\nv_or_b32 v12, v12, v13\nv_xor_b32 v13, s{NONCE}, v{59+4*c}\nv_or_b32 v12, v12, v13")
    A(f"v_cmp_ne_u32 vcc, 0, v12\ns_cmp_eq_u64 vcc, 0\ns_cbranch_scc1 {ok}")
    A(f"s_add_u32 s20, s20, 1\ns_cmp_gt_u32 s20, {spin_max}\ns_cbranch_scc1 {ok}\ns_sleep 1")
    z_gather_issue(A)
    A(f"s_branch {lp}")
    A.label(ok)
    A("v_add_f32 v40, v56, v60\nv_add_f32 v41, v58, v62")
    for c in range(2, 8): A(f"v_add_f32 v40, v40, v{56+4*c}\nv_add_f32 v41, v41, v{58+4*c}")
    inv = fbits(1.0 / 768.0)
    A(f"""
    v_mul_f32 v40, {inv:#x}, v40
    v_mul_f32 v41, {inv:#x}, v41
    v_fma_f32 v41, -v40, v40, v41
    v_max_f32 v41, 0, v41
    v_add_f32 v41, {fbits(1e-5):#x}, v41
    v_rsq_f32 v42, v41
    s_nop 0
    v_mul_f32 v43, -v40, v42
    """)
    A(f"ds_write_b64 v88, v[42:43] offset:{Z_STAT - Z_PART}\ns_waitcnt lgkmcnt(0)")

def z_epi_norm(A, sc_st="", ST=112, OB=144):
    A(f"s_lshl_b32 s19, s16, 9\ns_add_u32 s19, s19, {Z_STAT}\nv_lshlrev_b32 v3, 5, v2\nv_add_u32 v3, s19, v3")
    for m in range(4):
        A(f"ds_read_b128 v[{ST+8*m}:{ST+8*m+3}], v3 offset:{m*128}\nds_read_b128 v[{ST+8*m+4}:{ST+8*m+7}], v3 offset:{m*128+16}")
    A(f"s_mul_i32 s18, s5, 393216\ns_lshl_b32 s19, s4, 2\ns_lshl_b32 s20, s16, 1\ns_add_u32 s19, s19, s20\ns_mul_i32 s19, s19, 6144\ns_add_u32 s18, s18, s19\ns_mul_i32 s19, s17, 3072\ns_add_u32 s18, s18, s19")
    make_srd(A, 8, P_WS, ZN_OFF, 6144 + 3072, off_sgpr=18)
    A("v_lshlrev_b32 v4, 4, v0\ns_waitcnt lgkmcnt(0)")
    for P in range(2):
        for t in range(3):
            o = OB + 4 * (P * 3 + t)
            for j in range(2):
                m = 2 * P + j
                d = ZA2 + (m * 3 + t) * 4
                for r in range(4):
                    A(f"v_fma_f32 v{d+r}, v{d+r}, v{ST+8*m+2*r}, v{ST+8*m+2*r+1}")
                A(f"v_cvt_pk_bf16_f32 v{o+2*j}, v{d}, v{d+1}\nv_cvt_pk_bf16_f32 v{o+2*j+1}, v{d+2}, v{d+3}")
            A(f"v_permlane32_swap_b32 v{o}, v{o+2}\nv_permlane32_swap_b32 v{o+1}, v{o+3}")
            A(f"v_permlane16_swap_b32 v{o}, v{o+2}\nv_permlane16_swap_b32 v{o+1}, v{o+3}")
            A(f"s_mov_b32 s19, {P*6144 + t*1024}\nbuffer_store_dwordx4 v[{o}:{o+3}], v4, s[8:11], s19 offen {sc_st}")

def z_epi_z1(A, sc_st=""):
    C1, C2, T = 176, 178, 180
    gelu_regs(A, ZA1, 48, C1, C2, T)
    A(f"s_lshl_b32 s18, s4, 1\ns_add_u32 s18, s18, s16\ns_lshl_b32 s18, s18, 3\ns_add_u32 s18, s18, s5\ns_lshl_b32 s18, s18, 2\ns_lshl_b32 s19, s17, 1\ns_add_u32 s18, s18, s19\ns_mul_i32 s18, s18, 3072")
    make_srd(A, 8, P_WS, Z1_OFF, 6144, off_sgpr=18)
    A("v_lshlrev_b32 v4, 4, v0")
    for wt in range(2):
        for t in range(3):
            o = 192 + 4 * (wt * 3 + t)
            for j in range(2):
                d = ZA1 + (t * 4 + 2 * wt + j) * 4
                A(f"v_cvt_pk_bf16_f32 v{o+2*j}, v{d}, v{d+1}\nv_cvt_pk_bf16_f32 v{o+2*j+1}, v{d+2}, v{d+3}")
            A(f"s_mov_b32 s19, {wt*3072 + t*1024}\nbuffer_store_dwordx4 v[{o}:{o+3}], v4, s[8:11], s19 offen {sc_st}")
```

```python
import sys
import common
from common import *
import p1, p2, p3, zrole, z1p
from p1 import *

NONCE = 62
RB64, CB = 60, 61
ZF_OFF, OF_OFF, PF_OFF, HF_OFF, Z1F_OFF = 0x0000, 0x1000, 0x2000, 0x3000, 0x0800
LAZY = 63
NONCE_LDS = 163824 - 2048
NONCE_LDS = 161792
SPIN_MAX = 1 << 17

def flag_srd(A):
    make_srd(A, 28, P_WS, FL_OFF, 0x4000)

TV = [250]
def set_flag(A, soff_sgpr):
    flag_srd(A)
    A(f"s_mov_b64 s[32:33], exec\ns_mov_b64 exec, 1\nv_mov_b32 v{TV[0]}, 0\nv_mov_b32 v{TV[0]+1}, s{NONCE}")
    A(f"buffer_store_dword v{TV[0]+1}, v{TV[0]}, s[28:31], s{soff_sgpr} offen sc1")
    A("s_mov_b64 exec, s[32:33]")

def wait_flags(A, soff_sgpr, n):
    flag_srd(A)
    lo = (1 << min(n, 32)) - 1; hi = (1 << max(n - 32, 0)) - 1
    lp = A.newlabel("Lw"); ok = A.newlabel("Lwok")
    A(f"s_mov_b64 s[32:33], exec\ns_mov_b32 exec_lo, {lo:#x}\ns_mov_b32 exec_hi, {hi:#x}\nv_lshlrev_b32 v{TV[0]}, 2, v0\ns_mov_b32 s34, 0")
    A.label(lp)
    A(f"buffer_load_dword v{TV[0]+1}, v{TV[0]}, s[28:31], s{soff_sgpr} offen sc1\ns_waitcnt vmcnt(0)")
    A(f"v_cmp_ne_u32 vcc, s{NONCE}, v{TV[0]+1}\ns_cmp_eq_u64 vcc, 0\ns_cbranch_scc1 {ok}")
    A(f"s_add_u32 s34, s34, 1\ns_cmp_gt_u32 s34, {SPIN_MAX}\ns_cbranch_scc1 {ok}\ns_sleep 1\ns_branch {lp}")
    A.label(ok)
    A("s_mov_b64 exec, s[32:33]")

def poll_issue(A, soff_sgpr, n, vreg):
    flag_srd(A)
    A(f"v_min_u32 v{TV[0]}, {n-1}, v0\nv_lshlrev_b32 v{TV[0]}, 2, v{TV[0]}\nbuffer_load_dword v{vreg}, v{TV[0]}, s[28:31], s{soff_sgpr} offen sc1")

def poll_check(A, soff_sgpr, n, vreg):
    ok = A.newlabel("Lpok")
    A(f"v_cmp_ne_u32 vcc, s{NONCE}, v{vreg}\ns_cmp_eq_u64 vcc, 0\ns_cbranch_scc1 {ok}")
    wait_flags(A, soff_sgpr, n)
    A.label(ok)

def read_nonce_lds(A):
    A(f"v_mov_b32 v250, {NONCE_LDS}\nds_read_b32 v251, v250\ns_waitcnt lgkmcnt(0)\nv_readfirstlane_b32 s{NONCE}, v251")

def touch_bulk(A, which=3):
    A("s_lshr_b32 s26, s2, 3\ns_lshl_b32 s26, s26, 2\ns_add_u32 s26, s26, s3\ns_lshl_b32 s26, s26, 6")
    A("v_add_u32 v240, s26, v0")
    A("s_and_b32 s27, s2, 7\ns_lshr_b32 s32, s27, 1\ns_and_b32 s32, s32, 1\ns_and_b32 s33, s27, 1")
    make_srd(A, 8, P_AX, 0, 2048 * 1280)
    A("s_lshl_b32 s34, s32, 10\ns_movk_i32 s35, 1280")
    A("v_and_b32 v241, 1023, v240\nv_add_u32 v241, s34, v241\nv_mul_u32_u24 v241, s35, v241\nv_lshrrev_b32 v242, 10, v240\nv_lshl_add_u32 v241, v242, 7, v241")
    if which & 1: A("buffer_load_dword v254, v241, s[8:11], 0 offen offset:256")
    if not (which & 2): return
    wq = A.newlabel("Ltq"); wj = A.newlabel("Ltj")
    A(f"s_cmp_eq_u32 s6, 1\ns_cbranch_scc1 {wq}")
    def wpart(nl, per_seg, rs, segstride, colhalf_bytes, ptr, size, total):
        make_srd(A, 12, ptr, 0, size)
        A(f"s_mul_i32 s25, s33, {colhalf_bytes}\ns_add_u32 s25, s25, {128 * rs}")
        A(f"v_mov_b32 v243, v240")
        udiv_small(A, 243, 244, 246, nl, 31, 16384)
        udiv_small(A, 246, 247, 248, per_seg, 31, 16)
        A(f"s_movk_i32 s31, {rs}\nv_mul_u32_u24 v244, s31, v244\ns_movk_i32 s31, {segstride}\nv_mul_u32_u24 v247, s31, v247\nv_lshlrev_b32 v248, 7, v248\nv_add3_u32 v244, v244, v247, v248")
        A(f"v_cmp_gt_u32 vcc, {512 * nl}, v243\nv_cndmask_b32 v244, -1, v244, vcc")
        A(f"buffer_load_dword v254, v244, s[12:15], s25 offen")
    wpart(15, 5, 3840, 1280, 640, P_WQKV, 640 * 3840, 9600)
    A(f"s_branch {wj}")
    A.label(wq)
    wpart(12, 6, 3072, 1536, 768, P_WIN, 640 * 3072, 7680)
    A.label(wj)

def touch_half(A, h):
    A("s_lshr_b32 s26, s2, 3\ns_lshl_b32 s26, s26, 2\ns_add_u32 s26, s26, s3")
    A("s_and_b32 s27, s2, 7\ns_lshr_b32 s32, s27, 1\ns_and_b32 s32, s32, 1\ns_and_b32 s33, s27, 1")
    A("s_lshl_b32 s34, s26, 5\nv_add_u32 v240, s34, v0\ns_lshl_b32 s34, s32, 10\ns_movk_i32 s35, 1280")
    A(f"v_and_b32 v241, 1023, v240\nv_add_u32 v241, s34, v241\nv_mul_u32_u24 v241, s35, v241\nv_lshrrev_b32 v242, 10, v240\nv_lshl_add_u32 v241, v242, 7, v241\nv_add_u32 v241, {(2 + 4*h) * 128}, v241")
    zq = A.newlabel("Lhz"); pj = A.newlabel("Lhj")
    A(f"s_cmp_eq_u32 s6, 1\ns_cbranch_scc1 {zq}")
    def wp(nper, nl, per_seg, rs, segstride, colbytes, ptr):
        A(f"s_mul_i32 s34, s26, {nper}\ns_sub_u32 s34, s34, 32\nv_add_u32 v243, s34, v0\nv_max_i32 v243, 0, v243\nv_min_u32 v243, {128*nper-1}, v243")
        udiv_small(A, 243, 244, 246, nl, 31, 4096)
        udiv_small(A, 246, 247, 248, per_seg, 31, 16)
        A(f"s_movk_i32 s31, {rs}\nv_mul_u32_u24 v244, s31, v244\ns_movk_i32 s31, {segstride}\nv_mul_u32_u24 v247, s31, v247\nv_lshlrev_b32 v248, 7, v248\nv_add3_u32 v244, v244, v247, v248")
        A(f"s_mul_i32 s25, s33, {colbytes}\ns_add_u32 s25, s25, {(128 + 256*h) * rs}\nv_add_u32 v244, s25, v244")
        A(f"s_mov_b32 s30, s{ptr}\ns_mov_b32 s31, s{ptr+1}\ns_movk_i32 s35, {32+nper}")
    wp(30, 15, 5, 3840, 1280, 640, P_WQKV)
    A(f"s_branch {pj}")
    A.label(zq)
    wp(24, 12, 6, 3072, 1536, 768, P_WIN)
    A.label(pj)
    A("v_cmp_gt_u32 vcc, 32, v0")
    A(f"v_cndmask_b32 v241, v244, v241, vcc")
    A(f"v_mov_b32 v243, s30\nv_mov_b32 v244, s{P_AX}\nv_cndmask_b32 v243, v243, v244, vcc")
    A(f"v_mov_b32 v245, s31\nv_mov_b32 v244, s{P_AX+1}\nv_cndmask_b32 v245, v245, v244, vcc")
    A(f"v_add_co_u32 v246, vcc, v243, v241\nv_addc_co_u32 v247, vcc, 0, v245, vcc")
    A("v_cmp_gt_u32 vcc, s35, v0\ns_and_saveexec_b64 s[34:35], vcc")
    A("global_load_dword v254, v[246:247], off\ns_mov_b64 exec, s[34:35]")

PLEAD = 3
TA_ = 236
def ptouch_setup(A):
    A("s_lshr_b32 s16, s2, 3\ns_and_b32 s17, s2, 7\ns_lshr_b32 s18, s17, 1\ns_and_b32 s18, s18, 1\ns_and_b32 s19, s17, 1")
    A("s_lshl_b32 s20, s18, 10\ns_lshl_b32 s21, s16, 5\ns_add_u32 s20, s20, s21\nv_add_u32 v230, s20, v0\ns_movk_i32 s21, 1280\nv_mul_u32_u24 v230, s21, v230")
    zq = A.newlabel("Lpz"); pj = A.newlabel("Lpj")
    A(f"s_cmp_eq_u32 s6, 1\ns_cbranch_scc1 {zq}")
    def wp(nper, nl, per_seg, rs, segstride, colbytes, ptr, inc):
        A(f"s_mul_i32 s20, s16, {nper}\ns_sub_u32 s20, s20, 32\nv_add_u32 v231, s20, v0")
        A(f"v_max_i32 v231, 0, v231\nv_min_u32 v231, {32*nper-1}, v231")
        udiv_small(A, 231, 232, 233, nl, 23, 1024)
        udiv_small(A, 233, 234, 235, per_seg, 23, 16)
        A(f"s_movk_i32 s23, {rs}\nv_mul_u32_u24 v232, s23, v232\ns_movk_i32 s23, {segstride}\nv_mul_u32_u24 v234, s23, v234\nv_lshlrev_b32 v235, 7, v235\nv_add3_u32 v232, v232, v234, v235")
        A(f"s_mul_i32 s22, s19, {colbytes}\nv_add_u32 v232, s22, v232")
        A(f"s_mov_b32 s24, s{ptr}\ns_mov_b32 s25, s{ptr+1}\ns_mov_b32 s26, {inc}\ns_movk_i32 s27, {32+nper}")
    wp(30, 15, 5, 3840, 1280, 640, P_WQKV, 64 * 3840)
    A(f"s_branch {pj}")
    A.label(zq)
    wp(24, 12, 6, 3072, 1536, 768, P_WIN, 64 * 3072)
    A.label(pj)
    A("v_cmp_gt_u32 vcc, 32, v0")
    A(f"v_cndmask_b32 v230, v232, v230, vcc")
    A(f"v_mov_b32 v231, s24\nv_mov_b32 v232, s{P_AX}\nv_cndmask_b32 v231, v231, v232, vcc")
    A(f"v_mov_b32 v233, s25\nv_mov_b32 v232, s{P_AX+1}\nv_cndmask_b32 v233, v233, v232, vcc")
    A(f"v_mov_b32 v238, s26\nv_mov_b32 v232, 128\nv_cndmask_b32 v238, v238, v232, vcc")
    A(f"v_add_co_u32 v{TA_}, vcc, v231, v230\nv_addc_co_u32 v{TA_+1}, vcc, 0, v233, vcc")
    A("v_cmp_gt_u32 s[90:91], s27, v0")

def ptouch(A):
    A(f"s_mov_b64 s[88:89], exec\ns_mov_b64 exec, s[90:91]")
    A(f"global_load_dword v254, v[{TA_}:{TA_+1}], off")
    A(f"v_add_co_u32 v{TA_}, vcc, v238, v{TA_}\nv_addc_co_u32 v{TA_+1}, vcc, 0, v{TA_+1}, vcc")
    A("s_mov_b64 exec, s[88:89]")

def ptouch_skip(A):
    A(f"v_add_co_u32 v{TA_}, vcc, v238, v{TA_}\nv_addc_co_u32 v{TA_+1}, vcc, 0, v{TA_+1}, vcc")

def touch_wsp(A):
    A(f"s_lshl_b32 s26, s{RB64}, 18\ns_lshl_b32 s27, s{CB}, 15\ns_add_u32 s26, s26, s27\ns_lshl_b32 s27, s3, 13\ns_add_u32 s26, s26, s27")
    make_srd(A, 28, P_WSP, 0, 2048 * 4096)
    A("v_lshlrev_b32 v240, 7, v0\nbuffer_load_dword v254, v240, s[28:31], s26 offen")

def touch_wsp_l2(A):
    A(f"s_lshl_b32 s24, s{RB64}, 18\ns_and_b32 s25, s{CB}, 3\ns_lshl_b32 s25, s25, 16\ns_add_u32 s24, s24, s25")
    make_srd(A, 92, P_WSP, 0, 2048 * 4096)
    A("s_sub_u32 s25, s3, 4\ns_lshl_b32 s25, s25, 7\nv_add_u32 v230, s25, v0")
    for j in range(2):
        A(f"v_add_u32 v231, {64*j}, v230\nv_and_b32 v232, 15, v231\nv_lshrrev_b32 v231, 4, v231\nv_lshlrev_b32 v231, 7, v231\nv_lshl_add_u32 v231, v232, 12, v231")
        A(f"buffer_load_dword v{233+j}, v231, s[92:95], s24 offen")

def touch_z(A, sc):
    A(f"s_mul_i32 s24, s5, 393216")
    make_srd(A, 92, P_WS, ZN_OFF, 393216, off_sgpr=24)
    A("s_and_b32 s24, s4, 7\ns_mul_i32 s24, s24, 768")
    A("s_sub_u32 s25, s3, 4\ns_lshl_b32 s25, s25, 6\nv_add_u32 v24, s25, v0")
    for j in range(2):
        A(f"v_add_u32 v25, {256*j}, v24")
        udiv_small(A, 25, 26, 27, 12, 25, 512)
        udiv_small(A, 27, 28, 29, 6, 25, 12)
        A("v_lshl_add_u32 v26, v28, 5, v26\ns_movk_i32 s25, 6144\nv_mul_u32_u24 v26, s25, v26\nv_lshl_add_u32 v26, v29, 7, v26")
        if j == 1: A("v_cmp_gt_u32 vcc, 384, v25\nv_cndmask_b32 v26, -1, v26, vcc")
        A(f"buffer_load_dword v{30+j}, v26, s[92:95], s24 offen {sc}")

def touch_wp(A, sc):
    A(f"s_mul_i32 s24, s5, {WP_CB}")
    make_srd(A, 92, P_WS, WP_OFF, WP_CB, off_sgpr=24)
    A("s_sub_u32 s25, s3, 4\ns_lshl_b32 s25, s25, 6\nv_add_u32 v230, s25, v0\nv_lshlrev_b32 v231, 3, v230\ns_and_b32 s24, s4, 7\nv_add_u32 v231, s24, v231\nv_lshlrev_b32 v231, 7, v231")
    A(f"buffer_load_dword v238, v231, s[92:95], 0 offen {sc}")

def touch_a3(A, sc, blk0, nblk):
    total = 4 * nblk * 8
    A(f"s_mul_i32 s24, s4, {4*44*1024}")
    make_srd(A, 92, P_WS, A3_OFF, 4 * 44 * 1024, off_sgpr=24)
    A("s_and_b32 s24, s5, 3")
    n = -(-total // 4 // 64)
    for j in range(n):
        A(f"v_add_u32 v230, {64*j}, v0\nv_lshlrev_b32 v230, 2, v230\nv_add_u32 v230, s24, v230")
        A(f"v_lshrrev_b32 v231, 5, v230\nv_bfe_u32 v232, v230, 3, 2\nv_and_b32 v233, 7, v230\nv_mul_u32_u24 v232, 44, v232\nv_add3_u32 v231, v231, v232, {blk0}\nv_lshlrev_b32 v231, 10, v231\nv_lshl_add_u32 v231, v233, 7, v231")
        A(f"v_cmp_gt_u32 vcc, {total}, v230\nv_cndmask_b32 v231, -1, v231, vcc")
        A(f"buffer_load_dword v{239+j}, v231, s[92:95], 0 offen {sc}")

def poison_h(A):
    A(f"s_lshl_b32 s26, s{RB64}, 2\ns_add_u32 s26, s26, s3\ns_sub_u32 s26, s26, 4\ns_mul_i32 s26, s26, 44\ns_mul_i32 s25, s{CB}, 3\ns_add_u32 s26, s26, s25\ns_add_u32 s26, s26, 20\ns_lshl_b32 s26, s26, 10")
    make_srd(A, 28, P_WS, A3_OFF, A3_SIZE)
    A("v_mov_b32 v20, -1\nv_mov_b32 v21, -1\nv_mov_b32 v22, -1\nv_mov_b32 v23, -1\nv_lshlrev_b32 v19, 4, v0")
    for j in range(3): A(f"buffer_store_dwordx4 v[20:23], v19, s[28:31], s26 offen offset:{j*1024} sc1")

def poison_z(A):
    A(f"s_mul_i32 s26, s5, 393216\ns_lshl_b32 s25, s4, 2\ns_sub_u32 s24, s3, 6\ns_lshl_b32 s24, s24, 1\ns_add_u32 s25, s25, s24\ns_mul_i32 s25, s25, 6144\ns_add_u32 s26, s26, s25")
    make_srd(A, 28, P_WS, ZN_OFF, 8 * 393216)
    A("v_mov_b32 v44, -1\nv_mov_b32 v45, -1\nv_mov_b32 v46, -1\nv_mov_b32 v47, -1\nv_lshlrev_b32 v43, 4, v0")
    for q in range(3):
        for j in range(4): A(f"buffer_store_dwordx4 v[44:47], v43, s[28:31], s26 offen offset:{j*1024} sc1")
        A("s_add_u32 s26, s26, 4096")

NV = [243]
def early_w(A, Q):
    p2.park_setup(A, RB64)
    A("s_sub_u32 s25, s3, 4\ns_lshl_b32 s25, s25, 11")
    for blk in (0, 4):
        slot = p2.W_SLOT_OF[blk]
        p2.blk_off(A, 26, blk)
        for part in range(4):
            for e in range(2):
                A(f"s_add_u32 m0, s25, {slot * p2.W_SLOT + (16 * part + 2 * e) * 512}\ns_add_u32 s24, s26, {part * 16 * 4096}")
                A(f"buffer_load_dwordx4 v{p2.PARK_VO+e}, s[40:43], s24 offen lds")
    Q.issue(("ew", 0), 16)

def tlb_warm(A, shift=16):
    jobs = [(P_WS, 0xF00000 + 0x100000, 0), (P_WS, 0xF00000 + 0x100000, 1), (P_WS, 0xF00000 + 0x100000, 2), (P_WS, 0xF00000 + 0x100000, 3),
            (P_WSP, 2048 * 4096, 0), (P_WSP, 2048 * 4096, 1), (P_OUT, 2048 * 1280, 0), (P_WO, 640 * 1280, 0), (P_WOUT, 768 * 1280, 0),
            (P_AX, 2048 * 1280, 0), (P_WQKV, 640 * 3840, 0), (P_WIN, 640 * 3072, 0)]
    end = A.newlabel("Ltlbe")
    A(f"s_lshr_b32 s26, s2, 3\nv_lshlrev_b32 v240, {shift}, v0")
    for j, (ptr, size, part) in enumerate(jobs):
        nx = A.newlabel("Ltlb")
        A(f"s_cmp_lg_u32 s26, {j}\ns_cbranch_scc1 {nx}")
        make_srd(A, 8, ptr, 0, size)
        A(f"s_mov_b32 s27, {part * 64 << shift}\nbuffer_load_dword v254, v240, s[8:11], s27 offen\ns_branch {end}")
        A.label(nx)
    A.label(end)

def nonce_issue(A):
    make_srd(A, 28, P_DBG, 0, 256)
    A(f"v_mov_b32 v{NV[0]}, 0\nbuffer_load_dword v{NV[0]+1}, v{NV[0]}, s[28:31], 0 offen sc1")

def nonce_take(A):
    ok = A.newlabel("Lnok")
    A(f"s_waitcnt vmcnt(0)\nv_readfirstlane_b32 s{NONCE}, v{NV[0]+1}\ns_cmp_lg_u32 s{NONCE}, 0\ns_cbranch_scc1 {ok}")
    get_nonce(A, NONCE)
    A.label(ok)

def code_prefetch(A, nbytes):
    lines = -(-nbytes // 128)
    per = -(-lines // 32)
    assert per <= 64
    pc = A.newlabel("Lpc")
    A("s_getpc_b64 s[16:17]")
    A.label(pc)
    A(f"s_sub_u32 s16, s16, {pc}-{NAME}_kernel\ns_subb_u32 s17, s17, 0")
    A(f"s_lshr_b32 s18, s2, 3\ns_mul_i32 s18, s18, {per*128}\nv_lshlrev_b32 v240, 7, v0\nv_add_u32 v240, s18, v240")
    A(f"v_cmp_gt_u32 vcc, {per}, v0\ns_and_saveexec_b64 s[18:19], vcc")
    A(f"v_min_u32 v240, {nbytes - 4}, v240\nglobal_load_dword v255, v240, s[16:17]\ns_mov_b64 exec, s[18:19]")

DBGT = "dbgt" in sys.argv
def dbg_time(A, idx, neg=False):
    if not DBGT or neg: return
    l = A.newlabel("Ldt")
    A(f"s_cmp_lg_u32 s3, 0\ns_cbranch_scc1 {l}\ns_and_b32 s32, s2, 0xfffffffb\ns_cmp_lg_u32 s32, 0\ns_cbranch_scc1 {l}")
    make_srd(A, 28, P_DBG, 0, 256)
    A(f"s_mul_i32 s34, s2, 7\ns_add_u32 s34, s34, {idx*4}")
    A("s_memrealtime s[32:33]\ns_waitcnt lgkmcnt(0)")
    A(f"s_mov_b64 vcc, exec\ns_mov_b64 exec, 1\nv_mov_b32 v252, 0\nv_mov_b32 v253, s32\nbuffer_store_dword v253, v252, s[28:31], s34 offen\ns_mov_b64 exec, vcc")
    A.label(l)

ST0 = "st0" in sys.argv
def st0(A, i):
    if ST0: A(f"s_memrealtime s[{64+2*i}:{65+2*i}]")
def st0_dump(A):
    if not ST0: return
    l = A.newlabel("Lst0")
    A(f"s_and_b32 s32, s2, 0xfffffffb\ns_cmp_lg_u32 s32, 0\ns_cbranch_scc1 {l}\ns_cmp_lg_u32 s3, 4\ns_cbranch_scc1 {l}")
    make_srd(A, 28, P_DBG, 0, 256)
    A("s_waitcnt lgkmcnt(0)\ns_mul_i32 s34, s2, 7\ns_add_u32 s34, s34, 4\nv_mov_b32 v252, 0\ns_mov_b64 exec, 1")
    for i in range(6): A(f"v_mov_b32 v253, s{64+2*i}\nbuffer_store_dword v253, v252, s[28:31], s34 offen offset:{4*i}")
    A("s_waitcnt vmcnt(0)")
    A.label(l)

def gen(opts):
    A = Asm()
    kstart = A.newlabel("Lkstart")
    st0(A, 0)
    end = prologue(A, codepf=opts.get('codepf', 0) if opts.get('earlycode', True) else 0, kname=NAME + '_kernel')
    st0(A, 1)
    stamp(A, 0); stamp(A, 5, cyc=True)
    dbg_time(A, 1)
    A("s_mov_b32 s99, 4096")
    p2.wg_map_p23(A)
    A(f"s_mov_b32 s{RB64}, s4\ns_mov_b32 s{CB}, s5")
    wg_map_p1(A)
    p1.rot_setup(A)
    if "noprio" not in sys.argv:
        lp = A.newlabel("Lprio")
        A(f"s_cmp_ge_u32 s3, 4\ns_cbranch_scc{0 if 'priol' in sys.argv else 1} {lp}\ns_setprio 1")
        A.label(lp)
    p2.rot2_setup(A, ('rot2' in sys.argv) and not opts.get('park', True))
    def T0():
        pass
    def preb0(A):
        if opts.get("touch") == "bulk" and opts.get("half"): touch_half(A, 0); return
        if opts.get("touch") == "bulk" and opts.get("latetouch"): touch_bulk(A, 2 if opts.get("split") else 3)
    PK = opts.get("park", True)
    def park_each_q(A, Q, u):
        if not PK: return
        if "park3" in sys.argv:
            if u == 19: p2.park_setup(A, RB64)
            return
        if u == 7: p2.park_setup(A, RB64)
        if u >= 8:
            for j in range(2): p2.park_load(A, 2 * (u - 8) + j)
            Q.issue(("pk", u), 2)
    def park_tail(n0):
        if not PK: return
        if "park3" in sys.argv: n0 = 0
        for i in range(n0, 8 * len(p2.PARK_BLOCKS)): p2.park_load(A, i)
    def park_each_z(A, Q, st):
        if not PK: return
        if "park3" in sys.argv:
            if st == 15: p2.park_setup(A, RB64)
            if st >= 16:
                for i in range(6 * (st - 16), 6 * (st - 16) + 6): p2.park_load(A, i)
                Q.issue(("pk", st), 6)
            return
        if st == 5: p2.park_setup(A, RB64)
        if st >= 6:
            lo = 3 * (st - 6); hi = min(40, lo + 3)
            for i in range(lo, hi): p2.park_load(A, i)
            if hi > lo: Q.issue(("pk", st), hi - lo)
    def iter_hook(A):
        if opts.get("touch") == "bulk" and opts.get("half"):
            l = A.newlabel("Lsp"); A(f"s_cmp_lg_u32 s24, 1\ns_cbranch_scc1 {l}"); touch_half(A, 1); A.label(l)
            return
        if opts.get("touch") == "bulk" and opts.get("split"):
            l = A.newlabel("Lsp"); A(f"s_cmp_lg_u32 s24, 0\ns_cbranch_scc1 {l}"); touch_bulk(A, 1); A.label(l)
        if opts.get("touch") != "paced": return
        l = A.newlabel("Lit")
        A(f"s_cmp_lg_u32 s3, 0\ns_cbranch_scc1 {l}\ns_cmp_ge_u32 s24, {9 - PLEAD}\ns_cbranch_scc1 {l}")
        ptouch(A)
        A.label(l)
    def mid_hook(A):
        if opts.get("touch", True): touch_wsp(A)
        nonce_issue(A)
    P1EXIT = A.newlabel("Lp1exit")
    P2 = A.newlabel("LP2")
    zrole_l = A.newlabel("Lz_role")
    SC = "sc1"
    notc = A.newlabel("Lnotc")
    A(f"s_cmp_ge_u32 s3, 4\ns_cbranch_scc1 {notc}")
    pub = A.newlabel("Lpub")
    A(f"s_lshl_b32 s16, s2, 3\ns_add_u32 s16, s16, s3\ns_cmp_lg_u32 s16, 3\ns_cbranch_scc1 {pub}")
    publish_nonce(A)
    A.label(pub)
    if opts.get("touch") == "bulk" and not opts.get("latetouch"): touch_bulk(A)
    if opts.get("touch") == "paced":
        w0 = A.newlabel("Lw0")
        A(f"v_mov_b32 v{TA_}, s{P_AX}\nv_mov_b32 v{TA_+1}, s{P_AX+1}\nv_mov_b32 v238, 0\ns_mov_b64 s[90:91], 1")
        A(f"s_cmp_lg_u32 s3, 0\ns_cbranch_scc1 {w0}")
        ptouch_setup(A)
        ptouch_skip(A)
        for _ in range(PLEAD): ptouch(A)
        A.label(w0)
    if opts.get("tlb"):
        w2 = A.newlabel("Lw2"); A(f"s_cmp_lg_u32 s3, 2\ns_cbranch_scc1 {w2}"); tlb_warm(A); A.label(w2)
    w3 = A.newlabel("Lw3")
    A(f"s_cmp_lg_u32 s3, 3\ns_cbranch_scc1 {w3}")
    if opts.get("codepf", 0) and not opts.get("earlycode", True): code_prefetch(A, opts["codepf"])
    A.label(w3)
    A.label(notc)
    A(f"s_cmp_eq_u32 s6, 1\ns_cbranch_scc1 {zrole_l}")
    lw = A.newlabel("Lq_w"); lx = A.newlabel("Lq_x"); att = A.newlabel("Lq_att"); ldj = A.newlabel("Lq_ldj")
    A(f"s_cmp_eq_u32 s3, 7\ns_cbranch_scc1 {lx}\ns_cmp_ge_u32 s3, 4\ns_cbranch_scc1 {lw}")
    qkv_consumer(A)
    wg3 = A.newlabel("Lq_c3")
    A(f"s_cmp_eq_u32 s3, 3\ns_cbranch_scc1 {wg3}")
    for gate in (False, True):
        if gate: A.label(wg3)
        qkv_main(A, gate, mid=mid_hook, it_hook=iter_hook, b0hook=lambda A: dbg_time(A, 2), preb0=preb0)
        dbg_time(A, 3)
        stamp(A, 3)
        nonce_take(A)
        qkv_epilogue_store(A, gate)
        A(f"s_waitcnt lgkmcnt(0)\ns_barrier\ns_branch {att}")
    A.label(lw)
    st0(A, 2)
    TV[0] = 12; NV[0] = 14
    w_loader(A, QKV, late=nonce_issue, pre=T0, early=lambda: pack_issue(A), each=park_each_q)
    nonce_take(A)
    pack_finish(A, SC, lazy=True)
    A(f"s_branch {ldj}")
    A.label(lx)
    A("s_mov_b32 s27, 999")
    x_loader(A, QKV, late=nonce_issue, pre=T0, each=park_each_q)
    nonce_take(A)
    A.label(ldj)
    A("s_barrier")
    if not opts.get("latew"):
        p2.p2l_setup(A, RB64)
        p2.p2l_issue(A, 0); p2.p2l_issue(A, 4)
    park_tail(24)
    TV[0] = 250; NV[0] = 243
    A.label(att)
    stamp(A, 7)
    attention(A, SC)
    A("s_barrier")
    A(f"s_lshl_b32 s16, s4, 7\ns_lshl_b32 s17, s5, 2\ns_add_u32 s16, s16, s17\ns_add_u32 s{LAZY}, s16, {OF_OFF}")
    A(f"s_branch {P2}")
    def gen_z_onepass():
        A.label(zrole_l)
        zld = A.newlabel("Lz_ld")
        A(f"s_cmp_ge_u32 s3, 4\ns_cbranch_scc1 {zld}")
        z1p.consumer(A, mid=mid_hook, b0hook=lambda A: dbg_time(A, 2))
        stamp(A, 3)
        nonce_take(A)
        zrole.z_epi_stats(A)
        A("s_barrier")
        zrole.z_epi_z1(A, SC)
        stamp(A, 7)
        A("s_barrier")
        zrole.z_epi_norm(A, SC)
        A("s_barrier")
        A(f"s_branch {P2}")
        A.label(zld)
        TV[0] = 12; NV[0] = 22
        A("s_mov_b32 s27, 999")
        def st4(A, Q):
            nonce_issue(A); Q.issue(("n", 0), 1)
        z1p.loader(A, hooks_w={"early": lambda A, Q: pack_issue(A), 4: st4},
                   hooks_x={2: lambda A, Q: (poison_z(A), Q.issue(("pz", 0), 12)), 4: st4})
        nonce_take(A)
        A("s_barrier")
        xw = A.newlabel("Lzxw")
        A(f"s_cmp_ge_u32 s3, 6\ns_cbranch_scc1 {xw}")
        zrole.z_publish_stats(A, NONCE)
        zrole.z_gather_issue(A)
        pack_finish(A, SC, lazy=True)
        zrole.z_gather_finish(A, NONCE, SPIN_MAX)
        A.label(xw)
        A("s_barrier")
        A("s_barrier")
        p2.p2l_setup(A, RB64)
        p2.p2l_issue(A, 0); p2.p2l_issue(A, 4)
        A(f"s_lshl_b32 s16, s4, 5\ns_lshl_b32 s17, s5, 2\ns_add_u32 s16, s16, s17\ns_add_u32 s{LAZY}, s16, {Z1F_OFF}")

    def gen_z_twopass():
        A.label(zrole_l)
        EN = opts.get('earlynorm', True)
        def nonce_take_noop(A): pass
        zld = A.newlabel("Lz_ld")
        A(f"s_cmp_ge_u32 s3, 4\ns_cbranch_scc1 {zld}")
        def between(A):
            zrole.z_epi_stats(A)
            A("s_barrier")
        zrole.z_consumer(A, mid=mid_hook, between=between, it_hook=iter_hook, b0hook=lambda A: dbg_time(A, 2), preb0=preb0,
                         p2hook=(lambda A: (nonce_take_noop(A), zrole.z_epi_norm(A, SC, ST=192, OB=224))) if EN else None, p2iter=6)
        dbg_time(A, 3)
        stamp(A, 7)
        nonce_take(A)
        A("s_barrier")
        if not EN: zrole.z_epi_norm(A, SC)
        A("s_barrier")
        zrole.z_epi_z1(A, SC)
        A(f"s_branch {P2}")
        A.label(zld)
        st0(A, 2)
        TV[0] = 12; NV[0] = 14
        pk = A.newlabel("Lzpk")
        A("s_mov_b32 s27, 999")
        def st4(A, Q):
            nonce_issue(A); Q.issue(("n", 0), 1)
        def after_z1(A, Q):
            n = Q.wait_for({("n", 0)})
            ok = A.newlabel("Lnok")
            A(f"s_waitcnt vmcnt({n})\nv_readfirstlane_b32 s{NONCE}, v{NV[0]+1}\ns_cmp_lg_u32 s{NONCE}, 0\ns_cbranch_scc1 {ok}")
            get_nonce(A, NONCE)
            A.label(ok)
            Q.retire(n)
            zrole.z_publish_stats(A, NONCE); Q.issue(("s", 0), 1)
            pack_finish(A, SC, lazy=True)
        def pre_last(A, Q):
            if not EN: zrole.z_gather_issue(A); Q.issue(("g", 0), 8)
        def g_issue(A, Q):
            if EN: zrole.z_gather_issue(A); Q.issue(("g", 0), 8)
        def g_finish(A, Q):
            if EN: zrole.z_gather_finish(A, NONCE, SPIN_MAX); Q.q.clear()
        zrole.z_loader(A, late=None, hooks={"st4": st4, "after_z1": after_z1, "pre_last": pre_last, ("st", 12): g_issue, ("st", 14): g_finish, "st13": early_w, "each": park_each_z, "early": lambda A, Q: pack_issue(A)}, pre=T0, xhooks={"each": park_each_z, "st13": early_w, "st2": lambda A, Q: (poison_z(A), Q.issue(("pz", 0), 12))})
        xw = A.newlabel("Lzxw"); xj = A.newlabel("Lzxj")
        A(f"s_cmp_ge_u32 s3, 6\ns_cbranch_scc1 {xw}")
        if not EN: zrole.z_gather_finish(A, NONCE, SPIN_MAX)
        A(f"s_branch {xj}")
        A.label(xw)
        nonce_issue(A); nonce_take(A)
        A.label(xj)
        A("s_barrier")
        A("s_barrier")
        A(f"s_lshl_b32 s16, s4, 5\ns_lshl_b32 s17, s5, 2\ns_add_u32 s16, s16, s17\ns_add_u32 s{LAZY}, s16, {Z1F_OFF}")

    if opts.get('onepass'):
        gen_z_onepass()
    else:
        gen_z_twopass()
    TV[0] = 250; NV[0] = 243
    A.label(P2)
    dbg_time(A, 4)
    if not p1.FINE: stamp(A, 8)
    if opts.get("p1only"):
        A(f"s_waitcnt vmcnt(0)\ns_branch {P1EXIT}")
    A(f"s_mov_b32 s4, s{RB64}\ns_mov_b32 s5, s{CB}")
    if "small2" in sys.argv: A(f"s_and_b32 s4, s4, 1\ns_and_b32 s5, s5, 1\ns_and_b32 s{RB64}, s{RB64}, 1")
    ld2 = A.newlabel("Lp2ld"); fin = A.newlabel("Lfin")
    A(f"s_cmp_ge_u32 s3, 4\ns_cbranch_scc1 {ld2}")
    stamp(A, 9)
    p2.p2_consumer(A, sc_st=SC, sc_ld=opts.get('scld', SC), lazy_z1=True, last_hook=lambda: p3.p3_early(A, 4, opts.get('scld', SC)), last_n=10, poison=True)
    stamp(A, 10)
    dbg_time(A, 5)
    def hflag_c():
        A(f"s_lshl_b32 s26, s4, 7\ns_lshl_b32 s27, s5, 4\ns_add_u32 s26, s26, s27\ns_lshl_b32 s27, s3, 2\ns_add_u32 s26, s26, s27\ns_add_u32 s26, s26, {HF_OFF}")
        set_flag(A, 26)
    p3.p3_consumer(A, sc_ld=opts.get('scld', SC), drain0=True, early_done=True, poison=True)
    A("s_waitcnt vmcnt(0)")
    A(f"s_branch {fin}")
    A.label(ld2)
    TV[0] = 12; NV[0] = 14
    def pf_wait():
        A(f"s_lshl_b32 s21, s5, 8\ns_add_u32 s21, s21, {PF_OFF}")
        wait_flags(A, 21, 44)
    def only(wave, fn):
        l = A.newlabel("Lonly"); A(f"s_cmp_lg_u32 s3, {wave}\ns_cbranch_scc1 {l}"); fn(); A.label(l)
    def lazy(): set_flag(A, LAZY)
    T2 = opts.get("touch2", True)
    def z1off(): A(f"s_lshr_b32 s21, s4, 1\ns_lshl_b32 s21, s21, 5\ns_lshl_b32 s19, s5, 2\ns_add_u32 s21, s21, s19\ns_add_u32 s21, s21, {Z1F_OFF}")
    def ooff(): A(f"s_lshr_b32 s21, s4, 1\ns_lshl_b32 s21, s21, 7\ns_add_u32 s21, s21, {OF_OFF}")
    def hoff(): A(f"s_lshl_b32 s21, s4, 7\ns_add_u32 s21, s21, {HF_OFF}")
    def start2():
        if opts.get("latew"):
            lq = A.newlabel("Llw"); A(f"s_cmp_lg_u32 s6, 0\ns_cbranch_scc1 {lq}")
            p2.p2l_issue(A, 0); p2.p2l_issue(A, 4)
            A.label(lq)
        pk = A.newlabel("Lpkf")
        A(f"s_cmp_ge_u32 s27, 352\ns_cbranch_scc1 {pk}")
        pack_flag(A)
        A.label(pk)
        if T2:
            touch_z(A, opts.get('sctouch', SC))
        poison_h(A)
    def post_b1():
        only(4, lazy)
    def post_b2():
        only(5, lambda: (z1off(), poll_issue(A, 21, 1, 16)))
        only(6, lambda: (ooff(), poll_issue(A, 21, 8, 16)))
        A(f"s_lshl_b32 s21, s5, 8\ns_add_u32 s21, s21, {PF_OFF}")
        poll_issue(A, 21, 44, 17)
    def pre_b3():
        A("s_waitcnt vmcnt(0)")
        only(5, lambda: (z1off(), poll_check(A, 21, 1, 16)))
        only(6, lambda: (ooff(), poll_check(A, 21, 8, 16)))
        A(f"s_lshl_b32 s21, s5, 8\ns_add_u32 s21, s21, {PF_OFF}")
        poll_check(A, 21, 44, 17)
    def hflag():
        A(f"s_lshl_b32 s21, s4, 7\ns_lshl_b32 s19, s5, 2\ns_add_u32 s21, s21, s19\ns_add_u32 s21, s21, {HF_OFF}")
        set_flag(A, 21)
    hooks = {"park": PK, "start": start2, "post_b1": post_b1, "post_b2": post_b2, "before_b3": pre_b3}
    hooks3 = {}
    p2.p2_loader_rest(A, RB64, opts.get('scld', SC), hooks, hooks3)
    A.label(fin)
    A.label(P1EXIT)
    st0(A, 5); st0_dump(A)
    dbg_time(A, 6)
    stamp(A, 4); stamp(A, 6, cyc=True)
    dump_stamps(A, 14)
    A.label(end)
    A("s_endpgm")
    txt = A.text(verbose=True)
    return txt.replace("SC_ST", SC)

def pack_flag_factory(A):
    pass

def pack_flag(A):
    A(f"s_and_b32 s16, s27, 7\ns_lshl_b32 s16, s16, 8\ns_lshr_b32 s17, s27, 3\ns_lshl_b32 s17, s17, 2\ns_add_u32 s16, s16, s17\ns_add_u32 s16, s16, {PF_OFF}")
    set_flag(A, 16)

if __name__ == "__main__":
    common.set_profile("prof" in sys.argv)
    opts = {"touch": (False if "notouch" in sys.argv else "paced" if "paced" in sys.argv else "bulk" if "bulk" in sys.argv else "none1"), "p1only": "p1only" in sys.argv, "touch2": "touch2" in sys.argv, "park": "park" in sys.argv or "park3" in sys.argv}
    if "plainld" in sys.argv: opts["scld"] = ""
    opts["delay2"] = "delay2" in sys.argv
    opts["earlycode"] = "earlycode" in sys.argv
    opts["latew"] = "latew" in sys.argv
    opts["onepass"] = "onepass" in sys.argv
    opts["earlynorm"] = "earlynorm" in sys.argv
    opts["tlb"] = "tlb" in sys.argv
    opts["half"] = "half" in sys.argv
    opts["split"] = "split" in sys.argv
    opts["latetouch"] = "earlytouch" not in sys.argv
    if "plaintouch" in sys.argv: opts["sctouch"] = ""
    body = gen(opts)
    if "nocodepf" not in sys.argv:
        import subprocess
        tmp = build_file([(NAME + "_kernel", body, 256, 102, 256)], [(NAME + "_kernel", 256, 512, LDS_MAX)])
        open("_tmp.s", "w").write(tmp)
        subprocess.run(["clang", "-x", "assembler", "-target", "amdgcn-amd-amdhsa", "-mcpu=gfx950", "-c", "_tmp.s", "-o", "_tmp.o"], check=True)
        out = subprocess.run(["llvm-readelf", "-S", "_tmp.o"], capture_output=True, text=True).stdout
        size = [int(l.split("PROGBITS")[1].split()[2], 16) for l in out.splitlines() if ".text" in l][0]
        opts["codepf"] = size - 256
        body = gen(opts)
        print("code bytes", size)
    txt = build_file([(NAME + "_kernel", body, 256, 102, 256)], [(NAME + "_kernel", 256, 512, LDS_MAX)])
    open(sys.argv[1], "w").write(txt)
```

```python
from common import *

FINE = 'fine' in sys.argv
NOLOAD = 'noload' in sys.argv
NOBAR = 'nobar' in sys.argv
NSUB = 20
MIXED = 'mixed' in sys.argv
ROT = 'norot' not in sys.argv
S_V0 = 7
def rot_setup(A):
    if not ROT:
        A('s_mov_b32 s7, 0'); return
    A('s_lshr_b32 s7, s2, 5\ns_and_b32 s7, s7, 7\ns_lshr_b32 s16, s2, 3\ns_and_b32 s16, s16, 3\ns_mul_i32 s16, s16, 3\ns_add_u32 s7, s7, s16\ns_cmp_ge_u32 s7, 10\ns_cselect_b32 s16, 10, 0\ns_sub_u32 s7, s7, s16')

def wg_map_p1(A):
    if MIXED:
        A("""
        s_and_b32 s6, s2, 7
        s_lshr_b32 s7, s2, 3
        s_lshr_b32 s4, s6, 1
        s_lshl_b32 s4, s4, 2
        s_lshr_b32 s5, s7, 2
        s_and_b32 s5, s5, 3
        s_add_u32 s4, s4, s5
        s_and_b32 s5, s6, 1
        s_lshl_b32 s5, s5, 2
        s_and_b32 s6, s7, 3
        s_add_u32 s5, s5, s6
        s_lshr_b32 s6, s7, 4
        """)
        return
    A("""
    s_and_b32 s6, s2, 7
    s_lshr_b32 s7, s2, 3
    s_and_b32 s4, s6, 2
    s_lshl_b32 s4, s4, 2
    s_lshr_b32 s5, s7, 2
    s_add_u32 s4, s4, s5
    s_and_b32 s5, s6, 1
    s_lshl_b32 s5, s5, 2
    s_and_b32 s7, s7, 3
    s_add_u32 s5, s5, s7
    s_lshr_b32 s6, s6, 2
    """)

def udiv_small(A, q, d, r, n, tmp_s, qmax):
    for sh in range(10, 24):
        m = -(-(1 << sh) // n)
        if all((x * m) >> sh == x // n for x in range(qmax)) and m * qmax < (1 << 32) and m < (1 << 24): break
    else: raise ValueError
    A(f"s_mov_b32 s{tmp_s}, {m}")
    A(f"v_mul_u32_u24 v{d}, s{tmp_s}, v{q}")
    A(f"v_lshrrev_b32 v{d}, {sh}, v{d}")
    A(f"v_mul_u32_u24 v{r}, {n}, v{d}")
    A(f"v_sub_u32 v{r}, v{q}, v{r}")

class Role:
    pass
QKV = Role(); QKV.name = "qkv"
QKV.W_SLOT = 18432; QKV.NW = 5; QKV.W_RING = 0
QKV.X_SLOT = 18432; QKV.NX = 3; QKV.X_RING = 92160; QKV.MT = 9
QKV.WI = 6
QKV.GATE = 147456
Z = Role(); Z.name = "z"
Z.W_SLOT = 12288; Z.NW = 6; Z.W_RING = 0
Z.X_SLOT = 16384; Z.NX = 3; Z.X_RING = 73728; Z.MT = 8
Z.WI = 4

def barrier_plan_loader(R, A, issue, Q, tags_needed, late=None, each=None):
    for u in range(NSUB):
        n = Q.wait_for(tags_needed(u))
        if FINE and u in (9, 10): stamp(A, 8 + 3 * (u - 9), cyc=True)
        A(f"s_waitcnt vmcnt({min(n, 63)})"); Q.retire(min(n, 63))
        if FINE and u in (9, 10): stamp(A, 9 + 3 * (u - 9), cyc=True)
        if not (NOBAR and R is QKV and u > 0): A("s_barrier")
        if FINE and u in (9, 10): stamp(A, 10 + 3 * (u - 9), cyc=True)
        if u == 0: stamp(A, 2)
        if u == 0 and 'st0' in sys.argv: A("s_memrealtime s[72:73]")
        issue(u)
        if each: each(A, Q, u)
        if late and u == NSUB - 1: late(A)

def w_loader(A, R, late=None, pre=None, early=None, each=None):
    SRD = 8
    A("s_sub_u32 s16, s3, 4")
    if R is QKV:
        make_srd(A, SRD, P_WQKV, 0, 640 * 3840)
        A("s_mul_i32 s17, s5, 160\ns_and_b32 s18, s5, 1\ns_lshl_b32 s18, s18, 5\ns_sub_u32 s17, s17, s18")
        rowc, rs_src = 36, 3840
    else:
        make_srd(A, SRD, P_WIN, 0, 640 * 3072)
        A("s_mul_i32 s17, s5, 192")
        rowc, rs_src = 24, 3072
    VO = 2
    A(f"s_mul_i32 s18, s16, {R.WI * 1024}\ns_lshl_b32 s21, s7, 1\ns_mul_i32 s20, s21, {32 * rs_src}\ns_add_u32 s21, s21, 1\ns_cmp_eq_u32 s21, 20\ns_cselect_b32 s21, 0, s21")
    A(f"s_mul_i32 s23, s16, {64 * R.WI}")
    for e in range(R.WI):
        A(f"s_add_u32 s22, s23, {64 * e}\nv_add_u32 v12, s22, v0")
        udiv_small(A, 12, 13, 14, rowc, 19, 64 * R.WI * 3)
        if R is QKV:
            A("v_lshrrev_b32 v15, 2, v13\nv_and_b32 v15, 2, v15\nv_xor_b32 v14, v14, v15")
            udiv_small(A, 14, 15, 16, 12, 19, 36)
            A(f"s_movk_i32 s19, 1280\nv_mul_u32_u24 v15, s19, v15\nv_lshl_add_u32 v15, v16, 4, v15")
        else:
            A("""
            v_and_b32 v15, 2, v13
            v_lshrrev_b32 v16, 1, v13
            v_and_b32 v16, 4, v16
            v_or_b32 v15, v15, v16
            v_xor_b32 v14, v14, v15
            """)
            udiv_small(A, 14, 15, 16, 12, 19, 24)
            A(f"s_movk_i32 s19, 1536\nv_mul_u32_u24 v15, s19, v15\nv_lshl_add_u32 v15, v16, 4, v15")
        A(f"s_movk_i32 s19, {rs_src}\nv_mul_u32_u24 v13, s19, v13\nv_add3_u32 v{VO+e}, v13, v15, s17")
        A(f"s_add_u32 m0, s18, {R.W_RING + e * 1024}\nbuffer_load_dwordx4 v{VO+e}, s[{SRD}:{SRD+3}], s20 offen lds")
    Q = VmQueue()
    Q.issue(("w", 0), R.WI)
    def issue_w(u):
        A(f"s_mul_i32 s20, s21, {32 * rs_src}\ns_add_u32 s21, s21, 1\ns_cmp_eq_u32 s21, 20\ns_cselect_b32 s21, 0, s21")
        for e in range(R.WI):
            A(f"s_add_u32 m0, s18, {R.W_RING + (u % R.NW) * R.W_SLOT + e * 1024}")
            if not NOLOAD or u < 5: A(f"buffer_load_dwordx4 v{VO+e}, s[{SRD}:{SRD+3}], s20 offen lds")
        Q.issue(("w", u), R.WI)
    if pre: pre()
    if 'st0' in sys.argv: A("s_memrealtime s[70:71]")
    issue_w(1)
    if early: early()
    stamp(A, 1)
    st = {"n": 2}
    def issue(u):
        lim = min(NSUB, max(R.NW, u - 1 + R.NW)); c = 0
        while st["n"] < lim and c < 2:
            issue_w(st["n"]); st["n"] += 1; c += 1
    barrier_plan_loader(R, A, issue, Q, lambda u: {("w", u)}, late, each)

PACK_LDS = 149504
def pack_issue(A):
    skip = A.newlabel("Lpk")
    A("s_sub_u32 s27, s3, 4\ns_lshl_b32 s27, s27, 8\ns_add_u32 s27, s27, s2")
    A(f"s_cmp_ge_u32 s27, 352\ns_cbranch_scc1 {skip}")
    A("s_and_b32 s32, s27, 7\ns_lshr_b32 s33, s27, 3")
    A(f"s_cmp_lt_u32 s33, 20\ns_cselect_b32 s28, s{P_WO}, s{P_WOUT}\ns_cselect_b32 s29, s{P_WO+1}, s{P_WOUT+1}\ns_cselect_b32 s34, 0, 20")
    A(f"s_mov_b32 s30, {768*1280}\ns_cselect_b32 s30, {640*1280}, s30\ns_mov_b32 s31, 0x00020000")
    A("s_sub_u32 s34, s33, s34\ns_mul_i32 s34, s34, 40960")
    A("s_mul_i32 s35, s32, 160\ns_and_b32 s32, s32, 1\ns_lshl_b32 s32, s32, 5\ns_sub_u32 s35, s35, s32\ns_add_u32 s34, s34, s35")
    A(f"s_sub_u32 s35, s3, 4\ns_mul_i32 s35, s35, 6144\ns_add_u32 s35, s35, {PACK_LDS}")
    for e in range(6):
        A(f"v_add_u32 v17, {64*e}, v0")
        udiv_small(A, 17, 18, 19, 12, 32, 384)
        A(f"s_movk_i32 s32, 1280\nv_mul_u32_u24 v18, s32, v18\nv_lshl_add_u32 v18, v19, 4, v18")
        A(f"s_add_u32 m0, s35, {e*1024}\nbuffer_load_dwordx4 v18, s[28:31], s34 offen lds")
    A.label(skip)

def pack_finish(A, sc_st="", flag=None, lazy=False):
    skip = A.newlabel("Lpf")
    A(f"s_cmp_ge_u32 s27, 352\ns_cbranch_scc1 {skip}")
    if not lazy: A("s_waitcnt vmcnt(0)")
    A("s_and_b32 s32, s27, 7\ns_lshr_b32 s33, s27, 3")
    A("""
    v_and_b32 v17, 15, v0
    v_lshrrev_b32 v18, 4, v0
    v_lshrrev_b32 v19, 2, v17
    v_and_b32 v20, 3, v17
    s_cmp_lt_u32 s33, 20
    s_cselect_b32 s34, 3, 2
    s_cselect_b32 s35, 4, 16
    v_lshlrev_b32 v18, s34, v18
    v_add_u32 v18, v18, v19
    v_mul_u32_u24 v18, 192, v18
    v_lshl_add_u32 v18, v20, 3, v18
    s_and_b32 s32, s27, 1
    s_lshl_b32 s32, s32, 5
    """)
    A(f"s_sub_u32 s34, s3, 4\ns_mul_i32 s34, s34, 6144\ns_add_u32 s34, s34, {PACK_LDS}\ns_add_u32 s34, s34, s32")
    A("v_add_u32 v18, s34, v18\ns_mul_i32 s35, s35, 192\nv_add_u32 v19, s35, v18")
    for nu in range(5):
        A(f"ds_read_b64_tr_b16 v[{24+4*nu}:{25+4*nu}], v18 offset:{nu*32}\nds_read_b64_tr_b16 v[{26+4*nu}:{27+4*nu}], v19 offset:{nu*32}")
    A("s_and_b32 s32, s27, 7\ns_mul_i32 s32, s32, 44\ns_add_u32 s32, s32, s33\ns_mul_i32 s32, s32, 5120")
    make_srd(A, 28, P_WS, WP_OFF, 8 * WP_CB)
    A("v_lshlrev_b32 v20, 4, v0\ns_waitcnt lgkmcnt(0)")
    for nu in range(5):
        A(f"s_add_u32 s33, s32, {nu*1024}\nbuffer_store_dwordx4 v[{24+4*nu}:{27+4*nu}], v20, s[28:31], s33 offen {sc_st}")
    if not lazy: A("s_waitcnt vmcnt(0)")
    if flag: flag()
    A.label(skip)

def x_loader(A, R, late=None, pre=None, each=None):
    SRD = 8
    make_srd(A, SRD, P_AX, 0, 2048 * 1280)
    NI = 2 * R.MT
    A("""
    v_lshrrev_b32 v4, 3, v0
    v_and_b32 v5, 7, v0
    v_lshrrev_b32 v6, 1, v4
    v_xor_b32 v7, v5, v6
    s_movk_i32 s19, 1280
    v_mul_u32_u24 v8, s19, v4
    v_lshl_add_u32 v2, v7, 4, v8
    v_xor_b32 v7, 4, v7
    v_lshl_add_u32 v3, v7, 4, v8
    v_add_u32 v3, 10240, v3
    """)
    if R is QKV:
        A("s_lshl_b32 s17, s4, 7\ns_sub_u32 s17, s17, 16")
        A("""
        v_add_u32 v11, s17, v4
        v_max_i32 v11, 0, v11
        v_mul_u32_u24 v11, s19, v11
        v_xor_b32 v7, v5, v6
        v_lshl_add_u32 v9, v7, 4, v11
        v_add_u32 v11, s17, v4
        v_add_u32 v11, 8, v11
        v_max_i32 v11, 0, v11
        v_mul_u32_u24 v11, s19, v11
        v_xor_b32 v7, 4, v7
        v_lshl_add_u32 v10, v7, 4, v11
        """)
        A("s_mul_i32 s17, s17, 1280")
        if pre: pre()
        make_srd(A, 12, P_GATE, 0, 1280)
        A(f"v_lshlrev_b32 v12, 4, v0\ns_mov_b32 m0, {R.GATE}\ns_nop 0\nbuffer_load_dwordx4 v12, s[12:15], 0 offen lds\nbuffer_load_dwordx4 v12, s[12:15], 0 offen offset:1024 lds")
    else:
        A("s_lshl_b32 s17, s4, 7\ns_mul_i32 s17, s17, 1280")
    Q = VmQueue()
    if R is QKV: Q.issue(("g", 0), 2)
    A("s_mov_b32 s22, s7")
    def issue_x(vs, e0, e1):
        if e0 == 0:
            A("s_lshl_b32 s23, s22, 7\ns_add_u32 s22, s22, 1\ns_cmp_eq_u32 s22, 10\ns_cselect_b32 s22, 0, s22")
        for e in range(e0, e1):
            A(f"s_add_u32 m0, s21, {e * 1024}" if False else f"s_mov_b32 m0, {R.X_RING + (vs % R.NX) * R.X_SLOT + e * 1024}")
            if R is QKV and e < 2:
                A(f"buffer_load_dwordx4 v{9+e}, s[{SRD}:{SRD+3}], s23 offen lds")
            else:
                A(f"s_add_u32 s20, s17, {(e >> 1) * 16 * 1280}\ns_add_u32 s20, s20, s23")
                if not NOLOAD or vs < 3: A(f"buffer_load_dwordx4 v{2 + (e & 1)}, s[{SRD}:{SRD+3}], s20 offen lds")
        Q.issue(("x", vs), e1 - e0)
    issue_x(0, 0, NI)
    stamp(A, 1)
    half = NI // 2
    plan = {}
    plan[0] = [(1, 0, NI)]
    plan[1] = [(2, 0, NI)]
    for vs in range(3, 10):
        u = 2 * (vs - 3) + 3
        plan.setdefault(u, []).append((vs, 0, half))
        plan.setdefault(u + 1, []).append((vs, half, NI))
    def issue(u):
        for (vs, e0, e1) in plan.get(u, []): issue_x(vs, e0, e1)
    need = lambda u: ({("x", u >> 1), ("g", 0)})
    barrier_plan_loader(R, A, issue, Q, need, late, each)

class DsQ:
    def __init__(self): self.q = []
    def issue(self, tag): self.q.append(tag)
    def wait(self, tags):
        last = -1
        for i, t in enumerate(self.q):
            if t in tags: last = i
        n = len(self.q) - 1 - last
        if last < 0: return None
        self.q = self.q[last + 1:]
        return n

Q_ACC = 16; Q_WF = [160, 176]; Q_XF = [192 + 4 * i for i in range(6)]
Q_VW = [216, 217, 218, 219]; Q_VWC = [220, 221, 222, 223]; Q_VXA = [224, 225]; Q_VXC = [226, 227]; Q_VG = 228

def tile_info(T):
    seg, t = T // 5, T % 5
    return (6 * seg + t) * 32, t & 1

def qkv_consumer(A):
    A("v_and_b32 v1, 15, v0\nv_lshrrev_b32 v2, 4, v0")
    A(f"""
    v_lshrrev_b32 v3, 1, v1
    v_xor_b32 v3, v3, v2
    v_lshlrev_b32 v3, 4, v3
    v_lshl_add_u32 v{Q_VXC[0]}, v1, 7, v3
    v_xor_b32 v{Q_VXC[1]}, 64, v{Q_VXC[0]}
    """)
    A(f"""
    v_lshrrev_b32 v3, 2, v1
    v_lshl_add_u32 v3, v2, 3, v3
    s_movk_i32 s19, 576
    v_mul_u32_u24 v3, s19, v3
    v_and_b32 v4, 3, v1
    v_lshl_add_u32 v3, v4, 3, v3
    s_and_b32 s20, s5, 1
    s_lshl_b32 s21, s20, 5
    v_add_u32 v3, s21, v3
    v_and_b32 v4, 1, v2
    v_lshlrev_b32 v4, 5, v4
    """)
    for k in range(4):
        A(f"""
        s_lshl_b32 s21, s3, 2
        s_add_u32 s21, s21, {k}
        s_mul_i32 s22, s21, 52
        s_lshr_b32 s22, s22, 8
        s_mul_i32 s23, s22, 5
        s_sub_u32 s23, s21, s23
        s_mul_i32 s22, s22, 6
        s_add_u32 s22, s22, s23
        s_lshl_b32 s22, s22, 5
        s_add_u32 s23, s23, s20
        s_and_b32 s23, s23, 1
        v_add_u32 v5, v3, v4
        v_sub_u32 v6, v3, v4
        s_cmp_eq_u32 s23, 0
        s_cselect_b64 vcc, -1, 0
        v_cndmask_b32 v5, v6, v5, vcc
        v_add_u32 v{Q_VWC[k]}, s22, v5
        """)
    for T in range(16): assert (T * 52) >> 8 == T // 5

def qkv_main(A, gate, mid=None, it_hook=None, b0hook=None, preb0=None):
    R = QKV
    for i in range(144): A(f"v_mov_b32 v{Q_ACC+i}, 0")
    if gate:
        A(f"v_lshlrev_b32 v{Q_VG+1}, 4, v2\nv_add_u32 v{Q_VG+1}, {R.GATE}, v{Q_VG+1}\ns_lshl_b32 s18, s7, 7\nv_add_u32 v{Q_VG}, s18, v{Q_VG+1}")
    D = DsQ()
    def rd_w(buf, k, half, tag):
        d = Q_WF[buf] + 4 * k
        if gate and k == 3:
            if half == 0:
                A(f"ds_read_b128 v[{d}:{d+3}], v{Q_VG}"); D.issue(tag)
            else:
                A(f"s_add_u32 s18, s18, 64\ns_cmp_eq_u32 s18, 1280\ns_cselect_b32 s18, 0, s18\nv_add_u32 v{Q_VG}, s18, v{Q_VG+1}")
            return
        A(f"ds_read_b64_tr_b16 v[{d+2*half}:{d+2*half+1}], v{Q_VW[k]} offset:{half*4*576}"); D.issue(tag)
    def rd_x(slot, m, kk, tag):
        d = Q_XF[slot]
        A(f"ds_read_b128 v[{d}:{d+3}], v{Q_VXA[kk]} offset:{m * 2048}"); D.issue(tag)
    A(f"s_mov_b32 s22, {R.W_RING}\ns_mov_b32 s23, {R.X_RING}\ns_mov_b32 s24, 0")
    for k in range(4): A(f"v_add_u32 v{Q_VW[k]}, s22, v{Q_VWC[k]}")
    for j in range(2): A(f"v_add_u32 v{Q_VXA[j]}, s23, v{Q_VXC[j]}")
    if preb0: preb0(A)
    stamp(A, 1)
    A("s_barrier")
    stamp(A, 2)
    if b0hook: b0hook(A)
    for k in range(4):
        rd_w(0, k, 0, ("w", 0, k)); rd_w(0, k, 1, ("w", 0, k))
    for m in range(4): rd_x(m % 6, m, 0, ("x", 0, m))
    def substage(kk, has_next, sim):
        base = 9 * kk
        fill = {}
        def add(m, k, fn): fill.setdefault((m, k), []).append(fn)
        for m in range(9):
            if m + 4 < 9: add(m, 0, lambda m=m: rd_x((base + m + 4) % 6, m + 4, kk, ("x", sim, m + 4)))
            elif has_next: add(m, 0, lambda m=m: rd_x((base + m + 4) % 6, m + 4 - 9, kk ^ 1, ("x", sim + 1, m + 4 - 9)))
        if has_next:
            add(0, 1, lambda: A(f"s_add_u32 s22, s22, {R.W_SLOT}"))
            add(0, 2, lambda: A(f"s_cmp_eq_u32 s22, {R.W_RING + R.NW*R.W_SLOT}\ns_cselect_b32 s22, {R.W_RING}, s22"))
            for k in range(4): add(1, k, lambda k=k: A(f"v_add_u32 v{Q_VW[k]}, s22, v{Q_VWC[k]}"))
            def bar():
                if FINE and sim < 2:
                    l1 = A.newlabel("Lf"); A(f"s_cmp_lg_u32 s24, 4\ns_cbranch_scc1 {l1}"); stamp(A, 8 + 3 * sim, cyc=True); A.label(l1)
                if not NOBAR: A("s_barrier")
                if FINE and sim < 2:
                    l1 = A.newlabel("Lf"); A(f"s_cmp_lg_u32 s24, 4\ns_cbranch_scc1 {l1}"); stamp(A, 9 + 3 * sim, cyc=True); A.label(l1)
            add(2, 3, bar)
            for k in range(4):
                add(3 + k, 1, lambda k=k: rd_w(kk ^ 1, k, 0, ("w", sim + 1, k)))
                add(3 + k, 2, lambda k=k: rd_w(kk ^ 1, k, 1, ("w", sim + 1, k)))
            if kk == 1:
                add(2, 1, lambda: A(f"s_add_u32 s23, s23, {R.X_SLOT}"))
                add(2, 2, lambda: A(f"s_cmp_eq_u32 s23, {R.X_RING + R.NX*R.X_SLOT}\ns_cselect_b32 s23, {R.X_RING}, s23"))
                add(4, 1, lambda: A(f"v_add_u32 v{Q_VXA[0]}, s23, v{Q_VXC[0]}"))
                add(4, 3, lambda: A(f"v_add_u32 v{Q_VXA[1]}, s23, v{Q_VXC[1]}"))
        for m in range(9):
            for k in range(4):
                n = D.wait({("x", sim, m), ("w", sim, k)})
                if n is not None: A(f"s_waitcnt lgkmcnt({min(n, 15)})")
                d = Q_ACC + (k * 9 + m) * 4; wf = Q_WF[kk] + 4 * k; xf = Q_XF[(base + m) % 6]
                A(f"v_mfma_f32_16x16x32_bf16 v[{d}:{d+3}], v[{wf}:{wf+3}], v[{xf}:{xf+3}], v[{d}:{d+3}]")
                for fn in fill.get((m, k), []): fn()
    loop = A.newlabel("Lqkv")
    A.label(loop)
    if it_hook: it_hook(A)
    if mid:
        lm = A.newlabel("Lmid"); A(f"s_cmp_lg_u32 s24, 3\ns_cbranch_scc1 {lm}"); mid(A); A.label(lm)
    substage(0, True, 0)
    substage(1, True, 1)
    A("s_add_u32 s24, s24, 1\ns_cmp_lt_u32 s24, 9")
    A(f"s_cbranch_scc1 {loop}")
    substage(0, True, 2)
    substage(1, False, 3)

def qkv_epilogue_store(A, gate):
    A(f"s_movk_i32 s19, 488\nv_mul_u32_u24 v3, s19, v1\nv_lshl_add_u32 v3, v2, 3, v3\ns_lshl_b32 s19, s3, 7\nv_add_u32 v3, s19, v3")
    ntile = 3 if gate else 4
    T = 160
    c = 0
    for k in range(ntile):
        for m in range(9):
            d = Q_ACC + (k * 9 + m) * 4
            o = T + 2 * (c % 12); c += 1
            A(f"v_cvt_pk_bf16_f32 v{o}, v{d}, v{d+1}\nv_cvt_pk_bf16_f32 v{o+1}, v{d+2}, v{d+3}")
            A(f"ds_write_b64 v3, v[{o}:{o+1}] offset:{16*m*488 + 32*k}")
    if gate:
        skip = A.newlabel("Lg")
        A(f"s_cmp_lg_u32 s5, 0\ns_cbranch_scc1 {skip}")
        A("s_lshl_b32 s18, s4, 9")
        make_srd(A, 8, P_WS, G_OFF, 512, off_sgpr=18)
        A("v_lshlrev_b32 v4, 2, v1\ns_mov_b64 s[12:13], exec\ns_mov_b64 exec, 0xffff")
        for m in range(1, 9):
            d = Q_ACC + (3 * 9 + m) * 4
            A(f"v_mul_f32 v{d}, 0xbfb8aa3b, v{d}\nv_exp_f32 v{d}, v{d}\nv_add_f32 v{d}, 1.0, v{d}\nv_rcp_f32 v{d}, v{d}")
            A(f"buffer_store_dword v{d}, v4, s[8:11], 0 offen offset:{(m-1)*64} SC_ST")
        A("s_mov_b64 exec, s[12:13]")
        A.label(skip)

def attention(A, sc_st=""):
    OST = 73728
    RS = 488
    A(f"""
    v_and_b32 v10, 3, v0
    v_lshrrev_b32 v11, 2, v0
    v_and_b32 v12, 3, v11
    v_lshrrev_b32 v13, 4, v0
    v_and_b32 v14, 1, v13
    v_lshrrev_b32 v15, 1, v13
    s_lshl_b32 s16, s3, 4
    """)
    A(f"""
    v_lshlrev_b32 v16, 3, v15
    v_add_u32 v16, v16, v14
    v_lshl_add_u32 v17, v10, 1, v16
    v_add_u32 v17, s16, v17
    s_movk_i32 s19, {RS}
    v_mul_u32_u24 v17, s19, v17
    v_mul_u32_u24 v18, 40, v12
    v_add_u32 v20, v17, v18
    """)
    A(f"""
    v_lshl_add_u32 v17, v12, 1, v16
    v_add_u32 v17, s16, v17
    v_mul_u32_u24 v17, s19, v17
    v_mul_u32_u24 v18, 40, v10
    v_add3_u32 v21, v17, v18, 0
    """)
    QF = 24
    KF = 34
    VF = 34
    S = 64
    P = 76
    PK = 24
    O = 64
    LA, LB, LC = 88, 89, 90
    for dl in range(5): A(f"ds_read_b64 v[{QF+2*dl}:{QF+2*dl+1}], v20 offset:{16*RS + 8*dl}")
    for b in range(3):
        for dl in range(5): A(f"ds_read_b64 v[{KF+2*(b*5+dl)}:{KF+2*(b*5+dl)+1}], v20 offset:{b*8*RS + 160 + 8*dl}")
    A("s_waitcnt lgkmcnt(0)")
    for dl in range(5):
        for b in range(3):
            c = f"v[{S+4*b}:{S+4*b+3}]" if dl else "0"
            A(f"v_mfma_f32_4x4x4_16b_bf16 v[{S+4*b}:{S+4*b+3}], v[{KF+2*(b*5+dl)}:{KF+2*(b*5+dl)+1}], v[{QF+2*dl}:{QF+2*dl+1}], {c}")
    for b in range(3):
        for dl in range(5): A(f"ds_read_b64_tr_b16 v[{VF+2*(b*5+dl)}:{VF+2*(b*5+dl)+1}], v21 offset:{b*8*RS + 320 + 8*dl}")
    A(f"v_cmp_eq_u32 s[20:21], 0, v10\nv_cmp_ge_u32 s[22:23], 1, v10\nv_cmp_ge_u32 s[24:25], 2, v10")
    L = [S+4, S+5, S+6, S+7, S+8, LA, LB, LC]
    A(f"v_cndmask_b32 v{LA}, v{S+9}, v{S+1}, s[20:21]\nv_cndmask_b32 v{LB}, v{S+10}, v{S+2}, s[22:23]\nv_cndmask_b32 v{LC}, v{S+11}, v{S+3}, s[24:25]")
    nomask = A.newlabel("Lnm")
    A(f"s_cmp_lg_u32 s4, 0\ns_cbranch_scc1 {nomask}\ns_cmp_gt_u32 s3, 0\ns_cbranch_scc1 {nomask}")
    A("v_lshlrev_b32 v22, 2, v15\nv_sub_u32 v22, 8, v22\nv_mov_b32 v23, 0xff800000")
    for idx, kap in enumerate([4, 5, 6, 7, 8]):
        A(f"v_cmp_gt_u32 vcc, v22, {kap}\nv_cndmask_b32 v{L[idx]}, v{L[idx]}, v23, vcc")
    for (reg, lo, hi, sm) in ((LA, 1, 9, 20), (LB, 2, 10, 22), (LC, 3, 11, 24)):
        A(f"v_cndmask_b32 v9, {hi}, {lo}, s[{sm}:{sm+1}]\nv_cmp_gt_u32 vcc, v22, v9\nv_cndmask_b32 v{reg}, v{reg}, v23, vcc")
    A.label(nomask)
    import math
    cst = math.log2(math.e) / math.sqrt(20.0)
    import struct
    cbits = struct.unpack("<I", struct.pack("<f", cst))[0]
    A(f"v_max3_f32 v8, v{L[0]}, v{L[1]}, v{L[2]}\nv_max3_f32 v8, v8, v{L[3]}, v{L[4]}\nv_max3_f32 v8, v8, v{L[5]}, v{L[6]}\nv_max_f32 v8, v8, v{L[7]}")
    A(f"s_mov_b32 s26, {cbits:#x}\nv_mul_f32 v8, s26, v8")
    for i in range(8): A(f"v_fma_f32 v{L[i]}, v{L[i]}, s26, -v8")
    for i in range(8): A(f"v_exp_f32 v{L[i]}, v{L[i]}")
    A(f"v_add_f32 v8, v{L[0]}, v{L[1]}\nv_add_f32 v9, v{L[2]}, v{L[3]}\nv_add_f32 v8, v8, v{L[4]}\nv_add_f32 v9, v9, v{L[5]}\nv_add_f32 v8, v8, v{L[6]}\nv_add_f32 v9, v9, v{L[7]}\nv_add_f32 v8, v8, v9\nv_rcp_f32 v8, v8")
    for i in range(8): A(f"v_mul_f32 v{L[i]}, v{L[i]}, v8")
    A(f"v_mov_b32 v{P}, 0")
    A(f"v_cndmask_b32 v{P+1}, 0, v{LA}, s[20:21]\nv_cndmask_b32 v{P+9}, v{LA}, 0, s[20:21]")
    A(f"v_cndmask_b32 v{P+2}, 0, v{LB}, s[22:23]\nv_cndmask_b32 v{P+10}, v{LB}, 0, s[22:23]")
    A(f"v_cndmask_b32 v{P+3}, 0, v{LC}, s[24:25]\nv_cndmask_b32 v{P+11}, v{LC}, 0, s[24:25]")
    src = {0: P, 1: P+1, 2: P+2, 3: P+3, 4: L[0], 5: L[1], 6: L[2], 7: L[3], 8: L[4], 9: P+9, 10: P+10, 11: P+11}
    for b in range(3):
        A(f"v_cvt_pk_bf16_f32 v{PK+2*b}, v{src[4*b]}, v{src[4*b+1]}\nv_cvt_pk_bf16_f32 v{PK+2*b+1}, v{src[4*b+2]}, v{src[4*b+3]}")
    A("s_waitcnt lgkmcnt(0)")
    for b in range(3):
        for dl in range(5):
            c = f"v[{O+4*dl}:{O+4*dl+3}]" if b else "0"
            A(f"v_mfma_f32_4x4x4_16b_bf16 v[{O+4*dl}:{O+4*dl+3}], v[{VF+2*(b*5+dl)}:{VF+2*(b*5+dl)+1}], v[{PK+2*b}:{PK+2*b+1}], {c}")
    A(f"""
    v_lshl_add_u32 v17, v10, 1, v16
    v_mul_u32_u24 v17, 176, v17
    v_mul_u32_u24 v18, 40, v12
    s_mul_i32 s18, s3, 2816
    s_add_u32 s18, s18, {OST}
    v_add3_u32 v17, v17, v18, s18
    """)
    for dl in range(5):
        A(f"v_cvt_pk_bf16_f32 v{PK+6}, v{O+4*dl}, v{O+4*dl+1}\nv_cvt_pk_bf16_f32 v{PK+7}, v{O+4*dl+2}, v{O+4*dl+3}")
        A(f"ds_write_b64 v17, v[{PK+6}:{PK+7}] offset:{8*dl}")
    A(f"""
    v_and_b32 v1, 15, v0
    v_lshrrev_b32 v2, 4, v0
    v_mul_u32_u24 v17, 176, v1
    v_add_u32 v17, s18, v17
    s_and_b32 s20, s5, 1
    s_lshl_b32 s21, s20, 1
    v_subrev_u32 v18, s21, v2
    """)
    A(f"s_lshl_b32 s22, s4, 3\ns_add_u32 s22, s22, s3\ns_mul_i32 s22, s22, {44*1024}\ns_mul_i32 s23, s5, 10\ns_lshr_b32 s23, s23, 2\ns_lshl_b32 s23, s23, 10\ns_add_u32 s22, s22, s23")
    make_srd(A, 8, P_WS, A3_OFF, A3_SIZE)
    A("v_lshlrev_b32 v19, 4, v0\ns_waitcnt lgkmcnt(0)")
    A("s_mov_b64 s[12:13], exec")
    for n in range(3):
        A(f"v_add_u32 v22, {4*n}, v18\nv_cmp_gt_u32 vcc, 10, v22\nv_lshl_add_u32 v23, v22, 4, v17")
        A(f"s_and_b64 exec, s[12:13], vcc")
        A(f"ds_read_b128 v[{O+4*n}:{O+4*n+3}], v23")
        A(f"s_waitcnt lgkmcnt(0)")
        A(f"buffer_store_dwordx4 v[{O+4*n}:{O+4*n+3}], v19, s[8:11], s22 offen offset:{n*1024} {sc_st}")
        A("s_mov_b64 exec, s[12:13]")

Z_ACC1 = 16; Z_ACC2 = 64
Z_WF = [112, 136]; Z_XF = [160, 176]
Z_VXA = [192, 193]; Z_VXC = [194, 195]; Z_VW = [196, 197, 198, 199, 200, 201]; Z_VWC = [202, 203, 204, 205, 206, 207]

def z_consumer(A, mid=None):
    R = Z
    A("v_and_b32 v1, 15, v0\nv_lshrrev_b32 v2, 4, v0\ns_lshr_b32 s16, s3, 1\ns_and_b32 s17, s3, 1")
    A(f"""
    v_lshrrev_b32 v3, 1, v1
    v_xor_b32 v3, v3, v2
    v_lshlrev_b32 v3, 4, v3
    v_lshl_add_u32 v{Z_VXC[0]}, v1, 7, v3
    s_lshl_b32 s18, s16, 13
    v_add_u32 v{Z_VXC[0]}, s18, v{Z_VXC[0]}
    v_xor_b32 v{Z_VXC[1]}, 64, v{Z_VXC[0]}
    """)
    A(f"""
    v_lshrrev_b32 v3, 2, v1
    v_lshl_add_u32 v4, v2, 3, v3
    s_movk_i32 s19, 384
    v_mul_u32_u24 v4, s19, v4
    v_and_b32 v5, 3, v1
    v_lshl_add_u32 v4, v5, 3, v4
    v_lshrrev_b32 v3, 1, v3
    v_and_b32 v5, 1, v2
    v_lshl_or_b32 v3, v5, 1, v3
    s_mul_i32 s18, s17, 3
    """)
    for k in range(6):
        base = k if k < 3 else 6 + (k - 3)
        A(f"s_add_u32 s19, s18, {base}\nv_xor_b32 v5, s19, v3\nv_lshl_add_u32 v{Z_VWC[k]}, v5, 5, v4")
    for i in range(96): A(f"v_mov_b32 v{Z_ACC1+i}, 0")
    D = DsQ()
    def set_w():
        for k in range(6): A(f"v_add_u32 v{Z_VW[k]}, s22, v{Z_VWC[k]}")
    def set_x():
        A(f"v_add_u32 v{Z_VXA[0]}, s23, v{Z_VXC[0]}\nv_add_u32 v{Z_VXA[1]}, s23, v{Z_VXC[1]}")
    def rd_w(buf, k, tag):
        d = Z_WF[buf] + 4 * k
        A(f"ds_read_b64_tr_b16 v[{d}:{d+1}], v{Z_VW[k]}"); D.issue(tag)
        A(f"ds_read_b64_tr_b16 v[{d+2}:{d+3}], v{Z_VW[k]} offset:{4*384}"); D.issue(tag)
    def rd_x(buf, m, kk, tag):
        d = Z_XF[buf] + 4 * m
        A(f"ds_read_b128 v[{d}:{d+3}], v{Z_VXA[kk]} offset:{m * 2048}"); D.issue(tag)
    def adv_w(): A(f"s_add_u32 s22, s22, {R.W_SLOT}\ns_cmp_eq_u32 s22, {R.W_RING + R.NW*R.W_SLOT}\ns_cselect_b32 s22, {R.W_RING}, s22")
    def adv_x(): A(f"s_add_u32 s23, s23, {R.X_SLOT}\ns_cmp_eq_u32 s23, {R.X_RING + R.NX*R.X_SLOT}\ns_cselect_b32 s23, {R.X_RING}, s23")
    A(f"s_mov_b32 s22, {R.W_RING}\ns_mov_b32 s23, {R.X_RING}\ns_mov_b32 s24, 0")
    set_w(); set_x()
    stamp(A, 1)
    A("s_barrier")
    stamp(A, 2)
    ORDER = [("x", 0), ("w", 3), ("w", 4), ("w", 5), ("w", 0), ("w", 1), ("w", 2), ("x", 1), ("x", 2), ("x", 3)]
    for (t, idx) in ORDER:
        if t == "x": rd_x(0, idx, 0, ("x", 0, idx))
        else: rd_w(0, idx, ("w", 0, idx))
    def substage(kk, has_next, sim):
        pend = list(ORDER) if has_next else []
        cnt = 0
        for m in range(4):
            for k in (3, 4, 5, 0, 1, 2):
                n = D.wait({("x", sim, m), ("w", sim, k)})
                if n is not None: A(f"s_waitcnt lgkmcnt({min(n, 15)})")
                wf = Z_WF[kk] + 4 * k; xf = Z_XF[kk] + 4 * m
                if k < 3:
                    d = Z_ACC1 + (k * 4 + m) * 4
                    A(f"v_mfma_f32_16x16x32_bf16 v[{d}:{d+3}], v[{wf}:{wf+3}], v[{xf}:{xf+3}], v[{d}:{d+3}]")
                else:
                    d = Z_ACC2 + (m * 3 + (k - 3)) * 4
                    A(f"v_mfma_f32_16x16x32_bf16 v[{d}:{d+3}], v[{xf}:{xf+3}], v[{wf}:{wf+3}], v[{d}:{d+3}]")
                cnt += 1
                if cnt == 6 and has_next:
                    adv_w(); set_w()
                    if kk == 1: adv_x(); set_x()
                    if FINE and sim < 2:
                        l1 = A.newlabel("Lf"); A(f"s_cmp_lg_u32 s24, 4\ns_cbranch_scc1 {l1}"); stamp(A, 8 + 3 * sim, cyc=True); A.label(l1)
                    A("s_barrier")
                    if FINE and sim < 2:
                        l1 = A.newlabel("Lf"); A(f"s_cmp_lg_u32 s24, 4\ns_cbranch_scc1 {l1}"); stamp(A, 9 + 3 * sim, cyc=True); A.label(l1)
                if cnt >= 6 and pend:
                    t, idx = pend.pop(0)
                    if t == "x": rd_x(kk ^ 1, idx, kk ^ 1, ("x", sim + 1, idx))
                    else: rd_w(kk ^ 1, idx, ("w", sim + 1, idx))
    loop = A.newlabel("Lz")
    A.label(loop)
    if it_hook: it_hook(A)
    if mid:
        lm = A.newlabel("Lmid"); A(f"s_cmp_lg_u32 s24, 3\ns_cbranch_scc1 {lm}"); mid(A); A.label(lm)
    substage(0, True, 0)
    substage(1, True, 1)
    A("s_add_u32 s24, s24, 1\ns_cmp_lt_u32 s24, 9")
    A(f"s_cbranch_scc1 {loop}")
    substage(0, True, 2)
    substage(1, False, 3)

GELU_C1 = -2.0 * 1.4426950408889634 * 0.7978845608028654
GELU_C2 = GELU_C1 * 0.044715
import struct
def fbits(x): return struct.unpack("<I", struct.pack("<f", x))[0]

def gelu_regs(A, regs0, n, C1, C2, T):
    for i in range(0, n, 4):
        for h in (0, 2):
            x = regs0 + i + h; t = T + 2 * h
            A(f"v_pk_mul_f32 v[{t}:{t+1}], v[{x}:{x+1}], v[{x}:{x+1}]")
        for h in (0, 2):
            t = T + 2 * h
            A(f"v_pk_fma_f32 v[{t}:{t+1}], v[{t}:{t+1}], v[{C2}:{C2+1}], v[{C1}:{C1+1}]")
        for h in (0, 2):
            x = regs0 + i + h; t = T + 2 * h
            A(f"v_pk_mul_f32 v[{t}:{t+1}], v[{t}:{t+1}], v[{x}:{x+1}]")
        for h in (0, 2):
            t = T + 2 * h
            A(f"v_exp_f32 v{t}, v{t}\nv_exp_f32 v{t+1}, v{t+1}")
        for h in (0, 2):
            t = T + 2 * h
            A(f"v_pk_add_f32 v[{t}:{t+1}], v[{t}:{t+1}], 1.0 op_sel_hi:[1,0]")
        for h in (0, 2):
            t = T + 2 * h
            A(f"v_rcp_f32 v{t}, v{t}\nv_rcp_f32 v{t+1}, v{t+1}")
        for h in (0, 2):
            x = regs0 + i + h; t = T + 2 * h
            A(f"v_pk_mul_f32 v[{x}:{x+1}], v[{x}:{x+1}], v[{t}:{t+1}]")

Z_PART = 0
Z_STAT = 2048

def z_epilogue_a(A):
    C1, C2, T = 112, 114, 116
    A(f"v_mov_b32 v{C1}, {fbits(GELU_C1):#x}\nv_mov_b32 v{C1+1}, {fbits(GELU_C1):#x}\nv_mov_b32 v{C2}, {fbits(GELU_C2):#x}\nv_mov_b32 v{C2+1}, {fbits(GELU_C2):#x}")
    gelu_regs(A, Z_ACC2, 48, C1, C2, T)
    SU = 128; SQ = 144
    for m in range(4):
        for r in range(4):
            a, b, c = [Z_ACC2 + (m * 3 + t) * 4 + r for t in range(3)]
            s_, q_ = SU + m * 4 + r, SQ + m * 4 + r
            A(f"v_add_f32 v{s_}, v{a}, v{b}\nv_mul_f32 v{q_}, v{a}, v{a}\nv_add_f32 v{s_}, v{s_}, v{c}\nv_fmac_f32 v{q_}, v{b}, v{b}\nv_fmac_f32 v{q_}, v{c}, v{c}")
    for sh in (8, 4, 2, 1):
        for i in range(32):
            A(f"v_add_f32_dpp v{SU+i}, v{SU+i}, v{SU+i} row_ror:{sh} row_mask:0xf bank_mask:0xf")
    A(f"""
    s_lshl_b32 s18, s17, 10
    s_lshl_b32 s19, s16, 9
    s_add_u32 s18, s18, s19
    s_add_u32 s18, s18, {Z_PART}
    v_lshlrev_b32 v3, 5, v2
    v_add_u32 v3, s18, v3
    s_mov_b64 s[12:13], exec
    s_mov_b32 s20, 0x00010001
    s_mov_b32 s21, 0x00010001
    s_mov_b64 exec, s[20:21]
    """)
    for m in range(4):
        for r in range(0, 4, 2):
            t = T
            A(f"v_mov_b32 v{t}, v{SU+m*4+r}\nv_mov_b32 v{t+1}, v{SQ+m*4+r}\nv_mov_b32 v{t+2}, v{SU+m*4+r+1}\nv_mov_b32 v{t+3}, v{SQ+m*4+r+1}")
            A(f"ds_write_b128 v3, v[{t}:{t+3}] offset:{m*128 + r*8}")
            T2 = T; T = 120 if T == 116 else 116
    A("s_mov_b64 exec, s[12:13]\ns_waitcnt lgkmcnt(0)")

def z_epilogue_b(A, sc_st=""):
    C1, C2, T = 112, 114, 116
    gelu_regs(A, Z_ACC1, 48, C1, C2, T)
    A(f"s_lshl_b32 s18, s4, 1\ns_add_u32 s18, s18, s16\ns_lshl_b32 s18, s18, 3\ns_add_u32 s18, s18, s5\ns_lshl_b32 s18, s18, 2\ns_lshl_b32 s19, s17, 1\ns_add_u32 s18, s18, s19\ns_mul_i32 s18, s18, 3072")
    make_srd(A, 8, P_WS, Z1_OFF, 6144, off_sgpr=18)
    A("v_lshlrev_b32 v4, 4, v0")
    for wt in range(2):
        for t in range(3):
            o = 120 + 4 * ((wt * 3 + t) % 2)
            for j in range(2):
                d = Z_ACC1 + (t * 4 + 2 * wt + j) * 4
                A(f"v_cvt_pk_bf16_f32 v{o+2*j}, v{d}, v{d+1}\nv_cvt_pk_bf16_f32 v{o+2*j+1}, v{d+2}, v{d+3}")
            A(f"s_mov_b32 s19, {wt*3072 + t*1024}\nbuffer_store_dwordx4 v[{o}:{o+3}], v4, s[8:11], s19 offen {sc_st}")

def z_epilogue_c(A, sc_st=""):
    ST = 128
    A(f"s_lshl_b32 s19, s16, 9\ns_add_u32 s19, s19, {Z_STAT}\nv_lshlrev_b32 v3, 5, v2\nv_add_u32 v3, s19, v3")
    for m in range(4):
        A(f"ds_read_b128 v[{ST+8*m}:{ST+8*m+3}], v3 offset:{m*128}\nds_read_b128 v[{ST+8*m+4}:{ST+8*m+7}], v3 offset:{m*128+16}")
    A("s_waitcnt lgkmcnt(0)")
    A(f"s_mul_i32 s18, s5, 393216\ns_lshl_b32 s19, s4, 2\ns_lshl_b32 s20, s16, 1\ns_add_u32 s19, s19, s20\ns_mul_i32 s19, s19, 6144\ns_add_u32 s18, s18, s19\ns_mul_i32 s19, s17, 3072\ns_add_u32 s18, s18, s19")
    make_srd(A, 8, P_WS, ZN_OFF, 6144 + 3072, off_sgpr=18)
    A("v_lshlrev_b32 v4, 4, v0")
    for P in range(2):
        for t in range(3):
            o = 160 + 4 * ((P * 3 + t) % 3)
            for j in range(2):
                m = 2 * P + j
                d = Z_ACC2 + (m * 3 + t) * 4
                for r in range(4):
                    A(f"v_fma_f32 v{d+r}, v{d+r}, v{ST+8*m+2*r}, v{ST+8*m+2*r+1}")
                A(f"v_cvt_pk_bf16_f32 v{o+2*j}, v{d}, v{d+1}\nv_cvt_pk_bf16_f32 v{o+2*j+1}, v{d+2}, v{d+3}")
            A(f"v_permlane32_swap_b32 v{o}, v{o+2}\nv_permlane32_swap_b32 v{o+1}, v{o+3}")
            A(f"v_permlane16_swap_b32 v{o}, v{o+2}\nv_permlane16_swap_b32 v{o+1}, v{o+3}")
            A(f"s_mov_b32 s19, {P*6144 + t*1024}\nbuffer_store_dwordx4 v[{o}:{o+3}], v4, s[8:11], s19 offen {sc_st}")

def get_nonce(A, sreg, va=6, vb=7):
    make_srd(A, 28, P_DBG, 0, 256)
    lp = A.newlabel("Lnonce")
    A(f"v_mov_b32 v{va}, 0\ns_mov_b32 s32, 0")
    A.label(lp)
    A(f"buffer_load_dword v{vb}, v{va}, s[28:31], 0 offen sc1\ns_waitcnt vmcnt(0)\nv_readfirstlane_b32 s{sreg}, v{vb}")
    A(f"s_add_u32 s32, s32, 1\ns_cmp_gt_u32 s32, {1<<16}")
    out = A.newlabel("Lnonce_o")
    A(f"s_cbranch_scc1 {out}")
    A(f"s_cmp_eq_u32 s{sreg}, 0\ns_cbranch_scc1 {lp}")
    A.label(out)

def publish_nonce(A):
    make_srd(A, 28, P_DBG, 0, 256)
    A("s_memrealtime s[32:33]\ns_waitcnt lgkmcnt(0)\ns_or_b32 s32, s32, 1\nv_mov_b32 v6, 0\nv_mov_b32 v7, s32\nbuffer_store_dword v7, v6, s[28:31], 0 offen sc1")

def z_stats_exchange(A, NONCE):
    A(f"s_sub_u32 s16, s3, 4\ns_lshl_b32 s17, s16, 9\nv_lshlrev_b32 v2, 3, v0\nv_add_u32 v2, s17, v2")
    A(f"v_add_u32 v14, {Z_PART}, v2")
    A(f"ds_read_b64 v[4:5], v14\nds_read_b64 v[6:7], v14 offset:1024\ns_waitcnt lgkmcnt(0)")
    A(f"v_add_f32 v8, v4, v6\nv_add_f32 v10, v5, v7\nv_mov_b32 v9, s{NONCE}\nv_mov_b32 v11, s{NONCE}")
    A("s_lshl_b32 s18, s4, 14")
    make_srd(A, 8, P_WS, ST_OFF, 16384, off_sgpr=18)
    A("v_lshlrev_b32 v3, 1, v2\ns_lshl_b32 s19, s5, 11")
    A("buffer_store_dwordx4 v[8:11], v3, s[8:11], s19 offen sc1")
    lp = A.newlabel("Lst"); ok = A.newlabel("Lstok")
    A("s_mov_b32 s20, 0")
    A.label(lp)
    for c in range(8):
        A(f"s_mov_b32 s19, {c*2048}\nbuffer_load_dwordx4 v[{16+4*c}:{19+4*c}], v3, s[8:11], s19 offen sc1")
    A("s_waitcnt vmcnt(0)")
    A(f"v_mov_b32 v12, 0")
    for c in range(8):
        A(f"v_xor_b32 v13, s{NONCE}, v{17+4*c}\nv_or_b32 v12, v12, v13\nv_xor_b32 v13, s{NONCE}, v{19+4*c}\nv_or_b32 v12, v12, v13")
    A(f"v_cmp_ne_u32 vcc, 0, v12\ns_cmp_eq_u64 vcc, 0\ns_cbranch_scc1 {ok}")
    A(f"s_add_u32 s20, s20, 1\ns_cmp_gt_u32 s20, {1<<16}\ns_cbranch_scc1 {ok}\ns_sleep 2\ns_branch {lp}")
    A.label(ok)
    A("v_add_f32 v4, v16, v20\nv_add_f32 v5, v18, v22")
    for c in range(2, 8): A(f"v_add_f32 v4, v4, v{16+4*c}\nv_add_f32 v5, v5, v{18+4*c}")
    inv = fbits(1.0 / 768.0)
    A(f"""
    v_mul_f32 v4, {inv:#x}, v4
    v_mul_f32 v5, {inv:#x}, v5
    v_fma_f32 v5, -v4, v4, v5
    v_max_f32 v5, 0, v5
    v_add_f32 v5, {fbits(1e-5):#x}, v5
    v_rsq_f32 v6, v5
    s_nop 0
    v_mul_f32 v7, -v4, v6
    """)
    A(f"ds_write_b64 v14, v[6:7] offset:{Z_STAT - Z_PART}\ns_waitcnt lgkmcnt(0)")

def gen_p1_kernel():
    A = Asm()
    end = prologue(A)
    stamp(A, 0); stamp(A, 5, cyc=True)
    wg_map_p1(A)
    fin = A.newlabel("Lfin")
    zrole = A.newlabel("Lz_role")
    A(f"s_cmp_eq_u32 s6, 1\ns_cbranch_scc1 {zrole}")
    lw = A.newlabel("Lq_w"); lx = A.newlabel("Lq_x"); att = A.newlabel("Lq_att")
    A(f"s_cmp_eq_u32 s3, 7\ns_cbranch_scc1 {lx}\ns_cmp_ge_u32 s3, 4\ns_cbranch_scc1 {lw}")
    qkv_consumer(A, False)
    wl = [A.newlabel(f"Lq_c{w}") for w in range(4)]
    for w in range(1, 4): A(f"s_cmp_eq_u32 s3, {w}\ns_cbranch_scc1 {wl[w]}")
    for w in range(4):
        A.label(wl[w])
        qkv_main(A, w)
        stamp(A, 3)
        qkv_epilogue_store(A, w)
        A(f"s_waitcnt lgkmcnt(0)\ns_branch {att}")
    A.label(lw)
    pack_issue(A)
    w_loader(A, QKV)
    pack_finish(A)
    A(f"s_branch {att}")
    A.label(lx)
    pub = A.newlabel("Lpub")
    A(f"s_cmp_lg_u32 s2, 0\ns_cbranch_scc1 {pub}")
    publish_nonce(A)
    A.label(pub)
    x_loader(A, QKV)
    A.label(att)
    A("s_barrier")
    stamp(A, 7)
    attention(A)
    A("s_waitcnt vmcnt(0)")
    A(f"s_branch {fin}")
    A.label(zrole)
    lw = A.newlabel("Lz_w"); lx = A.newlabel("Lz_x"); ztail = A.newlabel("Lz_tail")
    A(f"s_cmp_eq_u32 s3, 7\ns_cbranch_scc1 {lx}\ns_cmp_ge_u32 s3, 4\ns_cbranch_scc1 {lw}")
    z_consumer(A)
    stamp(A, 3)
    z_epilogue_a(A)
    A("s_barrier")
    z_epilogue_b(A)
    stamp(A, 7)
    A("s_barrier")
    z_epilogue_c(A)
    A("s_waitcnt vmcnt(0)")
    A(f"s_branch {fin}")
    A.label(lw)
    pack_issue(A)
    w_loader(A, Z)
    pack_finish(A)
    noex = A.newlabel("Lnoex")
    A(f"s_cmp_ge_u32 s3, 6\ns_cbranch_scc1 {noex}")
    get_nonce(A, 26)
    A("s_barrier")
    z_stats_exchange(A, 26)
    A("s_barrier")
    A(f"s_branch {fin}")
    A.label(noex)
    A(f"s_barrier\ns_barrier\ns_branch {fin}")
    A.label(lx)
    x_loader(A, Z)
    A("s_barrier\ns_barrier")
    A.label(fin)
    stamp(A, 4); stamp(A, 6, cyc=True)
    dump_stamps(A, 14 if FINE else 8)
    A.label(end)
    A("s_endpgm")
    txt = A.text(verbose=True)
    return txt.replace("SC_ST", "")

if __name__ == "__main__":
    import common
    common.set_profile("prof" in sys.argv)
    txt = build_file([("p1_kernel", gen_p1_kernel(), 256, 102, 256)], [("p1_kernel", 256, 512, LDS_MAX)])
    open("p1.s", "w").write(txt)
```

```python
from common import *
from p2 import wg_map_p23

FINE = 'fine' in sys.argv
OUT_SC = 'sc1' if 'outsc1' in sys.argv else 'nt' if 'outnt' in sys.argv else ''
S3_SLOT = 20480; S3_N = 6; S3_NST = 11; S3_BASE = 32768

def div12(A, q, d, r, tmp_s):
    A(f"s_mov_b32 s{tmp_s}, 43691")
    A(f"v_mul_u32_u24 v{d}, s{tmp_s}, v{q}")
    A(f"v_lshrrev_b32 v{d}, 19, v{d}")
    A(f"v_mul_u32_u24 v{r}, 12, v{d}")
    A(f"v_sub_u32 v{r}, v{q}, v{r}")

S_A0, S_B0 = 97, 98
def rot3_setup(A, on):
    if not on:
        A(f"s_mov_b32 s{S_A0}, 0\ns_mov_b32 s{S_B0}, 0"); return
    A("s_lshr_b32 s16, s2, 5\ns_and_b32 s16, s16, 7\ns_lshr_b32 s17, s2, 3\ns_and_b32 s17, s17, 3\ns_lshl_b32 s17, s17, 1\ns_add_u32 s16, s16, s17")
    for reg, m in ((S_A0, 5), (S_B0, 6)):
        A(f"s_mov_b32 s{reg}, s16")
        for _ in range(2): A(f"s_cmp_ge_u32 s{reg}, {m}\ns_cselect_b32 s17, {m}, 0\ns_sub_u32 s{reg}, s{reg}, s17")

def phys(A, dst, st, tmp):
    if st < 5:
        A(f"s_add_u32 s{dst}, s{S_A0}, {st}\ns_cmp_ge_u32 s{dst}, 5\ns_cselect_b32 s{tmp}, 5, 0\ns_sub_u32 s{dst}, s{dst}, s{tmp}")
    else:
        A(f"s_add_u32 s{dst}, s{S_B0}, {st-5}\ns_cmp_ge_u32 s{dst}, 6\ns_cselect_b32 s{tmp}, 6, 0\ns_sub_u32 s{dst}, s{dst}, s{tmp}\ns_add_u32 s{dst}, s{dst}, 5")

def p3l_setup(A):
    A(f"s_sub_u32 s16, s{S_WAVE}, 4")
    A(f"s_mul_i32 s17, s5, {WP_CB}")
    make_srd(A, 8, P_WS, WP_OFF, WP_CB, off_sgpr=17)
    A("s_mul_i32 s18, s16, 5120\nv_lshlrev_b32 v2, 4, v0\nv_add_u32 v2, s18, v2")

def p3l_issue(A, st, Q, sc=""):
    slot = st % S3_N
    phys(A, 20, st, 19)
    A(f"s_mul_i32 s20, s20, {S3_SLOT}")
    A(f"s_add_u32 m0, s18, {S3_BASE + slot * S3_SLOT}")
    for e in range(4):
        A(f"buffer_load_dwordx4 v2, s[8:11], s20 offen offset:{e*1024} {sc} lds")
    A(f"s_add_u32 m0, s18, {S3_BASE + slot * S3_SLOT + 4096}\ns_add_u32 s20, s20, 4096")
    A(f"buffer_load_dwordx4 v2, s[8:11], s20 offen {sc} lds")
    Q.issue(("w", st), 5)

def p3l_main(A, Q, nxt, sc="", hooks=None, maxi=1):
    hooks = hooks or {}
    for st in range(S3_NST):
        if ("pre", st) in hooks: hooks[("pre", st)]()
        if ("w", st) in Q.q:
            n = Q.wait_for({("w", st)})
            A(f"s_waitcnt vmcnt({n})"); Q.retire(n)
        A("s_barrier")
        if ("post", st) in hooks: hooks[("post", st)]()
        lim = min(S3_NST, max(S3_N, st - 1 + S3_N))
        cnt = 0
        while nxt < lim and cnt < maxi:
            p3l_issue(A, nxt, Q, sc); nxt += 1; cnt += 1

def p3_loader(A):
    p3l_setup(A)
    Q = VmQueue()
    for st in range(2): p3l_issue(A, st, Q)
    p3l_main(A, Q, 2)

P3_XB = [208, 224, 88]
P3_VX = 242; P3_VG = 240
def p3_early(A, rb, sc_ld=""):
    A(f"s_lshr_b32 s38, s3, 1\ns_and_b32 s39, s3, 1")
    A(f"s_lshl_b32 s44, s{rb}, 2\ns_lshl_b32 s45, s39, 1\ns_add_u32 s44, s44, s45\ns_mul_i32 s44, s44, {44*1024}")
    make_srd(A, 40, P_WS, A3_OFF, 88 * 1024, off_sgpr=44)
    A(f"v_lshlrev_b32 v{P3_VX}, 4, v0")
    A(f"s_lshl_b32 s44, s{rb}, 8\ns_lshl_b32 s45, s39, 7\ns_add_u32 s44, s44, s45")
    make_srd(A, 48, P_WS, G_OFF, 128, off_sgpr=44)
    A(f"v_and_b32 v243, 15, v0\nv_lshlrev_b32 v243, 2, v243\nbuffer_load_dword v{P3_VG}, v243, s[48:51], 0 offen {sc_ld}\nbuffer_load_dword v{P3_VG+1}, v243, s[48:51], 0 offen offset:64 {sc_ld}")
    A(f"s_lshl_b32 s53, s38, 11")
    p3_xload(A, 0, sc_ld); p3_xload(A, 1, sc_ld)

def p3_xoff(A, st, d0, d1):
    phys(A, d0, st, d1)
    A(f"s_lshl_b32 s{d0}, s{d0}, 12\ns_add_u32 s{d0}, s{d0}, s53\ns_add_u32 s{d1}, s{d0}, {44*1024}")

def p3_xload(A, st, sc_ld):
    d = P3_XB[st % 3]
    p3_xoff(A, st, 44, 45)
    A(f"buffer_load_dwordx4 v[{d}:{d+3}], v{P3_VX}, s[40:43], s44 offen {sc_ld}")
    A(f"buffer_load_dwordx4 v[{d+4}:{d+7}], v{P3_VX}, s[40:43], s45 offen {sc_ld}")
    A(f"buffer_load_dwordx4 v[{d+8}:{d+11}], v{P3_VX}, s[40:43], s44 offen offset:1024 {sc_ld}")
    A(f"buffer_load_dwordx4 v[{d+12}:{d+15}], v{P3_VX}, s[40:43], s45 offen offset:1024 {sc_ld}")

def p3_consumer(A, sc_ld="", early_done=False, drain0=False, rb=4, hflag=None, poison=False):
    ACA = 8; ACB = 48
    WF = [152, 172]
    VE = 192; VEC = 194
    VX = P3_VX; VG = P3_VG
    T = 104
    if not early_done: p3_early(A, rb, sc_ld)
    A("s_lshr_b32 s16, s3, 1\ns_and_b32 s17, s3, 1\nv_and_b32 v1, 15, v0")
    def xload(st): p3_xload(A, st, sc_ld)
    A(f"s_mul_i32 s21, s16, {2*5120}\nv_add_u32 v{VEC}, s21, v{VX}")
    def setaddr():
        A(f"v_add_u32 v{VE}, s22, v{VEC}")
    def wpair(buf, j2, nu):
        dn = WF[buf] + 4 * nu
        A(f"ds_read_b128 v[{dn}:{dn+3}], v{VE} offset:{(j2 * 5 + nu) * 1024}")
    def adv_slot():
        A(f"s_add_u32 s22, s22, {S3_SLOT}\ns_cmp_eq_u32 s22, {S3_BASE + S3_N*S3_SLOT}\ns_cselect_b32 s22, {S3_BASE}, s22")
    A(f"s_mov_b32 s22, {S3_BASE}")
    setaddr()
    A("s_barrier")
    stamp(A, 11)
    for nu in range(5): wpair(0, 0, nu)
    def check_x(st):
        x = P3_XB[st % 3]
        ok = A.newlabel("Lxok"); rl = A.newlabel("Lxrl")
        def test():
            A(f"v_max3_u32 v2, v{x}, v{x+2}, v{x+4}\nv_max3_u32 v3, v{x+6}, v{x+8}, v{x+10}\nv_max3_u32 v2, v2, v{x+12}, v{x+14}\nv_max_u32 v2, v2, v3\nv_cmp_eq_u32 vcc, -1, v2\ns_cmp_eq_u64 vcc, 0")
        test()
        A(f"s_cbranch_scc1 {ok}\ns_mov_b32 s35, 0")
        A.label(rl)
        p3_xoff(A, st, 32, 33)
        A(f"buffer_load_dwordx4 v[{x}:{x+3}], v{VX}, s[40:43], s32 offen {sc_ld}")
        A(f"buffer_load_dwordx4 v[{x+4}:{x+7}], v{VX}, s[40:43], s33 offen {sc_ld}")
        A(f"buffer_load_dwordx4 v[{x+8}:{x+11}], v{VX}, s[40:43], s32 offen offset:1024 {sc_ld}")
        A(f"buffer_load_dwordx4 v[{x+12}:{x+15}], v{VX}, s[40:43], s33 offen offset:1024 {sc_ld}")
        A("s_waitcnt vmcnt(0)")
        test()
        A(f"s_cbranch_scc1 {ok}\ns_add_u32 s35, s35, 1\ns_cmp_gt_u32 s35, s99\ns_cbranch_scc0 {rl}\ns_mov_b32 s99, 0")
        A.label(ok)
    nstep = 2 * S3_NST
    for step in range(nstep):
        st, j2 = step // 2, step % 2
        buf = step & 1
        acc = ACA if st < 5 else ACB
        last = step == nstep - 1
        if st == 1 and j2 == 0 and hflag:
            A("s_waitcnt vmcnt(0)"); hflag()
        if not last and j2 == 1:
            late_x = (st + 2 == 5) and not poison
            if st + 2 < S3_NST and not late_x: xload(st + 2)
            adv_slot(); setaddr()
            A("s_barrier")
            if late_x: xload(st + 2)
        for nu in range(5):
            lg = 4 if not last else 4 - nu
            vm = f"vmcnt({(4 if st <= 1 and drain0 else 0) + 4 * min(1, S3_NST - 1 - st)}) " if (nu == 0 and j2 == 0) else ""
            A(f"s_waitcnt {vm}lgkmcnt({lg})")
            if poison and st >= 5 and nu == 0 and j2 == 0: check_x(st)
            if nu == 0 and j2 == 0: stamp(A, 1 + st, f3=True)
            w = WF[buf] + 4 * nu
            for tt in range(2):
                d = acc + (tt * 5 + nu) * 4
                x = P3_XB[st % 3] + 8 * j2 + 4 * tt
                c = "0" if (st in (0, 5) and j2 == 0) else f"v[{d}:{d+3}]"
                A(f"v_mfma_f32_16x16x32_bf16 v[{d}:{d+3}], v[{w}:{w+3}], v[{x}:{x+3}], {c}")
                if tt == 0 and not last: wpair(buf ^ 1, (j2 + 1) % 2, nu)
    stamp(A, 12); stamp(A, 12, f3=True)
    for tt in range(2):
        for nu in range(5):
            a = ACA + (tt * 5 + nu) * 4; b = ACB + (tt * 5 + nu) * 4
            for r in range(4): A(f"v_sub_f32 v{a+r}, v{a+r}, v{b+r}")
            for r in range(4): A(f"v_fma_f32 v{a+r}, v{VG+tt}, v{a+r}, v{b+r}")
    A(f"s_mul_i32 s18, s3, 5120\nv_add_u32 v3, s18, v{VX}")
    A(f"s_xor_b32 s18, s3, 2\ns_mul_i32 s18, s18, 5120\nv_add_u32 v4, s18, v{VX}")
    k1 = A.newlabel("Lp3k1"); ke = A.newlabel("Lp3ke")
    A(f"s_cmp_eq_u32 s16, 0\ns_cbranch_scc0 {k1}")
    for nu in range(5):
        a = ACA + (5 + nu) * 4
        A(f"ds_write_b128 v3, v[{a}:{a+3}] offset:{nu*1024}")
    A(f"s_branch {ke}")
    A.label(k1)
    for nu in range(5):
        a = ACA + nu * 4
        A(f"ds_write_b128 v3, v[{a}:{a+3}] offset:{nu*1024}")
    for nu in range(5):
        for r in range(4): A(f"v_mov_b32 v{ACA+nu*4+r}, v{ACA+(5+nu)*4+r}")
    A.label(ke)
    A("s_waitcnt lgkmcnt(0)\ns_barrier")
    for nu in range(5):
        d = ACB + 4 * nu
        A(f"ds_read_b128 v[{d}:{d+3}], v4 offset:{nu*1024}")
    A(f"s_lshl_b32 s18, s4, 2\ns_lshl_b32 s19, s17, 1\ns_add_u32 s18, s18, s19\ns_add_u32 s18, s18, s16\ns_mul_i32 s18, s18, {16*1280}\ns_mul_i32 s19, s5, 160\ns_add_u32 s18, s18, s19")
    make_srd(A, 12, P_OUT, 0, 2048 * 1280)
    A(f"s_movk_i32 s19, 1280\nv_mul_u32_u24 v2, s19, v1\nv_lshrrev_b32 v4, 4, v0\nv_lshl_add_u32 v2, v4, 3, v2")
    A("s_waitcnt lgkmcnt(0)")
    for nu in range(5):
        a = ACA + 4 * nu; b = ACB + 4 * nu
        for r in range(4): A(f"v_add_f32 v{a+r}, v{a+r}, v{b+r}")
        o = T + 2 * nu
        A(f"v_cvt_pk_bf16_f32 v{o}, v{a}, v{a+1}\nv_cvt_pk_bf16_f32 v{o+1}, v{a+2}, v{a+3}")
        A(f"buffer_store_dwordx2 v[{o}:{o+1}], v2, s[12:15], s18 offen offset:{nu*32} {OUT_SC}")

def gen_p3_kernel():
    A = Asm()
    end = prologue(A)
    stamp(A, 0)
    stamp(A, 5, cyc=True)
    wg_map_p23(A)
    ld = A.newlabel("Lp3ld")
    A(f"s_cmp_ge_u32 s3, 4\ns_cbranch_scc1 {ld}")
    p3_consumer(A)
    A("s_waitcnt vmcnt(0)")
    stamp(A, 4); stamp(A, 6, cyc=True)
    dump_stamps(A, 15 if FINE else 7)
    A("s_endpgm")
    A.label(ld)
    stamp(A, 1)
    p3_loader(A)
    A("s_barrier\ns_barrier")
    stamp(A, 3); stamp(A, 4); stamp(A, 6, cyc=True)
    dump_stamps(A, 15 if FINE else 7)
    A("s_endpgm")
    A.label(end)
    A("s_endpgm")
    return A.text(verbose=True)

if __name__ == "__main__":
    import common
    common.set_profile("prof" in sys.argv)
    for q in range(1024): assert (q * 43691) >> 19 == q // 12
    txt = build_file([("p3_kernel", gen_p3_kernel(), 256, 102, 256)], [("p3_kernel", 256, 512, LDS_MAX)])
    open("p3.s", "w").write(txt)
```

```python
from common import *
from p1 import udiv_small, DsQ, gelu_regs, GELU_C1, GELU_C2, fbits, barrier_plan_loader

ZS_SLOT = 28672; ZS_N = 4 if 'zn4' in sys.argv else 3; ZS_BASE = 4096; ZS_X = 0; ZS_W = 16384
ZS_NST = 20
Z_PART = 0
Z_STAT = 2048
ZA2 = 16; ZA1 = 64
ZWF = [112, 124]; ZXF = [136, 152]
ZVX = [168, 169]; ZVXC = [170, 171]; ZVE, ZVO, ZVEC, ZVOC = 172, 173, 174, 175

def z_loader(A, late=None, hooks=None, pre=None, xhooks=None):
    hooks = hooks or {}
    lx = A.newlabel("Lzl_x"); join = A.newlabel("Lzl_j")
    A(f"s_cmp_ge_u32 s3, 6\ns_cbranch_scc1 {lx}")
    make_srd(A, 8, P_WIN, 0, 640 * 3072)
    A("s_sub_u32 s16, s3, 4\ns_mul_i32 s17, s5, 192")
    A(f"s_mul_i32 s18, s16, 6144\ns_mul_i32 s20, s7, {64 * 3072}\ns_add_u32 s20, s20, 1536\ns_add_u32 s22, s7, 1\ns_cmp_eq_u32 s22, 10\ns_cselect_b32 s22, 0, s22\ns_mul_i32 s23, s16, 384")
    for e in range(6):
        A(f"s_add_u32 s21, s23, {64 * e}\nv_add_u32 v12, s21, v0")
        udiv_small(A, 12, 13, 14, 12, 19, 768)
        A("v_lshrrev_b32 v15, 2, v13\nv_and_b32 v15, 2, v15\nv_xor_b32 v14, v14, v15")
        A(f"s_movk_i32 s19, 3072\nv_mul_u32_u24 v13, s19, v13\nv_lshl_add_u32 v13, v14, 4, v13\nv_add_u32 v{2+e}, s17, v13")
        A(f"s_add_u32 m0, s18, {ZS_BASE + ZS_W + e * 1024}\nbuffer_load_dwordx4 v{2+e}, s[8:11], s20 offen lds")
    Q = VmQueue()
    Q.issue(("d", 0), 6)
    def issue_w(st):
        col = 1536 if st < 10 else 0
        A(f"s_mul_i32 s20, s22, {64 * 3072}\ns_add_u32 s20, s20, {col}\ns_add_u32 s22, s22, 1\ns_cmp_eq_u32 s22, 10\ns_cselect_b32 s22, 0, s22")
        for e in range(6):
            A(f"s_add_u32 m0, s18, {ZS_BASE + (st % ZS_N) * ZS_SLOT + ZS_W + e * 1024}")
            A(f"buffer_load_dwordx4 v{2+e}, s[8:11], s20 offen lds")
        Q.issue(("d", st), 6)
    run_loader(A, Q, issue_w, late, hooks, pre, first_done=True)
    A(f"s_branch {join}")
    A.label(lx)
    make_srd(A, 8, P_AX, 0, 2048 * 1280)
    A("""
    s_sub_u32 s16, s3, 6
    v_lshrrev_b32 v4, 3, v0
    v_and_b32 v5, 7, v0
    v_lshrrev_b32 v6, 1, v4
    v_xor_b32 v7, v5, v6
    s_movk_i32 s19, 1280
    v_mul_u32_u24 v8, s19, v4
    v_lshl_add_u32 v2, v7, 4, v8
    v_xor_b32 v7, 4, v7
    v_lshl_add_u32 v3, v7, 4, v8
    v_add_u32 v3, 10240, v3
    s_lshl_b32 s17, s4, 7
    s_lshl_b32 s18, s16, 6
    s_add_u32 s17, s17, s18
    s_mul_i32 s17, s17, 1280
    s_lshl_b32 s18, s16, 13
    """)
    Q = VmQueue()
    A("s_mov_b32 s22, s7")
    def issue_x(st):
        A("s_lshl_b32 s23, s22, 7\ns_add_u32 s23, s23, s17\ns_add_u32 s22, s22, 1\ns_cmp_eq_u32 s22, 10\ns_cselect_b32 s22, 0, s22")
        for e in range(8):
            A(f"s_add_u32 m0, s18, {ZS_BASE + (st % ZS_N) * ZS_SLOT + ZS_X + e * 1024}")
            A(f"s_add_u32 s20, s23, {(e >> 1) * 16 * 1280}")
            A(f"buffer_load_dwordx4 v{2 + (e & 1)}, s[8:11], s20 offen lds")
        Q.issue(("d", st), 8)
    run_loader(A, Q, issue_x, late, xhooks or {}, pre)
    A.label(join)

def run_loader(A, Q, issue, late, hooks, pre=None, first_done=False):
    if pre: pre()
    if 'st0' in sys.argv: A("s_memrealtime s[70:71]")
    if not first_done: issue(0)
    issue(1)
    if "early" in hooks: hooks["early"](A, Q)
    stamp(A, 1)
    nxt = 2
    for st in range(ZS_NST):
        if ("d", st) in Q.q:
            n = Q.wait_for({("d", st)})
            A(f"s_waitcnt vmcnt({min(n, 63)})"); Q.retire(min(n, 63))
        if 'fz2' in sys.argv and st in (5, 6): stamp(A, 8 + 3 * (st - 5), cyc=True)
        A("s_barrier")
        if 'fz2' in sys.argv and st in (5, 6): stamp(A, 9 + 3 * (st - 5), cyc=True)
        if st == 0: stamp(A, 2)
        if st == 0 and 'st0' in sys.argv: A("s_memrealtime s[72:73]")
        lim = min(ZS_NST, st + ZS_N); c = 0
        while nxt < lim and c < 2:
            issue(nxt); nxt += 1; c += 1
        if "each" in hooks: hooks["each"](A, Q, st)
        if 'fz2' in sys.argv and st in (5, 6): stamp(A, 10 + 3 * (st - 5), cyc=True)
        if st == 4 and "st4" in hooks: hooks["st4"](A, Q)
        if st == 2 and "st2" in hooks: hooks["st2"](A, Q)
        if st == 9:
            A("s_barrier")
            if "after_z1" in hooks: hooks["after_z1"](A, Q)
        if st == 13 and "st13" in hooks: hooks["st13"](A, Q)
        if ("st", st) in hooks: hooks[("st", st)](A, Q)
        if st == ZS_NST - 2 and "pre_last" in hooks: hooks["pre_last"](A, Q)
        if st == ZS_NST - 1 and late: late(A)

def z_consumer(A, mid=None, between=None, it_hook=None, b0hook=None, preb0=None, p2hook=None, p2iter=6):
    A("v_and_b32 v1, 15, v0\nv_lshrrev_b32 v2, 4, v0\ns_lshr_b32 s16, s3, 1\ns_and_b32 s17, s3, 1")
    A(f"""
    v_lshrrev_b32 v3, 1, v1
    v_xor_b32 v3, v3, v2
    v_lshlrev_b32 v3, 4, v3
    v_lshl_add_u32 v{ZVXC[0]}, v1, 7, v3
    s_lshl_b32 s18, s16, 13
    v_add_u32 v{ZVXC[0]}, s18, v{ZVXC[0]}
    v_xor_b32 v{ZVXC[1]}, 64, v{ZVXC[0]}
    """)
    A(f"""
    v_lshrrev_b32 v3, 2, v1
    v_lshl_add_u32 v3, v2, 3, v3
    v_mul_u32_u24 v3, 192, v3
    v_and_b32 v4, 3, v1
    v_lshl_add_u32 v3, v4, 3, v3
    s_mul_i32 s18, s17, 96
    s_add_u32 s18, s18, {ZS_W}
    v_add_u32 v3, s18, v3
    v_and_b32 v4, 1, v2
    v_lshlrev_b32 v4, 5, v4
    v_add_u32 v5, v3, v4
    v_sub_u32 v3, v3, v4
    s_cmp_eq_u32 s17, 0
    s_cselect_b64 vcc, -1, 0
    v_cndmask_b32 v{ZVEC}, v3, v5, vcc
    v_cndmask_b32 v{ZVOC}, v5, v3, vcc
    """)
    for i in range(96): A(f"v_mov_b32 v{ZA2+i}, 0")
    D = DsQ()
    def setaddr():
        A(f"v_add_u32 v{ZVX[0]}, s22, v{ZVXC[0]}"); A(f"v_add_u32 v{ZVX[1]}, s22, v{ZVXC[1]}")
        A(f"v_add_u32 v{ZVE}, s22, v{ZVEC}"); A(f"v_add_u32 v{ZVO}, s22, v{ZVOC}")
    def rd_w(buf, t, kk, tag):
        d = ZWF[buf] + 4 * t; a = ZVO if t & 1 else ZVE
        off = kk * 32 * 192 + t * 32
        A(f"ds_read_b64_tr_b16 v[{d}:{d+1}], v{a} offset:{off}"); D.issue(tag)
        A(f"ds_read_b64_tr_b16 v[{d+2}:{d+3}], v{a} offset:{off + 4*192}"); D.issue(tag)
    def rd_x(buf, m, kk, tag):
        d = ZXF[buf] + 4 * m
        A(f"ds_read_b128 v[{d}:{d+3}], v{ZVX[kk]} offset:{m * 2048}"); D.issue(tag)
    ORDER = [("x", 0), ("w", 0), ("w", 1), ("w", 2), ("x", 1), ("x", 2), ("x", 3)]
    def rd(buf, item, kk, sim):
        if item[0] == "x": rd_x(buf, item[1], kk, ("x", sim, item[1]))
        else: rd_w(buf, item[1], kk, ("w", sim, item[1]))
    def half(kk, z2, has_next, sim):
        pend = list(ORDER) if has_next else []
        cnt = 0
        if kk == 1 and has_next:
            A(f"s_add_u32 s22, s22, {ZS_SLOT}"); A(f"s_cmp_eq_u32 s22, {ZS_BASE + ZS_N*ZS_SLOT}"); A(f"s_cselect_b32 s22, {ZS_BASE}, s22")
        for m in range(4):
            for t in range(3):
                n = D.wait({("x", sim, m), ("w", sim, t)})
                if n is not None: A(f"s_waitcnt lgkmcnt({min(n, 15)})")
                wf = ZWF[kk] + 4 * t; xf = ZXF[kk] + 4 * m
                if z2:
                    d = ZA2 + (m * 3 + t) * 4
                    A(f"v_mfma_f32_16x16x32_bf16 v[{d}:{d+3}], v[{xf}:{xf+3}], v[{wf}:{wf+3}], v[{d}:{d+3}]")
                else:
                    d = ZA1 + (t * 4 + m) * 4
                    A(f"v_mfma_f32_16x16x32_bf16 v[{d}:{d+3}], v[{wf}:{wf+3}], v[{xf}:{xf+3}], v[{d}:{d+3}]")
                cnt += 1
                if kk == 1 and has_next and cnt == 1:
                    setaddr()
                    A("s_waitcnt lgkmcnt(0)"); D.q.clear()
                    if 'fz2' in sys.argv and z2 and sim == 1:
                        for n_, b_ in ((4, 8), (5, 11)):
                            l1 = A.newlabel("Lf"); A(f"s_cmp_lg_u32 s24, {n_}\ns_cbranch_scc1 {l1}"); stamp(A, b_, cyc=True); A.label(l1)
                    A("s_barrier")
                    if 'fz2' in sys.argv and z2 and sim == 1:
                        for n_, b_ in ((4, 9), (5, 12)):
                            l1 = A.newlabel("Lf"); A(f"s_cmp_lg_u32 s24, {n_}\ns_cbranch_scc1 {l1}"); stamp(A, b_, cyc=True); A.label(l1)
                if pend and cnt >= 1:
                    rd(kk ^ 1, pend.pop(0), kk ^ 1, sim + 1)
    def gemm_pass(z2, first):
        for it in ORDER: rd(0, it, 0, 0)
        loop = A.newlabel("Lzp")
        A("s_mov_b32 s24, 0")
        A.label(loop)
        if it_hook and first: it_hook(A)
        if p2hook and not first:
            lh = A.newlabel("Lp2h"); A(f"s_cmp_lg_u32 s24, {p2iter}\ns_cbranch_scc1 {lh}")
            A("s_waitcnt lgkmcnt(0)"); p2hook(A); A.label(lh)
        if mid and first:
            lm = A.newlabel("Lmid"); A(f"s_cmp_lg_u32 s24, 3\ns_cbranch_scc1 {lm}"); mid(A); A.label(lm)
        half(0, z2, True, 0)
        half(1, z2, True, 1)
        A("s_add_u32 s24, s24, 1\ns_cmp_lt_u32 s24, 9")
        A(f"s_cbranch_scc1 {loop}")
        half(0, z2, True, 2)
        half(1, z2, False, 3)
        D.q.clear()
    A(f"s_mov_b32 s22, {ZS_BASE}")
    setaddr()
    if preb0: preb0(A)
    stamp(A, 1)
    A("s_barrier")
    stamp(A, 2)
    if b0hook: b0hook(A)
    gemm_pass(True, True)
    stamp(A, 3)
    between(A)
    A(f"s_add_u32 s22, s22, {ZS_SLOT}\ns_cmp_eq_u32 s22, {ZS_BASE + ZS_N*ZS_SLOT}\ns_cselect_b32 s22, {ZS_BASE}, s22")
    setaddr()
    A("s_barrier")
    gemm_pass(False, False)

def z_epi_stats(A):
    C1, C2, T = 176, 178, 180
    A(f"v_mov_b32 v{C1}, {fbits(GELU_C1):#x}\nv_mov_b32 v{C1+1}, {fbits(GELU_C1):#x}\nv_mov_b32 v{C2}, {fbits(GELU_C2):#x}\nv_mov_b32 v{C2+1}, {fbits(GELU_C2):#x}")
    gelu_regs(A, ZA2, 48, C1, C2, T)
    SU = 192; SQ = 208
    for m in range(4):
        for r in range(4):
            a, b, c = [ZA2 + (m * 3 + t) * 4 + r for t in range(3)]
            s_, q_ = SU + m * 4 + r, SQ + m * 4 + r
            A(f"v_add_f32 v{s_}, v{a}, v{b}\nv_mul_f32 v{q_}, v{a}, v{a}\nv_add_f32 v{s_}, v{s_}, v{c}\nv_fmac_f32 v{q_}, v{b}, v{b}\nv_fmac_f32 v{q_}, v{c}, v{c}")
    for base in (SU, SQ):
        for j in range(8): A(f"v_add_f32_dpp v{base+j}, v{base+j}, v{base+j} row_ror:8 row_mask:0xf bank_mask:0x3")
    for base in (SU, SQ):
        for j in range(8): A(f"v_add_f32_dpp v{base+j}, v{base+j+8}, v{base+j+8} row_ror:8 row_mask:0xf bank_mask:0xc")
    for base in (SU, SQ):
        for j in range(4): A(f"v_add_f32_dpp v{base+j}, v{base+j}, v{base+j} row_half_mirror row_mask:0xf bank_mask:0x5")
    for base in (SU, SQ):
        for j in range(4): A(f"v_add_f32_dpp v{base+j}, v{base+j+4}, v{base+j+4} row_half_mirror row_mask:0xf bank_mask:0xa")
    for base in (SU, SQ):
        for j in range(4):
            A(f"v_add_f32_dpp v{base+j}, v{base+j}, v{base+j} quad_perm:[2,3,0,1] row_mask:0xf bank_mask:0xf")
    for base in (SU, SQ):
        for j in range(4):
            A(f"v_add_f32_dpp v{base+j}, v{base+j}, v{base+j} quad_perm:[1,0,3,2] row_mask:0xf bank_mask:0xf")
    A(f"""
    s_lshl_b32 s18, s17, 10
    s_lshl_b32 s19, s16, 9
    s_add_u32 s18, s18, s19
    s_add_u32 s18, s18, {Z_PART}
    v_lshrrev_b32 v3, 2, v1
    v_lshlrev_b32 v3, 7, v3
    v_lshl_add_u32 v3, v2, 5, v3
    v_add_u32 v3, s18, v3
    s_mov_b64 s[12:13], exec
    s_mov_b32 s20, 0x11111111
    s_mov_b32 s21, 0x11111111
    s_mov_b64 exec, s[20:21]
    """)
    T = 180
    A(f"v_mov_b32 v{T}, v{SU}\nv_mov_b32 v{T+1}, v{SQ}\nv_mov_b32 v{T+2}, v{SU+1}\nv_mov_b32 v{T+3}, v{SQ+1}")
    A(f"v_mov_b32 v{T+4}, v{SU+2}\nv_mov_b32 v{T+5}, v{SQ+2}\nv_mov_b32 v{T+6}, v{SU+3}\nv_mov_b32 v{T+7}, v{SQ+3}")
    A(f"ds_write_b128 v3, v[{T}:{T+3}]\nds_write_b128 v3, v[{T+4}:{T+7}] offset:16")
    A("s_mov_b64 exec, s[12:13]\ns_waitcnt lgkmcnt(0)")

def z_publish_stats(A, NONCE):
    A(f"s_sub_u32 s21, s3, 4\ns_lshl_b32 s21, s21, 9\nv_lshlrev_b32 v20, 3, v0\nv_add_u32 v20, s21, v20")
    A(f"v_add_u32 v88, {Z_PART}, v20")
    A(f"ds_read_b64 v[22:23], v88\nds_read_b64 v[24:25], v88 offset:1024\ns_waitcnt lgkmcnt(0)")
    A(f"v_add_f32 v28, v22, v24\nv_add_f32 v30, v23, v25\nv_mov_b32 v29, s{NONCE}\nv_mov_b32 v31, s{NONCE}")
    A("s_lshl_b32 s21, s4, 14")
    make_srd(A, 92, P_WS, ST_OFF, 16384, off_sgpr=21)
    A("v_lshlrev_b32 v89, 1, v20\ns_lshl_b32 s21, s5, 11")
    A("buffer_store_dwordx4 v[28:31], v89, s[92:95], s21 offen sc1")

def z_gather_issue(A):
    for c in range(8):
        A(f"s_mov_b32 s21, {c*2048}\nbuffer_load_dwordx4 v[{56+4*c}:{59+4*c}], v89, s[92:95], s21 offen sc1")

def z_gather_finish(A, NONCE, spin_max):
    lp = A.newlabel("Lst"); ok = A.newlabel("Lstok")
    A("s_mov_b32 s20, 0")
    A.label(lp)
    A("s_waitcnt vmcnt(0)")
    A(f"v_mov_b32 v12, 0")
    for c in range(8):
        A(f"v_xor_b32 v13, s{NONCE}, v{57+4*c}\nv_or_b32 v12, v12, v13\nv_xor_b32 v13, s{NONCE}, v{59+4*c}\nv_or_b32 v12, v12, v13")
    A(f"v_cmp_ne_u32 vcc, 0, v12\ns_cmp_eq_u64 vcc, 0\ns_cbranch_scc1 {ok}")
    A(f"s_add_u32 s20, s20, 1\ns_cmp_gt_u32 s20, {spin_max}\ns_cbranch_scc1 {ok}\ns_sleep 1")
    z_gather_issue(A)
    A(f"s_branch {lp}")
    A.label(ok)
    A("v_add_f32 v40, v56, v60\nv_add_f32 v41, v58, v62")
    for c in range(2, 8): A(f"v_add_f32 v40, v40, v{56+4*c}\nv_add_f32 v41, v41, v{58+4*c}")
    inv = fbits(1.0 / 768.0)
    A(f"""
    v_mul_f32 v40, {inv:#x}, v40
    v_mul_f32 v41, {inv:#x}, v41
    v_fma_f32 v41, -v40, v40, v41
    v_max_f32 v41, 0, v41
    v_add_f32 v41, {fbits(1e-5):#x}, v41
    v_rsq_f32 v42, v41
    s_nop 0
    v_mul_f32 v43, -v40, v42
    """)
    A(f"ds_write_b64 v88, v[42:43] offset:{Z_STAT - Z_PART}\ns_waitcnt lgkmcnt(0)")

def z_epi_norm(A, sc_st="", ST=112, OB=144):
    A(f"s_lshl_b32 s19, s16, 9\ns_add_u32 s19, s19, {Z_STAT}\nv_lshlrev_b32 v3, 5, v2\nv_add_u32 v3, s19, v3")
    for m in range(4):
        A(f"ds_read_b128 v[{ST+8*m}:{ST+8*m+3}], v3 offset:{m*128}\nds_read_b128 v[{ST+8*m+4}:{ST+8*m+7}], v3 offset:{m*128+16}")
    A(f"s_mul_i32 s18, s5, 393216\ns_lshl_b32 s19, s4, 2\ns_lshl_b32 s20, s16, 1\ns_add_u32 s19, s19, s20\ns_mul_i32 s19, s19, 6144\ns_add_u32 s18, s18, s19\ns_mul_i32 s19, s17, 3072\ns_add_u32 s18, s18, s19")
    make_srd(A, 8, P_WS, ZN_OFF, 6144 + 3072, off_sgpr=18)
    A("v_lshlrev_b32 v4, 4, v0\ns_waitcnt lgkmcnt(0)")
    for P in range(2):
        for t in range(3):
            o = OB + 4 * (P * 3 + t)
            for j in range(2):
                m = 2 * P + j
                d = ZA2 + (m * 3 + t) * 4
                for r in range(4):
                    A(f"v_fma_f32 v{d+r}, v{d+r}, v{ST+8*m+2*r}, v{ST+8*m+2*r+1}")
                A(f"v_cvt_pk_bf16_f32 v{o+2*j}, v{d}, v{d+1}\nv_cvt_pk_bf16_f32 v{o+2*j+1}, v{d+2}, v{d+3}")
            A(f"v_permlane32_swap_b32 v{o}, v{o+2}\nv_permlane32_swap_b32 v{o+1}, v{o+3}")
            A(f"v_permlane16_swap_b32 v{o}, v{o+2}\nv_permlane16_swap_b32 v{o+1}, v{o+3}")
            A(f"s_mov_b32 s19, {P*6144 + t*1024}\nbuffer_store_dwordx4 v[{o}:{o+3}], v4, s[8:11], s19 offen {sc_st}")

def z_epi_z1(A, sc_st=""):
    C1, C2, T = 176, 178, 180
    gelu_regs(A, ZA1, 48, C1, C2, T)
    A(f"s_lshl_b32 s18, s4, 1\ns_add_u32 s18, s18, s16\ns_lshl_b32 s18, s18, 3\ns_add_u32 s18, s18, s5\ns_lshl_b32 s18, s18, 2\ns_lshl_b32 s19, s17, 1\ns_add_u32 s18, s18, s19\ns_mul_i32 s18, s18, 3072")
    make_srd(A, 8, P_WS, Z1_OFF, 6144, off_sgpr=18)
    A("v_lshlrev_b32 v4, 4, v0")
    for wt in range(2):
        for t in range(3):
            o = 192 + 4 * (wt * 3 + t)
            for j in range(2):
                d = ZA1 + (t * 4 + 2 * wt + j) * 4
                A(f"v_cvt_pk_bf16_f32 v{o+2*j}, v{d}, v{d+1}\nv_cvt_pk_bf16_f32 v{o+2*j+1}, v{d+2}, v{d+3}")
            A(f"s_mov_b32 s19, {wt*3072 + t*1024}\nbuffer_store_dwordx4 v[{o}:{o+3}], v4, s[8:11], s19 offen {sc_st}")
```

```python
import sys
import common
from common import *
import p1, p2, p3, zrole, z1p
from p1 import *

NONCE = 62
RB64, CB = 60, 61
ZF_OFF, OF_OFF, PF_OFF, HF_OFF, Z1F_OFF = 0x0000, 0x1000, 0x2000, 0x3000, 0x0800
LAZY = 63
NONCE_LDS = 163824 - 2048
NONCE_LDS = 161792
SPIN_MAX = 1 << 17

def flag_srd(A):
    make_srd(A, 28, P_WS, FL_OFF, 0x4000)

TV = [250]
def set_flag(A, soff_sgpr):
    flag_srd(A)
    A(f"s_mov_b64 s[32:33], exec\ns_mov_b64 exec, 1\nv_mov_b32 v{TV[0]}, 0\nv_mov_b32 v{TV[0]+1}, s{NONCE}")
    A(f"buffer_store_dword v{TV[0]+1}, v{TV[0]}, s[28:31], s{soff_sgpr} offen sc1")
    A("s_mov_b64 exec, s[32:33]")

def wait_flags(A, soff_sgpr, n):
    flag_srd(A)
    lo = (1 << min(n, 32)) - 1; hi = (1 << max(n - 32, 0)) - 1
    lp = A.newlabel("Lw"); ok = A.newlabel("Lwok")
    A(f"s_mov_b64 s[32:33], exec\ns_mov_b32 exec_lo, {lo:#x}\ns_mov_b32 exec_hi, {hi:#x}\nv_lshlrev_b32 v{TV[0]}, 2, v0\ns_mov_b32 s34, 0")
    A.label(lp)
    A(f"buffer_load_dword v{TV[0]+1}, v{TV[0]}, s[28:31], s{soff_sgpr} offen sc1\ns_waitcnt vmcnt(0)")
    A(f"v_cmp_ne_u32 vcc, s{NONCE}, v{TV[0]+1}\ns_cmp_eq_u64 vcc, 0\ns_cbranch_scc1 {ok}")
    A(f"s_add_u32 s34, s34, 1\ns_cmp_gt_u32 s34, {SPIN_MAX}\ns_cbranch_scc1 {ok}\ns_sleep 1\ns_branch {lp}")
    A.label(ok)
    A("s_mov_b64 exec, s[32:33]")

def poll_issue(A, soff_sgpr, n, vreg):
    flag_srd(A)
    A(f"v_min_u32 v{TV[0]}, {n-1}, v0\nv_lshlrev_b32 v{TV[0]}, 2, v{TV[0]}\nbuffer_load_dword v{vreg}, v{TV[0]}, s[28:31], s{soff_sgpr} offen sc1")

def poll_check(A, soff_sgpr, n, vreg):
    ok = A.newlabel("Lpok")
    A(f"v_cmp_ne_u32 vcc, s{NONCE}, v{vreg}\ns_cmp_eq_u64 vcc, 0\ns_cbranch_scc1 {ok}")
    wait_flags(A, soff_sgpr, n)
    A.label(ok)

def read_nonce_lds(A):
    A(f"v_mov_b32 v250, {NONCE_LDS}\nds_read_b32 v251, v250\ns_waitcnt lgkmcnt(0)\nv_readfirstlane_b32 s{NONCE}, v251")

def touch_bulk(A, which=3):
    A("s_lshr_b32 s26, s2, 3\ns_lshl_b32 s26, s26, 2\ns_add_u32 s26, s26, s3\ns_lshl_b32 s26, s26, 6")
    A("v_add_u32 v240, s26, v0")
    A("s_and_b32 s27, s2, 7\ns_lshr_b32 s32, s27, 1\ns_and_b32 s32, s32, 1\ns_and_b32 s33, s27, 1")
    make_srd(A, 8, P_AX, 0, 2048 * 1280)
    A("s_lshl_b32 s34, s32, 10\ns_movk_i32 s35, 1280")
    A("v_and_b32 v241, 1023, v240\nv_add_u32 v241, s34, v241\nv_mul_u32_u24 v241, s35, v241\nv_lshrrev_b32 v242, 10, v240\nv_lshl_add_u32 v241, v242, 7, v241")
    if which & 1: A("buffer_load_dword v254, v241, s[8:11], 0 offen offset:256")
    if not (which & 2): return
    wq = A.newlabel("Ltq"); wj = A.newlabel("Ltj")
    A(f"s_cmp_eq_u32 s6, 1\ns_cbranch_scc1 {wq}")
    def wpart(nl, per_seg, rs, segstride, colhalf_bytes, ptr, size, total):
        make_srd(A, 12, ptr, 0, size)
        A(f"s_mul_i32 s25, s33, {colhalf_bytes}\ns_add_u32 s25, s25, {128 * rs}")
        A(f"v_mov_b32 v243, v240")
        udiv_small(A, 243, 244, 246, nl, 31, 16384)
        udiv_small(A, 246, 247, 248, per_seg, 31, 16)
        A(f"s_movk_i32 s31, {rs}\nv_mul_u32_u24 v244, s31, v244\ns_movk_i32 s31, {segstride}\nv_mul_u32_u24 v247, s31, v247\nv_lshlrev_b32 v248, 7, v248\nv_add3_u32 v244, v244, v247, v248")
        A(f"v_cmp_gt_u32 vcc, {512 * nl}, v243\nv_cndmask_b32 v244, -1, v244, vcc")
        A(f"buffer_load_dword v254, v244, s[12:15], s25 offen")
    wpart(15, 5, 3840, 1280, 640, P_WQKV, 640 * 3840, 9600)
    A(f"s_branch {wj}")
    A.label(wq)
    wpart(12, 6, 3072, 1536, 768, P_WIN, 640 * 3072, 7680)
    A.label(wj)

def touch_half(A, h):
    A("s_lshr_b32 s26, s2, 3\ns_lshl_b32 s26, s26, 2\ns_add_u32 s26, s26, s3")
    A("s_and_b32 s27, s2, 7\ns_lshr_b32 s32, s27, 1\ns_and_b32 s32, s32, 1\ns_and_b32 s33, s27, 1")
    A("s_lshl_b32 s34, s26, 5\nv_add_u32 v240, s34, v0\ns_lshl_b32 s34, s32, 10\ns_movk_i32 s35, 1280")
    A(f"v_and_b32 v241, 1023, v240\nv_add_u32 v241, s34, v241\nv_mul_u32_u24 v241, s35, v241\nv_lshrrev_b32 v242, 10, v240\nv_lshl_add_u32 v241, v242, 7, v241\nv_add_u32 v241, {(2 + 4*h) * 128}, v241")
    zq = A.newlabel("Lhz"); pj = A.newlabel("Lhj")
    A(f"s_cmp_eq_u32 s6, 1\ns_cbranch_scc1 {zq}")
    def wp(nper, nl, per_seg, rs, segstride, colbytes, ptr):
        A(f"s_mul_i32 s34, s26, {nper}\ns_sub_u32 s34, s34, 32\nv_add_u32 v243, s34, v0\nv_max_i32 v243, 0, v243\nv_min_u32 v243, {128*nper-1}, v243")
        udiv_small(A, 243, 244, 246, nl, 31, 4096)
        udiv_small(A, 246, 247, 248, per_seg, 31, 16)
        A(f"s_movk_i32 s31, {rs}\nv_mul_u32_u24 v244, s31, v244\ns_movk_i32 s31, {segstride}\nv_mul_u32_u24 v247, s31, v247\nv_lshlrev_b32 v248, 7, v248\nv_add3_u32 v244, v244, v247, v248")
        A(f"s_mul_i32 s25, s33, {colbytes}\ns_add_u32 s25, s25, {(128 + 256*h) * rs}\nv_add_u32 v244, s25, v244")
        A(f"s_mov_b32 s30, s{ptr}\ns_mov_b32 s31, s{ptr+1}\ns_movk_i32 s35, {32+nper}")
    wp(30, 15, 5, 3840, 1280, 640, P_WQKV)
    A(f"s_branch {pj}")
    A.label(zq)
    wp(24, 12, 6, 3072, 1536, 768, P_WIN)
    A.label(pj)
    A("v_cmp_gt_u32 vcc, 32, v0")
    A(f"v_cndmask_b32 v241, v244, v241, vcc")
    A(f"v_mov_b32 v243, s30\nv_mov_b32 v244, s{P_AX}\nv_cndmask_b32 v243, v243, v244, vcc")
    A(f"v_mov_b32 v245, s31\nv_mov_b32 v244, s{P_AX+1}\nv_cndmask_b32 v245, v245, v244, vcc")
    A(f"v_add_co_u32 v246, vcc, v243, v241\nv_addc_co_u32 v247, vcc, 0, v245, vcc")
    A("v_cmp_gt_u32 vcc, s35, v0\ns_and_saveexec_b64 s[34:35], vcc")
    A("global_load_dword v254, v[246:247], off\ns_mov_b64 exec, s[34:35]")

PLEAD = 3
TA_ = 236
def ptouch_setup(A):
    A("s_lshr_b32 s16, s2, 3\ns_and_b32 s17, s2, 7\ns_lshr_b32 s18, s17, 1\ns_and_b32 s18, s18, 1\ns_and_b32 s19, s17, 1")
    A("s_lshl_b32 s20, s18, 10\ns_lshl_b32 s21, s16, 5\ns_add_u32 s20, s20, s21\nv_add_u32 v230, s20, v0\ns_movk_i32 s21, 1280\nv_mul_u32_u24 v230, s21, v230")
    zq = A.newlabel("Lpz"); pj = A.newlabel("Lpj")
    A(f"s_cmp_eq_u32 s6, 1\ns_cbranch_scc1 {zq}")
    def wp(nper, nl, per_seg, rs, segstride, colbytes, ptr, inc):
        A(f"s_mul_i32 s20, s16, {nper}\ns_sub_u32 s20, s20, 32\nv_add_u32 v231, s20, v0")
        A(f"v_max_i32 v231, 0, v231\nv_min_u32 v231, {32*nper-1}, v231")
        udiv_small(A, 231, 232, 233, nl, 23, 1024)
        udiv_small(A, 233, 234, 235, per_seg, 23, 16)
        A(f"s_movk_i32 s23, {rs}\nv_mul_u32_u24 v232, s23, v232\ns_movk_i32 s23, {segstride}\nv_mul_u32_u24 v234, s23, v234\nv_lshlrev_b32 v235, 7, v235\nv_add3_u32 v232, v232, v234, v235")
        A(f"s_mul_i32 s22, s19, {colbytes}\nv_add_u32 v232, s22, v232")
        A(f"s_mov_b32 s24, s{ptr}\ns_mov_b32 s25, s{ptr+1}\ns_mov_b32 s26, {inc}\ns_movk_i32 s27, {32+nper}")
    wp(30, 15, 5, 3840, 1280, 640, P_WQKV, 64 * 3840)
    A(f"s_branch {pj}")
    A.label(zq)
    wp(24, 12, 6, 3072, 1536, 768, P_WIN, 64 * 3072)
    A.label(pj)
    A("v_cmp_gt_u32 vcc, 32, v0")
    A(f"v_cndmask_b32 v230, v232, v230, vcc")
    A(f"v_mov_b32 v231, s24\nv_mov_b32 v232, s{P_AX}\nv_cndmask_b32 v231, v231, v232, vcc")
    A(f"v_mov_b32 v233, s25\nv_mov_b32 v232, s{P_AX+1}\nv_cndmask_b32 v233, v233, v232, vcc")
    A(f"v_mov_b32 v238, s26\nv_mov_b32 v232, 128\nv_cndmask_b32 v238, v238, v232, vcc")
    A(f"v_add_co_u32 v{TA_}, vcc, v231, v230\nv_addc_co_u32 v{TA_+1}, vcc, 0, v233, vcc")
    A("v_cmp_gt_u32 s[90:91], s27, v0")

def ptouch(A):
    A(f"s_mov_b64 s[88:89], exec\ns_mov_b64 exec, s[90:91]")
    A(f"global_load_dword v254, v[{TA_}:{TA_+1}], off")
    A(f"v_add_co_u32 v{TA_}, vcc, v238, v{TA_}\nv_addc_co_u32 v{TA_+1}, vcc, 0, v{TA_+1}, vcc")
    A("s_mov_b64 exec, s[88:89]")

def ptouch_skip(A):
    A(f"v_add_co_u32 v{TA_}, vcc, v238, v{TA_}\nv_addc_co_u32 v{TA_+1}, vcc, 0, v{TA_+1}, vcc")

def touch_wsp(A):
    A(f"s_lshl_b32 s26, s{RB64}, 18\ns_lshl_b32 s27, s{CB}, 15\ns_add_u32 s26, s26, s27\ns_lshl_b32 s27, s3, 13\ns_add_u32 s26, s26, s27")
    make_srd(A, 28, P_WSP, 0, 2048 * 4096)
    A("v_lshlrev_b32 v240, 7, v0\nbuffer_load_dword v254, v240, s[28:31], s26 offen")

def touch_wsp_l2(A):
    A(f"s_lshl_b32 s24, s{RB64}, 18\ns_and_b32 s25, s{CB}, 3\ns_lshl_b32 s25, s25, 16\ns_add_u32 s24, s24, s25")
    make_srd(A, 92, P_WSP, 0, 2048 * 4096)
    A("s_sub_u32 s25, s3, 4\ns_lshl_b32 s25, s25, 7\nv_add_u32 v230, s25, v0")
    for j in range(2):
        A(f"v_add_u32 v231, {64*j}, v230\nv_and_b32 v232, 15, v231\nv_lshrrev_b32 v231, 4, v231\nv_lshlrev_b32 v231, 7, v231\nv_lshl_add_u32 v231, v232, 12, v231")
        A(f"buffer_load_dword v{233+j}, v231, s[92:95], s24 offen")

def touch_z(A, sc):
    A(f"s_mul_i32 s24, s5, 393216")
    make_srd(A, 92, P_WS, ZN_OFF, 393216, off_sgpr=24)
    A("s_and_b32 s24, s4, 7\ns_mul_i32 s24, s24, 768")
    A("s_sub_u32 s25, s3, 4\ns_lshl_b32 s25, s25, 6\nv_add_u32 v24, s25, v0")
    for j in range(2):
        A(f"v_add_u32 v25, {256*j}, v24")
        udiv_small(A, 25, 26, 27, 12, 25, 512)
        udiv_small(A, 27, 28, 29, 6, 25, 12)
        A("v_lshl_add_u32 v26, v28, 5, v26\ns_movk_i32 s25, 6144\nv_mul_u32_u24 v26, s25, v26\nv_lshl_add_u32 v26, v29, 7, v26")
        if j == 1: A("v_cmp_gt_u32 vcc, 384, v25\nv_cndmask_b32 v26, -1, v26, vcc")
        A(f"buffer_load_dword v{30+j}, v26, s[92:95], s24 offen {sc}")

def touch_wp(A, sc):
    A(f"s_mul_i32 s24, s5, {WP_CB}")
    make_srd(A, 92, P_WS, WP_OFF, WP_CB, off_sgpr=24)
    A("s_sub_u32 s25, s3, 4\ns_lshl_b32 s25, s25, 6\nv_add_u32 v230, s25, v0\nv_lshlrev_b32 v231, 3, v230\ns_and_b32 s24, s4, 7\nv_add_u32 v231, s24, v231\nv_lshlrev_b32 v231, 7, v231")
    A(f"buffer_load_dword v238, v231, s[92:95], 0 offen {sc}")

def touch_a3(A, sc, blk0, nblk):
    total = 4 * nblk * 8
    A(f"s_mul_i32 s24, s4, {4*44*1024}")
    make_srd(A, 92, P_WS, A3_OFF, 4 * 44 * 1024, off_sgpr=24)
    A("s_and_b32 s24, s5, 3")
    n = -(-total // 4 // 64)
    for j in range(n):
        A(f"v_add_u32 v230, {64*j}, v0\nv_lshlrev_b32 v230, 2, v230\nv_add_u32 v230, s24, v230")
        A(f"v_lshrrev_b32 v231, 5, v230\nv_bfe_u32 v232, v230, 3, 2\nv_and_b32 v233, 7, v230\nv_mul_u32_u24 v232, 44, v232\nv_add3_u32 v231, v231, v232, {blk0}\nv_lshlrev_b32 v231, 10, v231\nv_lshl_add_u32 v231, v233, 7, v231")
        A(f"v_cmp_gt_u32 vcc, {total}, v230\nv_cndmask_b32 v231, -1, v231, vcc")
        A(f"buffer_load_dword v{239+j}, v231, s[92:95], 0 offen {sc}")

def poison_h(A):
    A(f"s_lshl_b32 s26, s{RB64}, 2\ns_add_u32 s26, s26, s3\ns_sub_u32 s26, s26, 4\ns_mul_i32 s26, s26, 44\ns_mul_i32 s25, s{CB}, 3\ns_add_u32 s26, s26, s25\ns_add_u32 s26, s26, 20\ns_lshl_b32 s26, s26, 10")
    make_srd(A, 28, P_WS, A3_OFF, A3_SIZE)
    A("v_mov_b32 v20, -1\nv_mov_b32 v21, -1\nv_mov_b32 v22, -1\nv_mov_b32 v23, -1\nv_lshlrev_b32 v19, 4, v0")
    for j in range(3): A(f"buffer_store_dwordx4 v[20:23], v19, s[28:31], s26 offen offset:{j*1024} sc1")

def poison_z(A):
    A(f"s_mul_i32 s26, s5, 393216\ns_lshl_b32 s25, s4, 2\ns_sub_u32 s24, s3, 6\ns_lshl_b32 s24, s24, 1\ns_add_u32 s25, s25, s24\ns_mul_i32 s25, s25, 6144\ns_add_u32 s26, s26, s25")
    make_srd(A, 28, P_WS, ZN_OFF, 8 * 393216)
    A("v_mov_b32 v44, -1\nv_mov_b32 v45, -1\nv_mov_b32 v46, -1\nv_mov_b32 v47, -1\nv_lshlrev_b32 v43, 4, v0")
    for q in range(3):
        for j in range(4): A(f"buffer_store_dwordx4 v[44:47], v43, s[28:31], s26 offen offset:{j*1024} sc1")
        A("s_add_u32 s26, s26, 4096")

NV = [243]
def early_w(A, Q):
    p2.park_setup(A, RB64)
    A("s_sub_u32 s25, s3, 4\ns_lshl_b32 s25, s25, 11")
    for blk in (0, 4):
        slot = p2.W_SLOT_OF[blk]
        p2.blk_off(A, 26, blk)
        for part in range(4):
            for e in range(2):
                A(f"s_add_u32 m0, s25, {slot * p2.W_SLOT + (16 * part + 2 * e) * 512}\ns_add_u32 s24, s26, {part * 16 * 4096}")
                A(f"buffer_load_dwordx4 v{p2.PARK_VO+e}, s[40:43], s24 offen lds")
    Q.issue(("ew", 0), 16)

def tlb_warm(A, shift=16):
    jobs = [(P_WS, 0xF00000 + 0x100000, 0), (P_WS, 0xF00000 + 0x100000, 1), (P_WS, 0xF00000 + 0x100000, 2), (P_WS, 0xF00000 + 0x100000, 3),
            (P_WSP, 2048 * 4096, 0), (P_WSP, 2048 * 4096, 1), (P_OUT, 2048 * 1280, 0), (P_WO, 640 * 1280, 0), (P_WOUT, 768 * 1280, 0),
            (P_AX, 2048 * 1280, 0), (P_WQKV, 640 * 3840, 0), (P_WIN, 640 * 3072, 0)]
    end = A.newlabel("Ltlbe")
    A(f"s_lshr_b32 s26, s2, 3\nv_lshlrev_b32 v240, {shift}, v0")
    for j, (ptr, size, part) in enumerate(jobs):
        nx = A.newlabel("Ltlb")
        A(f"s_cmp_lg_u32 s26, {j}\ns_cbranch_scc1 {nx}")
        make_srd(A, 8, ptr, 0, size)
        A(f"s_mov_b32 s27, {part * 64 << shift}\nbuffer_load_dword v254, v240, s[8:11], s27 offen\ns_branch {end}")
        A.label(nx)
    A.label(end)

def nonce_issue(A):
    make_srd(A, 28, P_DBG, 0, 256)
    A(f"v_mov_b32 v{NV[0]}, 0\nbuffer_load_dword v{NV[0]+1}, v{NV[0]}, s[28:31], 0 offen sc1")

def nonce_take(A):
    ok = A.newlabel("Lnok")
    A(f"s_waitcnt vmcnt(0)\nv_readfirstlane_b32 s{NONCE}, v{NV[0]+1}\ns_cmp_lg_u32 s{NONCE}, 0\ns_cbranch_scc1 {ok}")
    get_nonce(A, NONCE, NV[0], NV[0] + 1)
    A.label(ok)

def code_prefetch(A, nbytes):
    lines = -(-nbytes // 128)
    per = -(-lines // 32)
    assert per <= 64
    pc = A.newlabel("Lpc")
    A("s_getpc_b64 s[16:17]")
    A.label(pc)
    A(f"s_sub_u32 s16, s16, {pc}-{NAME}_kernel\ns_subb_u32 s17, s17, 0")
    A(f"s_lshr_b32 s18, s2, 3\ns_mul_i32 s18, s18, {per*128}\nv_lshlrev_b32 v240, 7, v0\nv_add_u32 v240, s18, v240")
    A(f"v_cmp_gt_u32 vcc, {per}, v0\ns_and_saveexec_b64 s[18:19], vcc")
    A(f"v_min_u32 v240, {nbytes - 4}, v240\nglobal_load_dword v255, v240, s[16:17]\ns_mov_b64 exec, s[18:19]")

DBGT = "dbgt" in sys.argv
def dbg_time(A, idx, neg=False):
    if not DBGT or neg: return
    l = A.newlabel("Ldt")
    A(f"s_cmp_lg_u32 s3, 0\ns_cbranch_scc1 {l}\ns_and_b32 s32, s2, 0xfffffffb\ns_cmp_lg_u32 s32, 0\ns_cbranch_scc1 {l}")
    make_srd(A, 28, P_DBG, 0, 256)
    A(f"s_mul_i32 s34, s2, 7\ns_add_u32 s34, s34, {idx*4}")
    A("s_memrealtime s[32:33]\ns_waitcnt lgkmcnt(0)")
    A(f"s_mov_b64 vcc, exec\ns_mov_b64 exec, 1\nv_mov_b32 v252, 0\nv_mov_b32 v253, s32\nbuffer_store_dword v253, v252, s[28:31], s34 offen\ns_mov_b64 exec, vcc")
    A.label(l)

ST0 = "st0" in sys.argv
def st0(A, i):
    if ST0: A(f"s_memrealtime s[{64+2*i}:{65+2*i}]")
def st0_dump(A):
    if not ST0: return
    l = A.newlabel("Lst0")
    A(f"s_and_b32 s32, s2, 0xfffffffb\ns_cmp_lg_u32 s32, 0\ns_cbranch_scc1 {l}\ns_cmp_lg_u32 s3, 4\ns_cbranch_scc1 {l}")
    make_srd(A, 28, P_DBG, 0, 256)
    A("s_waitcnt lgkmcnt(0)\ns_mul_i32 s34, s2, 7\ns_add_u32 s34, s34, 4\nv_mov_b32 v252, 0\ns_mov_b64 exec, 1")
    for i in range(6): A(f"v_mov_b32 v253, s{64+2*i}\nbuffer_store_dword v253, v252, s[28:31], s34 offen offset:{4*i}")
    A("s_waitcnt vmcnt(0)")
    A.label(l)

def gen(opts):
    A = Asm()
    kstart = A.newlabel("Lkstart")
    st0(A, 0)
    end = prologue(A, codepf=opts.get('codepf', 0) if opts.get('earlycode', True) else 0, kname=NAME + '_kernel')
    st0(A, 1)
    stamp(A, 0); stamp(A, 5, cyc=True)
    dbg_time(A, 1)
    A("s_mov_b32 s99, 4096")
    p2.wg_map_p23(A)
    A(f"s_mov_b32 s{RB64}, s4\ns_mov_b32 s{CB}, s5")
    wg_map_p1(A)
    p1.rot_setup(A)
    p3.rot3_setup(A, 'rot3' in sys.argv)
    if "noprio" not in sys.argv:
        lp = A.newlabel("Lprio")
        A(f"s_cmp_ge_u32 s3, 4\ns_cbranch_scc{0 if 'priol' in sys.argv else 1} {lp}\ns_setprio 1")
        A.label(lp)
    p2.rot2_setup(A, ('rot2' in sys.argv) and not opts.get('park', True))
    def T0():
        pass
    def preb0(A):
        if opts.get("touch") == "bulk" and opts.get("half"): touch_half(A, 0); return
        if opts.get("touch") == "bulk" and opts.get("latetouch"): touch_bulk(A, 2 if opts.get("split") else 3)
    PK = opts.get("park", True)
    def park_each_q(A, Q, u):
        if not PK: return
        if "park3" in sys.argv:
            if u == 19: p2.park_setup(A, RB64)
            return
        if u == 7: p2.park_setup(A, RB64)
        if u >= 8:
            for j in range(2): p2.park_load(A, 2 * (u - 8) + j)
            Q.issue(("pk", u), 2)
    def only_w(wave, fn):
        l = A.newlabel("Lonly"); A(f"s_cmp_lg_u32 s3, {wave}\ns_cbranch_scc1 {l}"); fn(); A.label(l)
    def pz_off(): A(f"s_lshl_b32 s24, s{CB}, 7\ns_add_u32 s24, s24, {ZF_OFF}")
    def pz_probe(): only_w(4, lambda: (pz_off(), poll_issue(A, 24, 16, 16)))
    def pz_check(): only_w(4, lambda: (pz_off(), poll_check(A, 24, 16, 16)))
    def each_q(A, Q, u):
        park_each_q(A, Q, u)
        if u == 6: nonce_issue(A); Q.issue(("n", 0), 1)
        if u == 11:
            n = Q.wait_for({("n", 0)})
            ok = A.newlabel("Lnok")
            A(f"s_waitcnt vmcnt({n})\nv_readfirstlane_b32 s{NONCE}, v{NV[0]+1}\ns_cmp_lg_u32 s{NONCE}, 0\ns_cbranch_scc1 {ok}")
            get_nonce(A, NONCE, NV[0], NV[0] + 1)
            A.label(ok)
            Q.retire(n)
        if u == 12: pz_probe()
        if u == 17: pz_check()
    def each_z(A, Q, st):
        park_each_z(A, Q, st)
        if st == 12: pz_probe()
        if st == 17: pz_check()
    def pz_flag(A, Q):
        only_w(6, lambda: (A(f"s_lshl_b32 s24, s5, 7\ns_lshl_b32 s25, s4, 2\ns_add_u32 s24, s24, s25\ns_add_u32 s24, s24, {ZF_OFF}"), set_flag(A, 24)))
    def park_tail(n0):
        if not PK: return
        if "park3" in sys.argv: n0 = 0
        for i in range(n0, 8 * len(p2.PARK_BLOCKS)): p2.park_load(A, i)
    def park_each_z(A, Q, st):
        if not PK: return
        if "park3" in sys.argv:
            if st == 15: p2.park_setup(A, RB64)
            if st >= 16:
                for i in range(6 * (st - 16), 6 * (st - 16) + 6): p2.park_load(A, i)
                Q.issue(("pk", st), 6)
            return
        if st == 5: p2.park_setup(A, RB64)
        if st >= 6:
            lo = 3 * (st - 6); hi = min(40, lo + 3)
            for i in range(lo, hi): p2.park_load(A, i)
            if hi > lo: Q.issue(("pk", st), hi - lo)
    def iter_hook(A):
        if opts.get("touch") == "bulk" and opts.get("half"):
            l = A.newlabel("Lsp"); A(f"s_cmp_lg_u32 s24, 1\ns_cbranch_scc1 {l}"); touch_half(A, 1); A.label(l)
            return
        if opts.get("touch") == "bulk" and opts.get("split"):
            l = A.newlabel("Lsp"); A(f"s_cmp_lg_u32 s24, 0\ns_cbranch_scc1 {l}"); touch_bulk(A, 1); A.label(l)
        if opts.get("touch") != "paced": return
        l = A.newlabel("Lit")
        A(f"s_cmp_lg_u32 s3, 0\ns_cbranch_scc1 {l}\ns_cmp_ge_u32 s24, {9 - PLEAD}\ns_cbranch_scc1 {l}")
        ptouch(A)
        A.label(l)
    def mid_hook(A):
        if opts.get("touch", True): touch_wsp(A)
        nonce_issue(A)
    P1EXIT = A.newlabel("Lp1exit")
    P2 = A.newlabel("LP2")
    zrole_l = A.newlabel("Lz_role")
    SC = "sc1"
    notc = A.newlabel("Lnotc")
    A(f"s_cmp_ge_u32 s3, 4\ns_cbranch_scc1 {notc}")
    pub = A.newlabel("Lpub")
    A(f"s_lshl_b32 s16, s2, 3\ns_add_u32 s16, s16, s3\ns_cmp_lg_u32 s16, 3\ns_cbranch_scc1 {pub}")
    publish_nonce(A)
    A.label(pub)
    if opts.get("touch") == "bulk" and not opts.get("latetouch"): touch_bulk(A)
    if opts.get("touch") == "paced":
        w0 = A.newlabel("Lw0")
        A(f"v_mov_b32 v{TA_}, s{P_AX}\nv_mov_b32 v{TA_+1}, s{P_AX+1}\nv_mov_b32 v238, 0\ns_mov_b64 s[90:91], 1")
        A(f"s_cmp_lg_u32 s3, 0\ns_cbranch_scc1 {w0}")
        ptouch_setup(A)
        ptouch_skip(A)
        for _ in range(PLEAD): ptouch(A)
        A.label(w0)
    if opts.get("tlb"):
        w2 = A.newlabel("Lw2"); A(f"s_cmp_lg_u32 s3, 2\ns_cbranch_scc1 {w2}"); tlb_warm(A); A.label(w2)
    w3 = A.newlabel("Lw3")
    A(f"s_cmp_lg_u32 s3, 3\ns_cbranch_scc1 {w3}")
    if opts.get("codepf", 0) and not opts.get("earlycode", True): code_prefetch(A, opts["codepf"])
    A.label(w3)
    A.label(notc)
    A(f"s_cmp_eq_u32 s6, 1\ns_cbranch_scc1 {zrole_l}")
    lw = A.newlabel("Lq_w"); lx = A.newlabel("Lq_x"); att = A.newlabel("Lq_att"); ldj = A.newlabel("Lq_ldj")
    A(f"s_cmp_eq_u32 s3, 7\ns_cbranch_scc1 {lx}\ns_cmp_ge_u32 s3, 4\ns_cbranch_scc1 {lw}")
    qkv_consumer(A)
    wg3 = A.newlabel("Lq_c3")
    A(f"s_cmp_eq_u32 s3, 3\ns_cbranch_scc1 {wg3}")
    for gate in (False, True):
        if gate: A.label(wg3)
        qkv_main(A, gate, mid=mid_hook, it_hook=iter_hook, b0hook=lambda A: dbg_time(A, 2), preb0=preb0)
        dbg_time(A, 3)
        stamp(A, 3)
        nonce_take(A)
        qkv_epilogue_store(A, gate)
        A(f"s_waitcnt lgkmcnt(0)\ns_barrier\ns_branch {att}")
    A.label(lw)
    st0(A, 2)
    TV[0] = 12; NV[0] = 14
    w_loader(A, QKV, late=nonce_issue, pre=T0, early=lambda: pack_issue(A), each=each_q)
    nonce_take(A)
    pack_finish(A, SC, lazy=True)
    A(f"s_branch {ldj}")
    A.label(lx)
    A("s_mov_b32 s27, 999")
    x_loader(A, QKV, late=nonce_issue, pre=T0, each=park_each_q)
    nonce_take(A)
    A.label(ldj)
    A("s_barrier")
    if not opts.get("latew"):
        p2.p2l_setup(A, RB64)
        p2.p2l_issue(A, 0); p2.p2l_issue(A, 4)
    park_tail(24)
    TV[0] = 250; NV[0] = 243
    A.label(att)
    stamp(A, 7)
    attention(A, SC)
    if "finez" in sys.argv: stamp(A, 9)
    A("s_barrier")
    A(f"s_lshl_b32 s16, s4, 7\ns_lshl_b32 s17, s5, 2\ns_add_u32 s16, s16, s17\ns_add_u32 s{LAZY}, s16, {OF_OFF}")
    A(f"s_branch {P2}")
    def gen_z_onepass():
        A.label(zrole_l)
        zld = A.newlabel("Lz_ld")
        A(f"s_cmp_ge_u32 s3, 4\ns_cbranch_scc1 {zld}")
        z1p.consumer(A, mid=mid_hook, b0hook=lambda A: dbg_time(A, 2))
        stamp(A, 3)
        nonce_take(A)
        zrole.z_epi_stats(A)
        A("s_barrier")
        zrole.z_epi_z1(A, SC)
        stamp(A, 7)
        A("s_barrier")
        zrole.z_epi_norm(A, SC)
        A("s_barrier")
        A(f"s_branch {P2}")
        A.label(zld)
        TV[0] = 12; NV[0] = 22
        A("s_mov_b32 s27, 999")
        def st4(A, Q):
            nonce_issue(A); Q.issue(("n", 0), 1)
        z1p.loader(A, hooks_w={"early": lambda A, Q: pack_issue(A), 4: st4},
                   hooks_x={2: lambda A, Q: (poison_z(A), Q.issue(("pz", 0), 12)), 4: st4})
        nonce_take(A)
        A("s_barrier")
        xw = A.newlabel("Lzxw")
        A(f"s_cmp_ge_u32 s3, 6\ns_cbranch_scc1 {xw}")
        zrole.z_publish_stats(A, NONCE)
        zrole.z_gather_issue(A)
        pack_finish(A, SC, lazy=True)
        zrole.z_gather_finish(A, NONCE, SPIN_MAX)
        A.label(xw)
        A("s_barrier")
        A("s_barrier")
        p2.p2l_setup(A, RB64)
        p2.p2l_issue(A, 0); p2.p2l_issue(A, 4)
        A(f"s_lshl_b32 s16, s4, 5\ns_lshl_b32 s17, s5, 2\ns_add_u32 s16, s16, s17\ns_add_u32 s{LAZY}, s16, {Z1F_OFF}")

    def gen_z_twopass():
        A.label(zrole_l)
        EN = opts.get('earlynorm', True)
        def nonce_take_noop(A): pass
        zld = A.newlabel("Lz_ld")
        A(f"s_cmp_ge_u32 s3, 4\ns_cbranch_scc1 {zld}")
        def between(A):
            zrole.z_epi_stats(A)
            if "finez" in sys.argv: stamp(A, 9)
            A("s_barrier")
            if "finez" in sys.argv: stamp(A, 10)
        zrole.z_consumer(A, mid=mid_hook, between=between, it_hook=iter_hook, b0hook=lambda A: dbg_time(A, 2), preb0=preb0,
                         p2hook=(lambda A: (nonce_take_noop(A), zrole.z_epi_norm(A, SC, ST=192, OB=224))) if EN else None, p2iter=6)
        dbg_time(A, 3)
        stamp(A, 7)
        nonce_take(A)
        if "finez" in sys.argv: stamp(A, 11)
        A("s_barrier")
        if "finez" in sys.argv: stamp(A, 12)
        if not EN: zrole.z_epi_norm(A, SC)
        if "finez" in sys.argv: stamp(A, 13)
        A("s_barrier")
        zrole.z_epi_z1(A, SC)
        A(f"s_branch {P2}")
        A.label(zld)
        st0(A, 2)
        TV[0] = 12; NV[0] = 14
        pk = A.newlabel("Lzpk")
        A("s_mov_b32 s27, 999")
        def st4(A, Q):
            nonce_issue(A); Q.issue(("n", 0), 1)
        def after_z1(A, Q):
            n = Q.wait_for({("n", 0)})
            ok = A.newlabel("Lnok")
            A(f"s_waitcnt vmcnt({n})\nv_readfirstlane_b32 s{NONCE}, v{NV[0]+1}\ns_cmp_lg_u32 s{NONCE}, 0\ns_cbranch_scc1 {ok}")
            get_nonce(A, NONCE, NV[0], NV[0] + 1)
            A.label(ok)
            Q.retire(n)
            zrole.z_publish_stats(A, NONCE); Q.issue(("s", 0), 1)
            pack_finish(A, SC, lazy=True)
        def x_nonce(A, Q):
            n = Q.wait_for({("n", 0)})
            ok = A.newlabel("Lnok")
            A(f"s_waitcnt vmcnt({n})\nv_readfirstlane_b32 s{NONCE}, v{NV[0]+1}\ns_cmp_lg_u32 s{NONCE}, 0\ns_cbranch_scc1 {ok}")
            get_nonce(A, NONCE, NV[0], NV[0] + 1)
            A.label(ok)
            Q.retire(n)
        def pre_last(A, Q):
            if not EN: zrole.z_gather_issue(A); Q.issue(("g", 0), 8)
        def g_issue(A, Q):
            if EN: zrole.z_gather_issue(A); Q.issue(("g", 0), 8)
        def g_finish(A, Q):
            if EN: zrole.z_gather_finish(A, NONCE, SPIN_MAX); Q.q.clear()
        zrole.z_loader(A, late=None, hooks={"st4": st4, "after_z1": after_z1, "pre_last": pre_last, ("st", 12): g_issue, ("st", 14): g_finish, **({} if 'zn4' in sys.argv else {"st13": early_w}), "each": each_z, "early": lambda A, Q: pack_issue(A)}, pre=T0, xhooks={("st", 4): lambda A, Q: (nonce_issue(A), Q.issue(("n", 0), 1)), ("st", 7): x_nonce, ("st", 8): pz_flag, "each": park_each_z, **({} if 'zn4' in sys.argv else {"st13": early_w}), "st2": lambda A, Q: (poison_z(A), Q.issue(("pz", 0), 12))})
        xw = A.newlabel("Lzxw"); xj = A.newlabel("Lzxj")
        A(f"s_cmp_ge_u32 s3, 6\ns_cbranch_scc1 {xw}")
        if not EN: zrole.z_gather_finish(A, NONCE, SPIN_MAX)
        A(f"s_branch {xj}")
        A.label(xw)
        A.label(xj)
        A("s_barrier")
        A("s_barrier")
        if 'zn4' in sys.argv:
            p2.p2l_setup(A, RB64); p2.p2l_issue(A, 0); p2.p2l_issue(A, 4)
        A(f"s_lshl_b32 s16, s4, 5\ns_lshl_b32 s17, s5, 2\ns_add_u32 s16, s16, s17\ns_add_u32 s{LAZY}, s16, {Z1F_OFF}")

    if opts.get('onepass'):
        gen_z_onepass()
    else:
        gen_z_twopass()
    TV[0] = 250; NV[0] = 243
    A.label(P2)
    if "finez" in sys.argv or "fz2" in sys.argv:
        A(f"s_waitcnt vmcnt(0)\ns_branch {P1EXIT}")
    dbg_time(A, 4)
    if not p1.FINE: stamp(A, 8)
    if opts.get("p1only"):
        A(f"s_waitcnt vmcnt(0)\ns_branch {P1EXIT}")
    A(f"s_mov_b32 s4, s{RB64}\ns_mov_b32 s5, s{CB}")
    if "small2" in sys.argv: A(f"s_and_b32 s4, s4, 1\ns_and_b32 s5, s5, 1\ns_and_b32 s{RB64}, s{RB64}, 1")
    ld2 = A.newlabel("Lp2ld"); fin = A.newlabel("Lfin")
    A(f"s_cmp_ge_u32 s3, 4\ns_cbranch_scc1 {ld2}")
    stamp(A, 9)
    p2.p2_consumer(A, sc_st=SC, sc_ld=opts.get('scld', SC), lazy_z1=True, last_hook=lambda: p3.p3_early(A, 4, opts.get('scld', SC)), last_n=10, poison=True)
    stamp(A, 10)
    dbg_time(A, 5)
    def hflag_c():
        A(f"s_lshl_b32 s26, s4, 7\ns_lshl_b32 s27, s5, 4\ns_add_u32 s26, s26, s27\ns_lshl_b32 s27, s3, 2\ns_add_u32 s26, s26, s27\ns_add_u32 s26, s26, {HF_OFF}")
        set_flag(A, 26)
    p3.p3_consumer(A, sc_ld=opts.get('scld', SC), drain0=True, early_done=True, poison=True)
    A("s_waitcnt vmcnt(0)")
    A(f"s_branch {fin}")
    A.label(ld2)
    TV[0] = 12; NV[0] = 14
    def pf_wait():
        A(f"s_lshl_b32 s21, s5, 8\ns_add_u32 s21, s21, {PF_OFF}")
        wait_flags(A, 21, 44)
    def only(wave, fn):
        l = A.newlabel("Lonly"); A(f"s_cmp_lg_u32 s3, {wave}\ns_cbranch_scc1 {l}"); fn(); A.label(l)
    def lazy(): set_flag(A, LAZY)
    T2 = opts.get("touch2", True)
    def z1off(): A(f"s_lshr_b32 s21, s4, 1\ns_lshl_b32 s21, s21, 5\ns_lshl_b32 s19, s5, 2\ns_add_u32 s21, s21, s19\ns_add_u32 s21, s21, {Z1F_OFF}")
    def ooff(): A(f"s_lshr_b32 s21, s4, 1\ns_lshl_b32 s21, s21, 7\ns_add_u32 s21, s21, {OF_OFF}")
    def hoff(): A(f"s_lshl_b32 s21, s4, 7\ns_add_u32 s21, s21, {HF_OFF}")
    def start2():
        if opts.get("latew"):
            lq = A.newlabel("Llw"); A(f"s_cmp_lg_u32 s6, 0\ns_cbranch_scc1 {lq}")
            p2.p2l_issue(A, 0); p2.p2l_issue(A, 4)
            A.label(lq)
        pk = A.newlabel("Lpkf")
        A(f"s_cmp_ge_u32 s27, 352\ns_cbranch_scc1 {pk}")
        pack_flag(A)
        A.label(pk)
        if T2:
            touch_z(A, opts.get('sctouch', SC))
        poison_h(A)
    def phoff(): A(f"s_lshl_b32 s21, s4, 7\ns_add_u32 s21, s21, {HF_OFF}")
    def phflag():
        A(f"s_lshl_b32 s21, s4, 7\ns_lshl_b32 s19, s5, 2\ns_add_u32 s21, s21, s19\ns_add_u32 s21, s21, {HF_OFF}")
        set_flag(A, 21)
    def post_b1():
        only(4, lazy); only(5, phflag)
    def post_b2():
        only(5, lambda: (z1off(), poll_issue(A, 21, 1, 16)))
        only(6, lambda: (ooff(), poll_issue(A, 21, 8, 16)))
        only(7, lambda: (phoff(), poll_issue(A, 21, 8, 16)))
        A(f"s_lshl_b32 s21, s5, 8\ns_add_u32 s21, s21, {PF_OFF}")
        poll_issue(A, 21, 44, 17)
    def pre_b3():
        A("s_waitcnt vmcnt(0)")
        only(5, lambda: (z1off(), poll_check(A, 21, 1, 16)))
        only(6, lambda: (ooff(), poll_check(A, 21, 8, 16)))
        only(7, lambda: (phoff(), poll_check(A, 21, 8, 16)))
        A(f"s_lshl_b32 s21, s5, 8\ns_add_u32 s21, s21, {PF_OFF}")
        poll_check(A, 21, 44, 17)
    def hflag():
        A(f"s_lshl_b32 s21, s4, 7\ns_lshl_b32 s19, s5, 2\ns_add_u32 s21, s21, s19\ns_add_u32 s21, s21, {HF_OFF}")
        set_flag(A, 21)
    hooks = {"park": PK, "start": start2, "post_b1": post_b1, "post_b2": post_b2, "before_b3": pre_b3}
    hooks3 = {}
    p2.p2_loader_rest(A, RB64, opts.get('scld', SC), hooks, hooks3)
    A.label(fin)
    A.label(P1EXIT)
    st0(A, 5); st0_dump(A)
    dbg_time(A, 6)
    stamp(A, 4); stamp(A, 6, cyc=True)
    dump_stamps(A, 14)
    A.label(end)
    A("s_endpgm")
    txt = A.text(verbose=True)
    return txt.replace("SC_ST", SC)

def pack_flag_factory(A):
    pass

def pack_flag(A):
    A(f"s_and_b32 s16, s27, 7\ns_lshl_b32 s16, s16, 8\ns_lshr_b32 s17, s27, 3\ns_lshl_b32 s17, s17, 2\ns_add_u32 s16, s16, s17\ns_add_u32 s16, s16, {PF_OFF}")
    set_flag(A, 16)

if __name__ == "__main__":
    common.set_profile("prof" in sys.argv)
    opts = {"touch": (False if "notouch" in sys.argv else "paced" if "paced" in sys.argv else "bulk" if "bulk" in sys.argv else "none1"), "p1only": "p1only" in sys.argv, "touch2": "touch2" in sys.argv, "park": "park" in sys.argv or "park3" in sys.argv}
    if "plainld" in sys.argv: opts["scld"] = ""
    opts["delay2"] = "delay2" in sys.argv
    opts["earlycode"] = "earlycode" in sys.argv
    opts["latew"] = "latew" in sys.argv
    opts["onepass"] = "onepass" in sys.argv
    opts["earlynorm"] = "earlynorm" in sys.argv
    opts["tlb"] = "tlb" in sys.argv
    opts["half"] = "half" in sys.argv
    opts["split"] = "split" in sys.argv
    opts["latetouch"] = "earlytouch" not in sys.argv
    if "plaintouch" in sys.argv: opts["sctouch"] = ""
    body = gen(opts)
    if "nocodepf" not in sys.argv:
        import subprocess
        tmp = build_file([(NAME + "_kernel", body, 256, 102, 256)], [(NAME + "_kernel", 256, 512, LDS_MAX)])
        open("_tmp.s", "w").write(tmp)
        subprocess.run(["clang", "-x", "assembler", "-target", "amdgcn-amd-amdhsa", "-mcpu=gfx950", "-c", "_tmp.s", "-o", "_tmp.o"], check=True)
        out = subprocess.run(["llvm-readelf", "-S", "_tmp.o"], capture_output=True, text=True).stdout
        size = [int(l.split("PROGBITS")[1].split()[2], 16) for l in out.splitlines() if ".text" in l][0]
        opts["codepf"] = size - 256
        body = gen(opts)
        print("code bytes", size)
    txt = build_file([(NAME + "_kernel", body, 256, 102, 256)], [(NAME + "_kernel", 256, 512, LDS_MAX)])
    open(sys.argv[1], "w").write(txt)
```
